```python
import torch

def _softmax(x, axis=-1):
    return torch.softmax(x, dim=axis)

def _gelu(x):
    return torch.nn.functional.gelu(x, approximate='tanh')

def _silu(x):
    return torch.nn.functional.silu(x)

def _sigmoid(x):
    return torch.sigmoid(x)

def _layernorm(x, axis=-1, eps=1e-05):
    m = x.mean(dim=axis, keepdim=True)
    v = x.var(dim=axis, keepdim=True, unbiased=False)
    return (x - m) / torch.sqrt(v + eps)

def _scatter_add(tgt, idx, src, axis=0):
    return tgt.clone().index_add_(axis, idx, src)

def _segment_sum(src, seg, n):
    out = torch.zeros((n,) + src.shape[1:], dtype=src.dtype)
    return out.index_add_(0, seg, src)

def _pad(x, pw):
    flat = tuple((v for pair in reversed(pw) for v in pair))
    return torch.nn.functional.pad(x, flat)
kernel_name = 'interleave_layers__linear_attn_block__mixer_gmlp__prompt'

def setup_inputs():

    _w = lambda a: (lambda t: t.to(torch.bfloat16) if t.is_floating_point() else t)(torch.as_tensor(a))

    def _A_setup():
        B, S, D = (1, 2048, 576)
        return {'x': _w((lambda *s: torch.randn(*s, dtype=torch.bfloat16) * 0.05)(B, S, D)), 'wqkv': _w((lambda *s: torch.randn(*s, dtype=torch.bfloat16) * 0.1)(D, 3 * D)), 'wo': _w((lambda *s: torch.randn(*s, dtype=torch.bfloat16) * 0.05)(D, D))}
    _A_in = _A_setup()

    def _B_setup():
        B, S, D, F = (1, 2048, 576, 4608)
        Fh = F // 2
        return {'x': _w((lambda *s: torch.randn(*s, dtype=torch.bfloat16) * 0.05)(B, S, D)), 'w_in': _w((lambda *s: torch.randn(*s, dtype=torch.bfloat16) * 0.2)(D, 2 * Fh)), 'w_sp': _w(0.01 * (lambda *s: torch.randn(*s, dtype=torch.bfloat16) * 0.2)(S, S)), 'b_sp': _w(1.0 + 0.01 * (lambda *s: torch.randn(*s, dtype=torch.bfloat16) * 0.05)(S)), 'w_out': _w((lambda *s: torch.randn(*s, dtype=torch.bfloat16) * 0.05)(Fh, D))}
    _B_in = _B_setup()
    return {'A_x': _A_in['x'], 'A_wqkv': _A_in['wqkv'], 'A_wo': _A_in['wo'], 'B_x': _B_in['x'], 'B_w_in': _B_in['w_in'], 'B_w_sp': _B_in['w_sp'], 'B_b_sp': _B_in['b_sp'], 'B_w_out': _B_in['w_out']}

def reference(A_x, A_wqkv, A_wo, B_x, B_w_in, B_w_sp, B_b_sp, B_w_out):

    def _A_ref(x, wqkv, wo):
        B, S, D = x.shape
        H = 32
        Dh = D // H
        qkv = (lambda x, *d: x.permute(*d))((x @ wqkv).reshape(B, S, 3, H, Dh), 2, 0, 3, 1, 4)
        q, k, v = (qkv[0], qkv[1], qkv[2])
        phi = lambda t: torch.where(t > 0, t + 1, torch.exp(t)) + 1e-06
        pq, pk = (phi(q), phi(k))
        kv = torch.einsum('bhsd,bhse->bhde', pk, v)
        z = torch.einsum('bhsd->bhd', pk)
        num = torch.einsum('bhqd,bhde->bhqe', pq, kv)
        den = torch.einsum('bhqd,bhd->bhq', pq, z)[..., None] + 1e-06
        o = num / den
        return (lambda x, *d: x.permute(*d))(o, 0, 2, 1, 3).reshape(B, S, D) @ wo

    def _B_ref(x, w_in, w_sp, b_sp, w_out):
        B, S, D = x.shape
        F = w_in.shape[-1]
        Fh = F // 2
        z = _gelu(torch.einsum('bsd,df->bsf', x, w_in))
        z1 = z[..., :Fh].clone()
        z2 = _layernorm(z[..., Fh:], axis=-1)
        g = torch.einsum('ts,bsf->btf', w_sp, z2) + b_sp[None, :, None]
        return torch.einsum('bsf,fd->bsd', z1 * g, w_out)
    x = A_x
    x = x + _A_ref(_layernorm(x, axis=-1), A_wqkv, A_wo)
    x = x + _B_ref(_layernorm(x, axis=-1), B_w_in, B_w_sp, B_b_sp, B_w_out)
    x = x + _A_ref(_layernorm(x, axis=-1), A_wqkv, A_wo)
    x = x + _B_ref(_layernorm(x, axis=-1), B_w_in, B_w_sp, B_b_sp, B_w_out)
    return x
```

```python
class K:
    def __init__(self, name):
        self.name = name
        self.lines = []
        self.vm = []
        self.lg = []
        self.nlabel = 0
    def e(self, s):
        self.lines.append('    ' + s)
    def c(self, s):
        self.lines.append('    ; ' + s)
    def label(self, l):
        self.lines.append(l + ':')
    def newlabel(self, base='L'):
        self.nlabel += 1
        return '%s_%s_%d' % (base, self.name, self.nlabel)
    def vmem(self, s, tag=None):
        if len(self.vm) >= 62:
            self.e('s_waitcnt vmcnt(56)'); self.vm = self.vm[-56:]
        self.e(s); self.vm.append(tag)
    def lds(self, s, tag=None):
        if len(self.lg) >= 15:
            self.e('s_waitcnt lgkmcnt(12)'); self.lg = self.lg[-12:]
        self.e(s); self.lg.append(tag)
    def wait_vm(self, tag):
        if tag not in self.vm: return
        idx = max(i for i, t in enumerate(self.vm) if t == tag)
        n = len(self.vm) - 1 - idx
        assert n <= 63
        self.e('s_waitcnt vmcnt(%d)' % n)
        self.vm = self.vm[idx + 1:]
    def wait_lg(self, tag):
        if tag not in self.lg: return
        idx = max(i for i, t in enumerate(self.lg) if t == tag)
        n = len(self.lg) - 1 - idx
        assert n <= 15, n
        self.e('s_waitcnt lgkmcnt(%d)' % n)
        self.lg = self.lg[idx + 1:]
    def wait_all(self):
        self.e('s_waitcnt vmcnt(0) lgkmcnt(0)'); self.vm = []; self.lg = []
    def wait_vm_all(self):
        self.e('s_waitcnt vmcnt(0)'); self.vm = []
    def wait_lg_all(self):
        self.e('s_waitcnt lgkmcnt(0)'); self.lg = []
    def text(self, vgprs, agprs=0, sgprs=102, wgy=False):
        acc = (vgprs + 3) // 4 * 4
        nfv = acc + agprs if agprs else vgprs
        body = '\n'.join(self.lines)
        s = '.text\n.globl %s\n.p2align 8\n.type %s,@function\n%s:\n%s\n    s_endpgm\n' % (self.name, self.name, self.name, body)
        d = '.section .rodata,"a"\n.p2align 6\n.amdhsa_kernel %s\n' % self.name
        d += '  .amdhsa_next_free_vgpr %d\n  .amdhsa_next_free_sgpr %d\n  .amdhsa_accum_offset %d\n' % (nfv, sgprs, acc)
        d += '  .amdhsa_group_segment_fixed_size 0\n  .amdhsa_kernarg_size 88\n  .amdhsa_user_sgpr_count 2\n  .amdhsa_user_sgpr_kernarg_segment_ptr 1\n  .amdhsa_system_sgpr_workgroup_id_x 1\n'
        if wgy: d += '  .amdhsa_system_sgpr_workgroup_id_y 1\n'
        d += '.end_amdhsa_kernel\n'
        return s, d

def assemble_file(header_comments, launches, kernels):
    out = []
    for h in header_comments: out.append('; ' + h)
    for (n, g, b, l) in launches:
        out.append('; @launch kernel=%s grid=(%d,%d,%d) block=(%d,%d,%d) lds=%d' % (n, g[0], g[1], g[2], b[0], b[1], b[2], l))
    out.append('.amdgcn_target "amdgcn-amd-amdhsa--gfx950"')
    for t, d in kernels: out.append(t)
    for t, d in kernels: out.append(d)
    return '\n'.join(out) + '\n'
```

```python
import re
TRANS = ('v_exp_f32', 'v_log_f32', 'v_rcp_f32', 'v_rsq_f32', 'v_sqrt_f32', 'v_sin_f32', 'v_cos_f32', 'v_rcp_iflag_f32')
REG = re.compile(r'\b([vas])(\d+)\b|\b([vas])\[(\d+):(\d+)\]|\b(vcc|exec|m0|scc)(?:_lo|_hi)?\b')

def regs_of(tok):
    out = set()
    for m in REG.finditer(tok):
        if m.group(1): out.add((m.group(1), int(m.group(2))))
        elif m.group(3):
            for i in range(int(m.group(4)), int(m.group(5)) + 1): out.add((m.group(3), i))
        else: out.add((m.group(6), 0))
    return out

def split_ops(s):
    ops = []; depth = 0; cur = ''
    for ch in s:
        if ch == '[': depth += 1
        if ch == ']': depth -= 1
        if ch == ',' and depth == 0: ops.append(cur.strip()); cur = ''
        else: cur += ch
    if cur.strip(): ops.append(cur.strip())
    return ops

class Ins:
    def __init__(self, line):
        self.line = line
        t = line.strip()
        self.op = t.split()[0]
        rest = t[len(self.op):].strip()
        ops = split_ops(rest)
        clean = []
        for o in ops:
            clean.append(o.split()[0] if o else o)
        self.mods = rest
        op = self.op
        self.dst = set(); self.src = set(); self.srcC = set(); self.srcAB = set(); self.data = set()
        self.cls = 'other'
        self.ab = set()
        R = [regs_of(o) for o in clean]
        if op.startswith('v_mfma'):
            self.cls = 'mfma'; self.dst = R[0]; self.srcAB = R[1] | R[2]; self.srcC = R[3]; self.src = self.srcAB | self.srcC
            self.passes = 8 if '32x32' in op else 4
        elif op.startswith('v_'):
            self.cls = 'valu'
            self.dst = set(R[0]) if R else set()
            start = 1
            if op.startswith(('v_add_co', 'v_sub_co', 'v_subrev_co', 'v_addc_co', 'v_subb_co', 'v_mad_u64', 'v_div_scale')):
                self.dst |= R[1]; start = 2
            for r in R[start:]: self.src |= r
            if op.startswith('v_dot'): self.ab = R[1] | R[2]
            if op.startswith(('v_fmac', 'v_dot2c', 'v_pk_fmac')) or 'permlane' in op: self.src |= R[0]
            if 'permlane' in op and 'swap' in op: self.dst |= R[1]
            if op.startswith('v_cmpx'): self.dst.add(('exec', 0))
            if op.startswith('v_cndmask') and len(R) == 3: self.src.add(('vcc', 0))
            if op.startswith('v_writelane'): self.src |= R[0]
        elif op.startswith(('buffer_', 'global_', 'flat_', 'scratch_')):
            self.cls = 'vmem'
            islds = ' lds' in (' ' + rest) or 'load_lds' in op
            if op in ('buffer_wbl2', 'buffer_inv'): pass
            elif ('load' in op) and not islds:
                self.dst = R[0]
                for r in R[1:]: self.src |= r
            else:
                for r in R: self.src |= r
                if 'store' in op or 'atomic' in op:
                    self.data = R[0] if op.startswith('buffer_') else (R[1] if len(R) > 1 else set())
                    if 'atomic' in op and 'sc0' in rest: self.dst = R[0]
            if islds: self.src.add(('m0', 0)); self.islds = True
        elif op.startswith('ds_'):
            self.cls = 'ds'
            if op.startswith(('ds_read', 'ds_bpermute', 'ds_permute', 'ds_swizzle')):
                self.dst = R[0]
                for r in R[1:]: self.src |= r
            else:
                for r in R: self.src |= r
        elif op.startswith('s_'):
            self.cls = 'salu'
            if op.startswith(('s_load', 's_buffer_load', 's_memtime', 's_memrealtime')): self.cls = 'smem'
            if op.startswith(('s_cmp', 's_bitcmp', 's_cbranch', 's_branch', 's_waitcnt', 's_barrier', 's_nop', 's_endpgm', 's_setprio', 's_sleep')):
                for r in R: self.src |= r
            else:
                self.dst = R[0] if R else set()
                for r in R[1:]: self.src |= r
                if 'saveexec' in op: self.dst = self.dst | {('exec', 0)}
        self.dpp = ('_dpp' in op) or ('row_' in rest) or ('quad_perm' in rest)
        self.states = 1
        if op == 's_nop': self.states = int(rest, 0) + 1

def base(op): return re.sub(r'_e(32|64)$', '', op)
def isv(r): return r[0] in ('v', 'a')
def iss(r): return r[0] in ('s', 'vcc')

def need(prev, cur):
    n = 0
    if prev.cls == 'valu':
        vd = {r for r in prev.dst if isv(r)}
        sd = {r for r in prev.dst if iss(r)}
        if cur.cls == 'mfma' and vd & cur.src: n = max(n, 2)
        if cur.cls == 'mfma' and ('exec', 0) in prev.dst: n = max(n, 4)
        if cur.cls == 'valu':
            if cur.dpp and vd & cur.src: n = max(n, 2)
            if cur.dpp and ('exec', 0) in prev.dst: n = max(n, 5)
            if 'permlane' in cur.op and vd & (cur.src | cur.dst): n = max(n, 2)
            if cur.op.startswith(('v_readlane', 'v_readfirstlane')) and vd & cur.src: n = max(n, 1)
            if sd & cur.src:
                n = max(n, 4 if cur.op.startswith(('v_readlane', 'v_writelane', 'v_div_fmas')) else 2)
            if base(prev.op) in TRANS and vd & (cur.src | cur.dst) and base(cur.op) not in TRANS: n = max(n, 1)
            if base(prev.op) in TRANS and vd & cur.src: n = max(n, 1)
            if ('exec', 0) in prev.dst and cur.op.startswith(('v_readlane', 'v_readfirstlane', 'v_writelane', 'v_permlane')): n = max(n, 4)
            if 'op_sel' in prev.mods and not prev.op.startswith('v_pk') and vd & (cur.src | cur.dst): n = max(n, 1)
        if prev.op.startswith('v_dot') and vd & (cur.src | cur.dst):
            same_c = (base(cur.op) == base(prev.op)) and not (vd & cur.ab)
            if not same_c: n = max(n, 3)
        if cur.cls == 'vmem' and sd & cur.src: n = max(n, 5)
        if cur.cls in ('salu', 'smem') and sd & cur.src: n = max(n, 2)
    if prev.cls == 'mfma':
        p = prev.passes
        big = {4: 8, 8: 12}[p]; mid = {4: 6, 8: 10}[p]; war = {4: 3, 8: 7}[p]
        if cur.cls == 'mfma':
            if prev.dst & cur.srcAB: n = max(n, big)
            if prev.dst & cur.srcC and not (prev.dst == cur.srcC and prev.passes == cur.passes): n = max(n, mid)
            if prev.dst & cur.dst and not (prev.dst == cur.srcC): n = max(n, mid)
        elif cur.cls in ('valu', 'vmem', 'ds'):
            if prev.dst & (cur.src | cur.dst): n = max(n, big)
            if cur.cls == 'valu' and prev.srcC & cur.dst: n = max(n, war)
    if prev.cls == 'salu' and ('m0', 0) in prev.dst and cur.cls == 'vmem' and ('m0', 0) in cur.src: n = max(n, 1)
    if prev.cls == 'vmem' and prev.data and ('x3' in prev.op or 'x4' in prev.op):
        if prev.data & cur.dst: n = max(n, 2 if cur.cls in ('valu', 'mfma') else 1)
    return n

def fix(lines):
    out = []
    hist = []
    for line in lines:
        t = line.strip()
        if not t or t.startswith(';'):
            out.append(line); continue
        if t.endswith(':;nohz'):
            out.append(line); continue
        if t.endswith(':'):
            out.append(line)
            out.append('    s_nop 7'); out.append('    s_nop 3')
            hist = []
            continue
        cur = Ins(t)
        dist = 0; req = 0
        for p in reversed(hist):
            r = need(p, cur)
            if r - dist > req: req = r - dist
            dist += p.states
            if dist >= 14: break
        while req > 0:
            m = min(req, 16)
            nop = Ins('s_nop %d' % (m - 1)); out.append('    s_nop %d' % (m - 1)); hist.append(nop); req -= m
        out.append(line)
        hist.append(cur)
        if len(hist) > 40: hist = hist[-20:]
    return out
```

```python
from lib import *

A_BASE = 16; B_BASE = 80; ACC = 112
AR = 8; NR = 8

def wgmap_8x4(k):
    k.e('s_and_b32 s3, s2, 7'); k.e('s_lshr_b32 s23, s2, 3')
    k.e('s_and_b32 s44, s3, 1'); k.e('s_lshl_b32 s44, s44, 3'); k.e('s_and_b32 s45, s23, 7'); k.e('s_add_u32 s44, s44, s45')
    k.e('s_lshr_b32 s45, s3, 1'); k.e('s_lshl_b32 s45, s45, 2'); k.e('s_lshr_b32 s46, s23, 3'); k.e('s_add_u32 s45, s45, s46')

def c8_setup(k, a_base, a_kb, b_base, b_panel_bytes, slot):
    k.e('s_and_b32 s48, s22, 3'); k.e('s_lshr_b32 s49, s22, 2')
    k.e('v_lshlrev_b32 v1, 4, v0')
    k.e('v_add_u32 v2, 65536, v1'); k.e('v_add_u32 v3, 131072, v1')
    k.e('s_lshl_b32 s46, s44, 3'); k.e('s_lshl_b32 s47, s48, 1'); k.e('s_add_u32 s46, s46, s47')
    k.e('s_mul_i32 s24, s46, %d' % (a_kb * 1024)); k.e('s_add_u32 s24, s24, 0x%x' % a_base)
    k.e('s_add_u32 s25, s24, %d' % (a_kb * 1024))
    k.e('s_mul_i32 s26, s45, %d' % b_panel_bytes); k.e('s_add_u32 s26, s26, 0x%x' % b_base)
    k.e('s_mul_i32 s27, s22, %d' % (slot // 8))
    k.e('s_mul_i32 s29, s22, %d' % (slot // 16))

def stats_load(k):
    k.e('v_and_b32 v12, 31, v0'); k.e('v_lshlrev_b32 v12, 6, v12'); k.e('v_lshrrev_b32 v13, 5, v0'); k.e('v_lshl_add_u32 v12, v13, 5, v12')
    k.e('s_lshl_b32 s46, s44, 13'); k.e('s_lshl_b32 s47, s48, 11'); k.e('s_add_u32 s46, s46, s47'); k.e('s_add_u32 s46, s46, 0x%x' % XS)
    k.vmem('buffer_load_dwordx4 v[4:7], v12, s[8:11], s46 offen', 'xs')
    k.vmem('buffer_load_dwordx4 v[8:11], v12, s[8:11], s46 offen offset:16', 'xs')

def stats_finish(k, stat_base, n=576.0):
    k.wait_vm('xs')
    k.e('v_add_f32 v4, v4, v6'); k.e('v_add_f32 v8, v8, v10'); k.e('v_add_f32 v4, v4, v8')
    k.e('v_add_f32 v5, v5, v7'); k.e('v_add_f32 v9, v9, v11'); k.e('v_add_f32 v5, v5, v9')
    for vv in (4, 5):
        k.e('v_mov_b32 v6, v%d' % vv); k.e('v_permlane32_swap_b32 v%d, v6' % vv); k.e('v_add_f32 v%d, v%d, v6' % (vv, vv))
    k.e('v_mul_f32 v4, %s, v4' % f32(-1.0 / n))
    k.e('v_mul_f32 v5, %s, v5' % f32(1.0 / n))
    k.e('v_mul_f32 v6, v4, v4'); k.e('v_sub_f32 v5, v5, v6'); k.e('v_max_f32 v5, 0, v5')
    k.e('v_add_f32 v5, %s, v5' % f32(1e-5)); k.e('v_rsq_f32 v5, v5')
    k.e('v_cmp_gt_u32 vcc, 32, v0'); k.e('v_cndmask_b32 v4, v5, v4, vcc')
    k.e('s_lshl_b32 s30, s22, 8'); k.e('s_add_u32 s30, s30, %d' % stat_base)
    k.e('v_lshlrev_b32 v6, 2, v0'); k.e('v_add_u32 v6, s30, v6')
    k.lds('ds_write_b32 v6, v4')

def acc(i, tt, ntl): return vr(ACC + (i * ntl + tt) * 4)

def core(k, KS, NT, MS, NB, tiles, after_prefetch=None, D=4):
    SLOT = MS * NT * 1024
    macros = []
    ks = 0
    while ks < KS:
        n = min(MS, KS - ks); macros.append((ks, n)); ks += n
    NM = len(macros)
    ntl = len(tiles)
    A = lambda n, i: vr(A_BASE + ((n % AR) * 2 + i) * 4)
    Bq = lambda g: vr(B_BASE + (g % NR) * 4)
    def ldA(n):
        if n % 4 == 0 and n > 0:
            k.e('s_add_u32 s24, s24, 4096'); k.e('s_add_u32 s25, s25, 4096')
        for i in range(2):
            k.vmem('buffer_load_dwordx4 %s, v1, s[8:11], s%d offen offset:%d' % (A(n, i), 24 + i, (n % 4) * 1024), ('A', n))
    def dma_pieces(m):
        ks0, n = macros[m]
        per = n * NT * 1024 // 8
        sreg = 27 if n == MS else 29
        assert n == MS or n * 2 == MS
        out = []
        o = 0
        while o < per:
            out.append((m, sreg, o, min(1024, per - o))); o += 1024
        return out
    def dma(m, sreg, o, n):
        ks0, _ = macros[m]
        if o % 4096 == 0:
            k.e('s_add_u32 m0, s%d, %d' % (sreg, (m % NB) * SLOT + o))
            k.e('s_add_u32 s28, s26, s%d' % sreg)
            k.e('s_add_u32 s28, s28, %d' % (ks0 * NT * 1024 + o))
        if n < 1024: k.setexec(n // 16)
        k.vmem('buffer_load_dwordx4 v1, s[8:11], s28 offen offset:%d lds' % (o % 4096), ('D', m))
        if n < 1024: k.e('s_mov_b64 exec, -1')
    na = 0
    for m in range(min(NB, NM)):
        for p in dma_pieces(m): dma(*p)
        for _ in range(4):
            if na < min(AR, KS): ldA(na); na += 1
    if after_prefetch: after_prefetch()
    NG = KS * ntl
    pend = []
    m_of = {}
    for m, (ks0, n) in enumerate(macros):
        for q in range(n): m_of[ks0 + q] = (m, q)
    def rd(g):
        n, tt = divmod(g, ntl)
        m, q = m_of[n]
        if q == 0 and tt == 0:
            k.wait_vm(('D', m))
            k.e('s_barrier')
            if m >= 2 and m - 2 + NB < NM: pend.extend(dma_pieces(m - 2 + NB))
        off = (m % NB) * SLOT + (q * NT + tiles[tt][0]) * 1024
        qq, o = divmod(off, 65536)
        k.lds('ds_read_b128 %s, v%d offset:%d' % (Bq(g), 1 + qq, o), ('B', g))
    k.wait_lg_all()
    for g in range(min(D, NG)): rd(g)
    step = max(1, (MS * ntl) // 6)
    for g in range(NG):
        n, tt = divmod(g, ntl)
        if g + D < NG: rd(g + D)
        if pend and g % step == 0: dma(*pend.pop(0))
        if tt == 0: k.wait_vm(('A', n))
        k.wait_lg(('B', g))
        for i in range(2):
            c = '0' if n == 0 else acc(i, tt, ntl)
            if tiles[tt][1] == 's': k.e('v_mfma_f32_16x16x32_bf16 %s, %s, %s, %s' % (acc(i, tt, ntl), A(n, i), Bq(g), c))
            else: k.e('v_mfma_f32_16x16x32_bf16 %s, %s, %s, %s' % (acc(i, tt, ntl), Bq(g), A(n, i), c))
        if tt == ntl - 1 and n + AR < KS: ldA(n + AR)
    assert not pend
    return SLOT * NB
```

```python
from lib import *
from k_core import *
from k_p0 import div_const
LOG2E = 1.4426950408889634

def phi_ops(k, v, t1, t2, sOne):
    k.e('v_mul_f32 v%d, %s, v%d' % (t1, f32(LOG2E), v))
    k.e('v_exp_f32 v%d, v%d' % (t1, t1))
    k.e('v_add_f32 v%d, %s, v%d' % (t2, f32(1.000001), v))
    k.e('v_cmp_lt_f32 vcc, 0, v%d' % v)
    k.e('v_add_f32 v%d, %s, v%d' % (t1, f32(1e-6), t1))
    k.e('v_cndmask_b32 v%d, v%d, v%d, vcc' % (v, t1, t2))

def fm_store_voff(k, vdst, vk, vr16, tmp):
    k.e('v_lshrrev_b32 v%d, 3, v%d' % (vdst, vk))
    k.e('v_lshlrev_b32 v%d, 8, v%d' % (vdst, vdst))
    k.e('v_lshl_add_u32 v%d, v%d, 4, v%d' % (vdst, vr16, vdst))
    k.e('v_and_b32 v%d, 4, v%d' % (tmp, vk))
    k.e('v_lshl_add_u32 v%d, v%d, 1, v%d' % (vdst, tmp, vdst))

def gen_k1():
    k = K('k1_kernel')
    k.start(256, [])
    wgmap_8x4(k)
    KS, NT, MS, NB = 18, 9, 4, 4
    SLOT = MS * NT * 1024
    STAT = NB * SLOT
    c8_setup(k, XF, 18, WQ, 162 * 1024, SLOT)
    k.e('v_and_b32 v14, 15, v0'); k.e('v_lshrrev_b32 v15, 4, v0')
    stats_load(k)
    k.e('s_mul_i32 s31, s45, 576'); k.e('s_add_u32 s31, s31, 0x%x' % CSQ)
    k.e('s_cmp_eq_u32 s49, 1'); k.e('s_cbranch_scc1 K1_Q')
    save = (list(k.vm), list(k.lg))
    k.e('v_lshlrev_b32 v12, 2, v14')
    for tt in range(6): k.vmem('buffer_load_dword v%d, v12, s[8:11], s31 offen offset:%d' % (184 + tt, (3 + tt) * 64), 'cs')
    core(k, KS, NT, MS, NB, [(3 + tt, 's') for tt in range(6)], after_prefetch=lambda: stats_finish(k, STAT))
    k.e('v_lshlrev_b32 v12, 4, v15'); k.e('v_add_u32 v12, s30, v12')
    for i in range(2):
        k.lds('ds_read_b128 %s, v12 offset:%d' % (vr(190 + 4 * i), 64 * i))
        k.lds('ds_read_b128 %s, v12 offset:%d' % (vr(198 + 4 * i), 128 + 64 * i))
    k.wait_lg_all(); k.wait_vm_all()
    for tt in range(6):
        for i in range(2):
            b = ACC + (i * 6 + tt) * 4
            for r in range(4):
                k.e('v_fma_f32 v%d, v%d, v%d, v%d' % (b + r, 190 + 4 * i + r, 184 + tt, b + r))
                k.e('v_mul_f32 v%d, v%d, v%d' % (b + r, b + r, 198 + 4 * i + r))
                if tt < 3: phi_ops(k, b + r, 4 + (r % 2) * 2, 5 + (r % 2) * 2, None)
            f = 16 + tt * 4 + 2 * i
            k.e('v_cvt_pk_bf16_f32 v%d, v%d, v%d' % (f, b, b + 1))
            k.e('v_cvt_pk_bf16_f32 v%d, v%d, v%d' % (f + 1, b + 2, b + 3))
    for q in range(4): k.e('v_mov_b32 v%d, 0x3f803f80' % (40 + q))
    for a in range(3):
        for b in range(3):
            k.e('v_mfma_f32_16x16x32_bf16 %s, %s, %s, 0' % (vr(44 + 4 * (3 * a + b)), vr(16 + 4 * a), vr(28 + 4 * b)))
        k.e('v_mfma_f32_16x16x32_bf16 %s, %s, %s, 0' % (vr(80 + 4 * a), vr(16 + 4 * a), vr(40)))
    k.e('s_barrier')
    k.e('s_mul_i32 s46, s48, 12288'); k.e('v_add_u32 v12, s46, v1')
    for T in range(12): k.lds('ds_write_b128 v12, %s offset:%d' % (vr(44 + 4 * T), T * 1024))
    k.wait_lg_all()
    k.e('s_branch K1_TAIL')
    k.label('K1_Q'); k.vm, k.lg = list(save[0]), list(save[1])
    k.e('v_lshlrev_b32 v12, 4, v15')
    for tt in range(3): k.vmem('buffer_load_dwordx4 %s, v12, s[8:11], s31 offen offset:%d' % (vr(184 + 4 * tt), tt * 64), 'cs')
    core(k, KS, NT, MS, NB, [(tt, 'f') for tt in range(3)], after_prefetch=lambda: stats_finish(k, STAT))
    k.e('v_lshlrev_b32 v12, 2, v14'); k.e('v_add_u32 v12, s30, v12')
    for i in range(2):
        k.lds('ds_read_b32 v%d, v12 offset:%d' % (200 + i, 64 * i))
        k.lds('ds_read_b32 v%d, v12 offset:%d' % (202 + i, 128 + 64 * i))
    k.e('s_lshr_b32 s46, s45, 2'); k.e('s_mul_i32 s46, s46, 160'); k.e('s_and_b32 s47, s45, 3'); k.e('s_mul_i32 s47, s47, 36'); k.e('s_add_u32 s46, s46, s47')
    k.e('v_lshlrev_b32 v13, 2, v15'); k.e('v_add_u32 v13, s46, v13')
    for tt in range(3):
        if tt: k.e('v_add_u32 v13, 16, v13')
        fm_store_voff(k, 204 + tt, 13, 14, 8)
    k.e('v_cmp_eq_u32 vcc, 0, v15'); k.e('v_mov_b32 v8, 0x%x' % OOB); k.e('v_cndmask_b32 v206, v8, v206, vcc')
    k.e('s_lshl_b32 s46, s44, 3'); k.e('s_lshl_b32 s47, s48, 1'); k.e('s_add_u32 s46, s46, s47')
    k.e('s_mul_i32 s46, s46, 20480'); k.e('s_add_u32 s46, s46, 0x%x' % PQ); k.e('s_add_u32 s47, s46, 20480')
    k.wait_lg_all(); k.wait_vm_all()
    for tt in range(3):
        for i in range(2):
            b = ACC + (i * 3 + tt) * 4
            for r in range(4):
                k.e('v_fma_f32 v%d, v%d, v%d, v%d' % (b + r, 200 + i, 184 + 4 * tt + r, b + r))
                k.e('v_mul_f32 v%d, v%d, v%d' % (b + r, b + r, 202 + i))
                phi_ops(k, b + r, 4 + (r % 2) * 2, 5 + (r % 2) * 2, None)
            f = 16 + (tt * 2 + i) * 2
            k.e('v_cvt_pk_bf16_f32 v%d, v%d, v%d' % (f, b, b + 1))
            k.e('v_cvt_pk_bf16_f32 v%d, v%d, v%d' % (f + 1, b + 2, b + 3))
            k.vmem('buffer_store_dwordx2 %s, v%d, s[8:11], s%d offen' % (vr(f, 2), 204 + tt, 46 + i))
    k.e('s_barrier')
    k.label('K1_TAIL'); k.vm = []; k.lg = []
    k.e('s_barrier')
    k.e('s_lshl_b32 s46, s22, 6')
    k.e('s_lshr_b32 s50, s45, 2'); k.e('s_mul_i32 s50, s50, 160'); k.e('s_and_b32 s47, s45, 3'); k.e('s_mul_i32 s47, s47, 36'); k.e('s_add_u32 s50, s50, s47')
    k.e('s_mul_i32 s51, s45, 36')
    k.e('s_lshl_b32 s52, s45, 1'); k.e('s_add_u32 s52, s52, 576')
    k.e('s_mov_b32 s53, 0x%x' % KVT)
    for rnd in range(2):
        B0 = 16 + rnd * 16
        u, q, dd, hh, row, d, e, T, lp, ga = [B0 + x for x in range(10)]
        k.e('v_add_u32 v%d, s46, v0' % u)
        if rnd: k.e('v_add_u32 v%d, 512, v%d' % (u, u))
        div_const(k, q, u, 18, 1023)
        k.e('v_mul_u32_u24 v%d, 18, v%d' % (dd, q)); k.e('v_sub_u32 v%d, v%d, v%d' % (dd, u, dd))
        k.e('v_cmp_le_u32 vcc, 19, v%d' % q); k.e('v_cndmask_b32 v%d, 0, 1, vcc' % hh)
        k.e('v_mul_u32_u24 v%d, 19, v%d' % (row, hh)); k.e('v_sub_u32 v%d, v%d, v%d' % (row, q, row))
        k.e('v_mad_u32_u24 v%d, v%d, 18, v%d' % (d, hh, dd))
        k.e('v_mad_u32_u24 v%d, v%d, 18, v%d' % (e, hh, row))
        k.e('v_cmp_eq_u32 vcc, 18, v%d' % row)
        k.e('v_lshrrev_b32 v%d, 4, v%d' % (T, d))
        k.e('v_lshrrev_b32 v%d, 4, v%d' % (lp, e))
        k.e('v_mad_u32_u24 v%d, v%d, 3, v%d' % (lp, T, lp))
        k.e('v_add_u32 v%d, 9, v%d' % (T, T))
        k.e('v_cndmask_b32 v%d, v%d, v%d, vcc' % (T, lp, T))
        k.e('v_and_b32 v%d, 15, v%d' % (lp, e))
        k.e('v_lshlrev_b32 v%d, 10, v%d' % (T, T)); k.e('v_lshl_add_u32 v%d, v%d, 4, v%d' % (T, lp, T))
        k.e('v_bfe_u32 v%d, v%d, 2, 2' % (lp, d)); k.e('v_lshl_add_u32 v%d, v%d, 8, v%d' % (T, lp, T))
        k.e('v_and_b32 v%d, 3, v%d' % (lp, d)); k.e('v_lshl_add_u32 v%d, v%d, 2, v%d' % (T, lp, T))
        k.e('v_min_u32 v%d, 12284, v%d' % (T, T))
        for w in range(4): k.lds('ds_read_b32 v%d, v%d offset:%d' % (B0 + 10 + w, T, w * 12288), ('r', rnd))
        k.e('v_add_u32 v%d, s51, v%d' % (e, e)); k.e('v_add_u32 v%d, s52, v%d' % (hh, hh)); k.e('v_cndmask_b32 v%d, v%d, v%d, vcc' % (e, e, hh))
        k.e('v_mul_u32_u24 v%d, 640, v%d' % (ga, e)); k.e('v_add3_u32 v%d, v%d, v%d, s50' % (ga, ga, d)); k.e('v_lshlrev_b32 v%d, 2, v%d' % (ga, ga))
        k.e('v_cmp_gt_u32 vcc, 684, v%d' % u); k.e('v_mov_b32 v%d, 0x%x' % (lp, OOB)); k.e('v_cndmask_b32 v%d, v%d, v%d, vcc' % (ga, lp, ga))
        k.wait_lg(('r', rnd))
        k.e('v_add_f32 v%d, v%d, v%d' % (B0 + 10, B0 + 10, B0 + 11)); k.e('v_add_f32 v%d, v%d, v%d' % (B0 + 12, B0 + 12, B0 + 13)); k.e('v_add_f32 v%d, v%d, v%d' % (B0 + 10, B0 + 10, B0 + 12))
        k.vmem('buffer_atomic_add_f32 v%d, v%d, s[8:11], s53 offen' % (B0 + 10, ga))
    k.finish()
    return k.text(208), ('k1_kernel', (256, 1, 1), (512, 1, 1), STAT + 2048)


def rowsum_g(k, vv, tmp):
    k.e('v_mov_b32 v%d, v%d' % (tmp, vv)); k.e('v_permlane32_swap_b32 v%d, v%d' % (vv, tmp)); k.e('v_add_f32 v%d, v%d, v%d' % (vv, vv, tmp))
    k.e('v_mov_b32 v%d, v%d' % (tmp, vv)); k.e('v_permlane16_swap_b32 v%d, v%d' % (vv, tmp)); k.e('v_add_f32 v%d, v%d, v%d' % (vv, vv, tmp))

def gen_k2():
    k = K('k2_kernel')
    k.start(256, [])
    k.e('s_and_b32 s3, s2, 7'); k.e('s_lshr_b32 s23, s2, 3')
    k.e('s_lshl_b32 s44, s3, 3'); k.e('s_and_b32 s45, s23, 7'); k.e('s_add_u32 s44, s44, s45'); k.e('s_lshr_b32 s45, s23, 3')
    k.e('v_lshlrev_b32 v1, 4, v0'); k.e('v_and_b32 v14, 15, v0'); k.e('v_lshrrev_b32 v15, 4, v0')
    PQB = 16; STG = 56; NSTG = 12; PK = 152; NUM = 160; DEN = 232
    k.e('s_mul_i32 s24, s44, %d' % (2 * 20480)); k.e('s_mul_i32 s46, s22, 5120'); k.e('s_add_u32 s24, s24, s46'); k.e('s_add_u32 s24, s24, 0x%x' % PQ)
    k.e('s_add_u32 s25, s24, 20480'); k.e('s_add_u32 s26, s24, 4096'); k.e('s_add_u32 s27, s25, 4096')
    k.e('v_mul_u32_u24 v2, 2560, v14'); k.e('v_lshl_add_u32 v2, v15, 5, v2')
    k.e('s_mul_i32 s28, s22, %d' % (144 * 2560 + 640)); k.e('s_add_u32 s28, s28, 0x%x' % KVT)
    k.e('v_and_b32 v3, 3, v14'); k.e('v_mul_u32_u24 v3, 2560, v3'); k.e('v_lshl_add_u32 v3, v15, 5, v3')
    k.e('s_mul_i32 s29, s22, %d' % (8 * 2560 + 640)); k.e('s_add_u32 s29, s29, 0x%x' % (KVT + 576 * 2560))
    k.e('s_lshl_b32 s46, s45, 2'); k.e('s_add_u32 s46, s46, s22'); k.e('s_mul_i32 s30, s46, %d' % (45 * 1024)); k.e('s_add_u32 s30, s30, 0x%x' % WO)
    for i in range(2):
        for blk in range(5):
            sr = (24 + i) if blk < 4 else (26 + i)
            k.vmem('buffer_load_dwordx4 %s, v1, s[8:11], s%d offen offset:%d' % (vr(PQB + (i * 5 + blk) * 4), sr, (blk % 4) * 1024), 'pq')
    frs = [('z', 0, b) for b in (0, 1, 2)] + [('z', 1, b) for b in (2, 3, 4)]
    for b in range(9):
        lo = max(b - 1, 0) >> 1; hi = min(b + 1, 8) >> 1
        frs += [('n', b, blk) for blk in range(lo, hi + 1)]
    def ldkv(n):
        kind, a, blk = frs[n]
        st = STG + (n % NSTG) * 8
        if kind == 'z':
            k.e('s_add_u32 s46, s29, %d' % (a * 4 * 2560 + blk * 128)); vo = 3
        else:
            k.e('s_add_u32 s46, s28, %d' % (a * 16 * 2560 + blk * 128)); vo = 2
        k.vmem('buffer_load_dwordx4 %s, v%d, s[8:11], s46 offen' % (vr(st), vo), ('kv', n))
        k.vmem('buffer_load_dwordx4 %s, v%d, s[8:11], s46 offen offset:16' % (vr(st + 4), vo), ('kv', n))
    nwo = [0]
    def ldwo():
        n = nwo[0]
        if n >= 45: return
        if n % 4 == 0 and n: k.e('s_add_u32 s30, s30, 4096')
        k.vmem('buffer_load_dwordx4 %s, v1, s[8:11], s30 offen offset:%d' % (ar(4 * n), (n % 4) * 1024), ('wo', n))
        nwo[0] += 1
    for n in range(NSTG): ldkv(n)
    for _ in range(22): ldwo()
    k.e('s_and_b32 s50, s22, 1'); k.e('s_lshr_b32 s51, s22, 1'); k.e('s_mul_i32 s52, s51, 5')
    k.e('s_mul_i32 s46, s45, 144'); k.e('s_lshl_b32 s47, s52, 4'); k.e('s_add_u32 s46, s46, s47')
    k.e('v_lshlrev_b32 v4, 2, v15'); k.e('v_add_u32 v4, s46, v4')
    for t in range(5):
        if t: k.e('v_add_u32 v4, 16, v4')
        fm_store_voff(k, 5 + t, 4, 14, 10)
    k.e('s_lshl_b32 s46, s44, 1'); k.e('s_add_u32 s46, s46, s50'); k.e('s_mul_i32 s53, s46, 18432'); k.e('s_add_u32 s53, s53, 0x%x' % XF)
    k.e('s_mov_b32 s32, 0xffff'); k.e('s_mov_b32 s33, 0'); k.e('s_mov_b32 s34, -1'); k.e('s_mov_b32 s35, 0'); k.e('s_mov_b32 s36, -1'); k.e('s_mov_b32 s37, 0xffff')
    seen = set()
    k.wait_vm('pq')
    for n, (kind, a, blk) in enumerate(frs):
        k.wait_vm(('kv', n))
        st = STG + (n % NSTG) * 8; pk = PK + (n % 2) * 4
        for q in range(4): k.e('v_cvt_pk_bf16_f32 v%d, v%d, v%d' % (pk + q, st + 2 * q, st + 2 * q + 1))
        if n + NSTG < len(frs): ldkv(n + NSTG)
        ldwo()
        for i in range(2):
            d = (DEN + (i * 2 + a) * 4) if kind == 'z' else (NUM + (i * 9 + a) * 4)
            c = vr(d) if d in seen else '0'; seen.add(d)
            k.e('v_mfma_f32_16x16x32_bf16 %s, %s, %s, %s' % (vr(d), vr(pk), vr(PQB + (i * 5 + blk) * 4), c))
    while nwo[0] < 45: ldwo()
    for t in range(5): k.vmem('buffer_load_dwordx2 %s, v%d, s[8:11], s53 offen' % (vr(STG + 2 * t, 2), 5 + t), 'res')
    for r in range(16):
        k.e('v_add_f32 v%d, %s, v%d' % (DEN + r, f32(1e-6), DEN + r)); k.e('v_rcp_f32 v%d, v%d' % (DEN + r, DEN + r))
    masks = {1: 's[32:33]', 2: 's[34:35]', 3: 's[36:37]'}
    for i in range(2):
        rd = lambda h: DEN + i * 8 + h
        for b in range(9):
            nb_ = NUM + (i * 9 + b) * 4
            for half, c in ((0, (b + 1) // 2), (1, b // 2)):
                if c == 0: sel = rd(b)
                elif c == 4: sel = rd(b - 1)
                else:
                    sel = 10 + half
                    k.e('v_cndmask_b32 v%d, v%d, v%d, %s' % (sel, rd(b), rd(b - 1), masks[c]))
                for r in (2 * half, 2 * half + 1): k.e('v_mul_f32 v%d, v%d, v%d' % (nb_ + r, nb_ + r, sel))
            of = PQB + (i * 5 + b // 2) * 4 + (b % 2) * 2
            k.e('v_cvt_pk_bf16_f32 v%d, v%d, v%d' % (of, nb_, nb_ + 1)); k.e('v_cvt_pk_bf16_f32 v%d, v%d, v%d' % (of + 1, nb_ + 2, nb_ + 3))
        of = PQB + (i * 5 + 4) * 4 + 2
        k.e('v_mov_b32 v%d, 0' % of); k.e('v_mov_b32 v%d, 0' % (of + 1))
    for q in range(5):
        for j in range(9):
            k.wait_vm(('wo', q * 9 + j))
            for i in range(2):
                d = NUM + (i * 9 + j) * 4
                k.e('v_mfma_f32_16x16x32_bf16 %s, %s, %s, %s' % (vr(d), ar(4 * (q * 9 + j)), vr(PQB + (i * 5 + q) * 4), vr(d) if q else '0'))
    k.e('s_mul_i32 s46, s22, 18432'); k.e('v_add_u32 v2, s46, v1')
    for T in range(18): k.lds('ds_write_b128 v2, %s offset:%d' % (vr(NUM + 4 * T), T * 1024))
    k.e('s_mul_i32 s46, s50, 9'); k.e('s_add_u32 s46, s46, s52'); k.e('s_lshl_b32 s46, s46, 10'); k.e('v_add_u32 v2, s46, v1')
    k.wait_lg_all()
    k.e('s_barrier')
    k.e('v_mov_b32 v12, 0'); k.e('v_mov_b32 v13, 0')
    k.wait_vm('res')
    for t in range(5):
        if t == 4:
            k.e('s_cmp_eq_u32 s51, 1'); k.e('s_cbranch_scc1 K2_FIN')
        b = 72 + (t % 2) * 16
        for w in range(4): k.lds('ds_read_b128 %s, v2 offset:%d' % (vr(b + 4 * w), w * 18432 + t * 1024))
        k.wait_lg_all()
        rs = STG + 2 * t
        for r in range(4):
            k.e('v_add_f32 v%d, v%d, v%d' % (b + r, b + r, b + 4 + r)); k.e('v_add_f32 v%d, v%d, v%d' % (b + 8 + r, b + 8 + r, b + 12 + r))
            if r % 2 == 0: k.e('v_lshlrev_b32 v%d, 16, v%d' % (b + 4 + r, rs + r // 2))
            else: k.e('v_and_b32 v%d, 0xffff0000, v%d' % (b + 4 + r, rs + r // 2))
            k.e('v_add_f32 v%d, v%d, v%d' % (b + r, b + r, b + 8 + r)); k.e('v_add_f32 v%d, v%d, v%d' % (b + r, b + r, b + 4 + r))
            k.e('v_add_f32 v12, v12, v%d' % (b + r)); k.e('v_fmac_f32 v13, v%d, v%d' % (b + r, b + r))
        o = 104 + 2 * t
        k.e('v_cvt_pk_bf16_f32 v%d, v%d, v%d' % (o, b, b + 1)); k.e('v_cvt_pk_bf16_f32 v%d, v%d, v%d' % (o + 1, b + 2, b + 3))
        k.vmem('buffer_store_dwordx2 %s, v%d, s[8:11], s53 offen' % (vr(o, 2), 5 + t))
    k.label('K2_FIN')
    rowsum_g(k, 12, 10); rowsum_g(k, 13, 10)
    k.e('s_lshl_b32 s46, s44, 1'); k.e('s_add_u32 s46, s46, s50'); k.e('s_lshl_b32 s46, s46, 10')
    k.e('s_lshl_b32 s47, s45, 1'); k.e('s_add_u32 s47, s47, s51'); k.e('s_lshl_b32 s47, s47, 3'); k.e('s_add_u32 s46, s46, s47'); k.e('s_add_u32 s46, s46, 0x%x' % XS)
    k.e('v_lshlrev_b32 v2, 6, v14')
    k.e('s_mov_b64 exec, 0xffff')
    k.vmem('buffer_store_dwordx2 v[12:13], v2, s[8:11], s46 offen')
    k.finish()
    return k.text(248, agprs=180), ('k2_kernel', (256, 1, 1), (256, 1, 1), 4 * 18432)


import math
GC0 = -2.0 * math.sqrt(2.0 / math.pi) * LOG2E
GC1 = GC0 * 0.044715
def gelu_ops(k, v, t, vC1):
    k.e('v_mul_f32 v%d, v%d, v%d' % (t, v, v))
    k.e('v_fmaak_f32 v%d, v%d, v%d, %s' % (t, t, vC1, f32(GC0)))
    k.e('v_mul_f32 v%d, v%d, v%d' % (t, t, v))
    k.e('v_exp_f32 v%d, v%d' % (t, t))
    k.e('v_add_f32 v%d, 1.0, v%d' % (t, t))
    k.e('v_rcp_f32 v%d, v%d' % (t, t))
    k.e('v_mul_f32 v%d, v%d, v%d' % (v, v, t))

def interleave(k, fns):
    chunks = []
    for fn in fns:
        n0 = len(k.lines); fn(); chunks.append(k.lines[n0:]); del k.lines[n0:]
    for i in range(max(len(c) for c in chunks)):
        for c in chunks:
            if i < len(c): k.lines.append(c[i])

def gen_k3():
    k = K('k3_kernel')
    k.start(256, [(9, 12, 256)])
    wgmap_8x4(k)
    KS, NT, MS, NB = 18, 18, 2, 4
    SLOT = MS * NT * 1024
    STAT = NB * SLOT
    c8_setup(k, XF, 18, WI, 324 * 1024, SLOT)
    k.e('v_and_b32 v14, 15, v0'); k.e('v_lshrrev_b32 v15, 4, v0')
    stats_load(k)
    k.e('s_mul_i32 s31, s45, 1152'); k.e('s_add_u32 s31, s31, 0x%x' % CSI)
    for q in range(4): k.e('v_mov_b32 v%d, 0' % (232 + q))
    k.e('s_lshl_b32 s46, s2, 13'); k.e('s_lshl_b32 s47, s22, 10'); k.e('s_add_u32 s46, s46, s47'); k.e('s_add_u32 s46, s46, 0x%x' % KVT)
    k.vmem('buffer_store_dwordx4 v[232:235], v1, s[8:11], s46 offen')
    k.e('s_cmp_eq_u32 s49, 1'); k.e('s_cbranch_scc1 K3_H1')
    save = (list(k.vm), list(k.lg))
    for h in range(2):
        if h == 1:
            k.label('K3_H1'); k.vm, k.lg = list(save[0]), list(save[1])
        n2 = 5 - h; n1 = 4 + h
        j2 = 5 * h; j1 = 4 * h
        tiles = [(9 * h + t, 's') for t in range(n2)] + [(9 * h + n2 + t, 'f') for t in range(n1)]
        k.e('v_lshlrev_b32 v12, 2, v14'); k.e('v_lshlrev_b32 v13, 4, v15')
        for t in range(n2): k.vmem('buffer_load_dword v%d, v12, s[8:11], s31 offen offset:%d' % (184 + t, (9 * h + t) * 64), 'cs')
        for t in range(n1): k.vmem('buffer_load_dwordx4 %s, v13, s[8:11], s31 offen offset:%d' % (vr(190 + 4 * t), (9 * h + n2 + t) * 64), 'cs')
        core(k, KS, NT, MS, NB, tiles, after_prefetch=lambda: stats_finish(k, STAT))
        k.e('v_lshlrev_b32 v12, 4, v15'); k.e('v_add_u32 v12, s30, v12')
        k.e('v_lshlrev_b32 v13, 2, v14'); k.e('v_add_u32 v13, s30, v13')
        for i in range(2):
            k.lds('ds_read_b128 %s, v12 offset:%d' % (vr(210 + 4 * i), 64 * i))
            k.lds('ds_read_b128 %s, v12 offset:%d' % (vr(218 + 4 * i), 128 + 64 * i))
            k.lds('ds_read_b32 v%d, v13 offset:%d' % (226 + i, 64 * i))
            k.lds('ds_read_b32 v%d, v13 offset:%d' % (228 + i, 128 + 64 * i))
        k.e('v_mov_b32 v230, %s' % f32(GC1))
        for q in range(16): k.e('v_mov_b32 v%d, 0' % (16 + q))
        k.wait_lg_all(); k.wait_vm_all()
        for t in range(n2):
            for i in range(2):
                b = ACC + (i * 9 + t) * 4
                def one(r, b=b, i=i, t=t):
                    k.e('v_fma_f32 v%d, v%d, v%d, v%d' % (b + r, 210 + 4 * i + r, 184 + t, b + r))
                    k.e('v_mul_f32 v%d, v%d, v%d' % (b + r, b + r, 218 + 4 * i + r))
                    gelu_ops(k, b + r, 4 + r, 230)
                    sq = 16 + (i * 4 + r) * 2
                    k.e('v_add_f32 v%d, v%d, v%d' % (sq, sq, b + r)); k.e('v_fmac_f32 v%d, v%d, v%d' % (sq + 1, b + r, b + r))
                interleave(k, [lambda r=r: one(r) for r in range(4)])
        for sh in (8, 4, 2, 1):
            for q in range(16): k.e('v_add_f32_dpp v%d, v%d, v%d row_ror:%d row_mask:0xf bank_mask:0xf' % (16 + q, 16 + q, 16 + q, sh))
        k.e('v_lshlrev_b32 v4, 5, v15'); k.e('v_add_u32 v4, s30, v4')
        k.e('s_mov_b32 exec_lo, 0x00010001'); k.e('s_mov_b32 exec_hi, 0x00010001')
        for i in range(2):
            k.lds('ds_write_b128 v4, %s offset:%d' % (vr(16 + 8 * i), 128 * i))
            k.lds('ds_write_b128 v4, %s offset:%d' % (vr(20 + 8 * i), 128 * i + 16))
        k.e('s_mov_b64 exec, -1')
        k.e('v_lshlrev_b32 v5, 2, v0'); k.e('v_add_u32 v4, s30, v5')
        k.lds('ds_read_b32 v6, v4')
        k.e('s_lshl_b32 s50, s44, 2'); k.e('s_add_u32 s50, s50, s48')
        k.e('s_lshl_b32 s51, s50, 13'); k.e('s_add_u32 s51, s51, 0x%x' % US)
        k.e('s_lshl_b32 s46, s45, 9'); k.e('s_add_u32 s46, s46, s51'); k.e('s_add_u32 s46, s46, %d' % (h * 256))
        k.e('s_lshl_b32 s52, s50, 2')
        k.wait_lg_all()
        k.vmem('buffer_store_dword v6, v5, s[8:11], s46 offen sc0 sc1')
        k.e('v_mov_b32 v7, 1'); k.e('v_mov_b32 v8, 0')
        k.wait_vm_all()
        k.setexec(1)
        k.vmem('buffer_atomic_add v7, v8, s[12:15], s52 offen sc1')
        k.e('s_mov_b64 exec, -1')
        k.e('s_lshl_b32 s46, s44, 4'); k.e('s_add_u32 s46, s46, s45'); k.e('s_lshl_b32 s46, s46, 3'); k.e('s_lshl_b32 s47, s48, 1'); k.e('s_add_u32 s46, s46, s47')
        k.e('s_mul_i32 s46, s46, 4608'); k.e('s_add_u32 s46, s46, 0x%x' % (Z1 + j1 * 512)); k.e('s_add_u32 s47, s46, 4608')
        k.e('v_lshlrev_b32 v9, 3, v0')
        for t in range(n1):
            for i in range(2):
                b = ACC + (i * 9 + n2 + t) * 4
                def one(r, b=b, i=i, t=t):
                    k.e('v_fma_f32 v%d, v%d, v%d, v%d' % (b + r, 226 + i, 190 + 4 * t + r, b + r))
                    k.e('v_mul_f32 v%d, v%d, v%d' % (b + r, b + r, 228 + i))
                    gelu_ops(k, b + r, 4 + r, 230)
                interleave(k, [lambda r=r: one(r) for r in range(4)])
                k.e('v_cvt_pk_bf16_f32 v%d, v%d, v%d' % (b, b, b + 1)); k.e('v_cvt_pk_bf16_f32 v%d, v%d, v%d' % (b + 1, b + 2, b + 3))
                k.vmem('buffer_store_dwordx2 %s, v9, s[8:11], s%d offen offset:%d' % (vr(b, 2), 46 + i, t * 512))
        k.e('s_mov_b32 s53, 0')
        k.label('K3_POLL%d' % h)
        k.e('s_add_u32 s53, s53, 1'); k.e('s_cmp_ge_u32 s53, 100000'); k.e('s_cbranch_scc1 K3_GO%d' % h)
        k.e('buffer_load_dword v7, v8, s[12:15], s52 offen sc0 sc1')
        k.wait_vm_all()
        k.e('v_readfirstlane_b32 s46, v7')
        k.e('s_cmp_ge_u32 s46, 32')
        k.e('s_cbranch_scc1 K3_GO%d' % h)
        k.e('s_sleep 2')
        k.e('s_branch K3_POLL%d' % h)
        k.label('K3_GO%d' % h)
        for q in range(8):
            if q == 4: k.e('s_add_u32 s51, s51, 4096')
            k.vmem('buffer_load_dwordx4 %s, v1, s[8:11], s51 offen offset:%d sc0 sc1' % (vr(16 + 4 * q), (q % 4) * 1024), ('us', q))
        for q in range(1, 8):
            k.wait_vm(('us', q))
            for c in range(4): k.e('v_add_f32 v%d, v%d, v%d' % (16 + c, 16 + c, 16 + 4 * q + c))
        for c in range(4): rowsum_g(k, 16 + c, 20 + c)
        for c in range(2):
            S = 16 + 2 * c; Q = S + 1
            k.e('v_mul_f32 v%d, %s, v%d' % (24 + c, f32(-1.0 / 2304), S))
            k.e('v_mul_f32 v%d, %s, v%d' % (Q, f32(1.0 / 2304), Q))
            k.e('v_mul_f32 v%d, v%d, v%d' % (S, 24 + c, 24 + c)); k.e('v_sub_f32 v%d, v%d, v%d' % (Q, Q, S)); k.e('v_max_f32 v%d, 0, v%d' % (Q, Q))
            k.e('v_add_f32 v%d, %s, v%d' % (Q, f32(1e-5), Q)); k.e('v_rsq_f32 v%d, v%d' % (26 + c, Q))
        k.e('v_lshlrev_b32 v4, 3, v14'); k.e('v_add_u32 v4, s30, v4')
        k.e('s_mov_b64 exec, 0xffff')
        k.lds('ds_write_b64 v4, v[24:25]'); k.lds('ds_write_b64 v4, v[26:27] offset:128')
        k.e('s_mov_b64 exec, -1')
        for i in range(2):
            k.lds('ds_read_b128 %s, v12 offset:%d' % (vr(210 + 4 * i), 64 * i))
            k.lds('ds_read_b128 %s, v12 offset:%d' % (vr(218 + 4 * i), 128 + 64 * i))
        k.e('v_lshrrev_b32 v4, 1, v15'); k.e('v_lshl_add_u32 v4, v4, 4, v14'); k.e('v_lshlrev_b32 v4, 4, v4'); k.e('v_and_b32 v5, 1, v15'); k.e('v_lshl_add_u32 v4, v5, 3, v4')
        k.e('s_lshl_b32 s46, s45, 6'); k.e('s_add_u32 s46, s46, s50'); k.e('s_mul_i32 s46, s46, 9216'); k.e('s_add_u32 s46, s46, 0x%x' % (Z2 + j2 * 1024)); k.e('s_add_u32 s47, s46, 4096')
        k.wait_lg_all()
        for t in range(n2):
            for i in range(2):
                b = ACC + (i * 9 + t) * 4
                for r in range(4):
                    k.e('v_add_f32 v%d, v%d, v%d' % (b + r, b + r, 210 + 4 * i + r)); k.e('v_mul_f32 v%d, v%d, v%d' % (b + r, b + r, 218 + 4 * i + r))
                k.e('v_cvt_pk_bf16_f32 v%d, v%d, v%d' % (b, b, b + 1)); k.e('v_cvt_pk_bf16_f32 v%d, v%d, v%d' % (b + 1, b + 2, b + 3))
                k.vmem('buffer_store_dwordx2 %s, v4, s[8:11], s%d offen offset:%d' % (vr(b, 2), 46 + t // 4, (t % 4) * 1024 + i * 512))
        if h == 0: k.e('s_endpgm')
    k.finish()
    return k.text(236), ('k3_kernel', (256, 1, 1), (512, 1, 1), STAT + 2048)

def gen_k4():
    k = K('k4_kernel')
    k.start(256, [(6, 12, 4096)])
    wgmap_8x4(k)
    KS, NT, MS, NB = 64, 9, 4, 4
    SLOT = MS * NT * 1024
    c8_setup(k, WS, 64, Z2, 576 * 1024, SLOT)
    k.e('v_and_b32 v14, 15, v0'); k.e('v_lshrrev_b32 v15, 4, v0')
    k.e('v_lshlrev_b32 v12, 1, v14'); k.e('s_lshl_b32 s46, s44, 8'); k.e('s_lshl_b32 s47, s48, 6'); k.e('s_add_u32 s46, s46, s47')
    for i in range(2): k.vmem('buffer_load_ushort v%d, v12, s[12:15], s46 offen offset:%d' % (4 + i, 32 * i), 'bias')
    k.e('s_cmp_eq_u32 s49, 1'); k.e('s_cbranch_scc1 K4_H1')
    save = (list(k.vm), list(k.lg))
    for h in range(2):
        if h == 1:
            k.label('K4_H1'); k.vm, k.lg = list(save[0]), list(save[1])
        nt = 5 - h; j0 = 5 * h
        k.e('s_lshl_b32 s46, s44, 4'); k.e('s_add_u32 s46, s46, s45'); k.e('s_lshl_b32 s46, s46, 3'); k.e('s_lshl_b32 s47, s48, 1'); k.e('s_add_u32 s46, s46, s47')
        k.e('s_mul_i32 s46, s46, 4608'); k.e('s_add_u32 s46, s46, 0x%x' % (Z1 + j0 * 512)); k.e('s_add_u32 s47, s46, 4608')
        k.e('v_lshlrev_b32 v9, 3, v0')
        for t in range(nt):
            for i in range(2): k.vmem('buffer_load_dwordx2 %s, v9, s[8:11], s%d offen offset:%d' % (vr(160 + (i * 5 + t) * 2, 2), 46 + i, t * 512), 'z1')
        core(k, KS, NT, MS, NB, [(j0 + t, 'f') for t in range(nt)])
        k.wait_vm_all()
        k.e('v_lshlrev_b32 v4, 16, v4'); k.e('v_lshlrev_b32 v5, 16, v5')
        k.e('s_mul_i32 s46, s45, 144'); k.e('s_add_u32 s46, s46, %d' % (16 * j0))
        k.e('v_lshlrev_b32 v13, 2, v15'); k.e('v_add_u32 v13, s46, v13')
        fm_store_voff(k, 12, 13, 14, 8)
        k.e('s_lshl_b32 s46, s44, 3'); k.e('s_lshl_b32 s47, s48, 1'); k.e('s_add_u32 s46, s46, s47'); k.e('s_mul_i32 s46, s46, %d' % (72 * 1024)); k.e('s_add_u32 s46, s46, 0x%x' % Y)
        k.e('s_add_u32 s47, s46, %d' % (72 * 1024))
        for t in range(nt):
            for i in range(2):
                b = ACC + (i * nt + t) * 4; z = 160 + (i * 5 + t) * 2
                for r in range(4):
                    if r % 2 == 0: k.e('v_lshlrev_b32 v%d, 16, v%d' % (16 + r, z + r // 2))
                    else: k.e('v_and_b32 v%d, 0xffff0000, v%d' % (16 + r, z + r // 2))
                    k.e('v_add_f32 v%d, v%d, v%d' % (b + r, b + r, 4 + i)); k.e('v_mul_f32 v%d, v%d, v%d' % (b + r, b + r, 16 + r))
                k.e('v_cvt_pk_bf16_f32 v%d, v%d, v%d' % (b, b, b + 1)); k.e('v_cvt_pk_bf16_f32 v%d, v%d, v%d' % (b + 1, b + 2, b + 3))
                k.vmem('buffer_store_dwordx2 %s, v12, s[8:11], s%d offen offset:%d' % (vr(b, 2), 46 + i, t * 512))
        if h == 0: k.e('s_endpgm')
    k.finish()
    return k.text(184), ('k4_kernel', (256, 1, 1), (512, 1, 1), NB * SLOT)

def gen_k5(final):
    name = 'k5b_kernel' if final else 'k5a_kernel'
    k = K(name)
    k.start(256, [(8, 12, 2048 * 576 * 2)])
    k.e('s_and_b32 s3, s2, 7'); k.e('s_lshr_b32 s23, s2, 3')
    k.e('s_lshl_b32 s44, s3, 2'); k.e('s_and_b32 s45, s23, 3'); k.e('s_add_u32 s44, s44, s45'); k.e('s_lshr_b32 s45, s23, 2')
    k.e('v_lshlrev_b32 v1, 4, v0'); k.e('v_and_b32 v14, 15, v0'); k.e('v_lshrrev_b32 v15, 4, v0')
    k.e('v_and_b32 v2, 7, v0'); k.e('v_lshl_add_u32 v2, v15, 3, v2'); k.e('v_lshlrev_b32 v2, 4, v2'); k.e('v_add_u32 v2, 4096, v2')
    RD = 5; FR = 16
    for i in range(4):
        k.e('s_add_u32 s46, s22, %d' % i); k.e('s_and_b32 s46, s46, 3'); k.e('s_lshl_b32 s47, s44, 2'); k.e('s_add_u32 s46, s46, s47')
        k.e('s_mul_i32 s46, s46, 72'); k.e('s_mul_i32 s47, s22, 18'); k.e('s_add_u32 s46, s46, s47'); k.e('s_lshl_b32 s46, s46, 10'); k.e('s_add_u32 s%d, s46, 0x%x' % (24 + i, Y))
    k.e('s_mul_i32 s46, s45, 72'); k.e('s_mul_i32 s47, s22, 18'); k.e('s_add_u32 s46, s46, s47'); k.e('s_mul_i32 s28, s46, 4608'); k.e('s_add_u32 s28, s28, 0x%x' % WOUT)
    F = lambda n, f: vr(FR + ((n % RD) * 9 + f) * 4)
    def ld(n):
        if n % 4 == 0 and n:
            for i in range(4): k.e('s_add_u32 s%d, s%d, 4096' % (24 + i, 24 + i))
        if n: k.e('s_add_u32 s28, s28, 4608')
        for j in range(5):
            if j < 4: k.vmem('buffer_load_dwordx4 %s, v1, s[8:11], s28 offen offset:%d' % (F(n, 4 + j), j * 1024), ('f', n, 4 + j))
            else: k.vmem('buffer_load_dwordx4 %s, v2, s[8:11], s28 offen' % F(n, 8), ('f', n, 8))
            if j < 4: k.vmem('buffer_load_dwordx4 %s, v1, s[8:11], s%d offen offset:%d' % (F(n, j), 24 + j, (n % 4) * 1024), ('f', n, j))
    for n in range(RD): ld(n)
    k.e('s_mul_i32 s46, s45, 72'); k.e('v_lshlrev_b32 v4, 2, v15'); k.e('v_add_u32 v4, s46, v4')
    for j in range(5):
        if j: k.e('v_add_u32 v4, 16, v4')
        fm_store_voff(k, 5 + j, 4, 14, 10)
        if final:
            k.e('v_mul_u32_u24 v%d, 1152, v14' % (200 + j)); k.e('v_lshl_add_u32 v%d, v4, 1, v%d' % (200 + j, 200 + j))
    k.e('v_cmp_gt_u32 vcc, 2, v15'); k.e('v_mov_b32 v10, 0x%x' % OOB); k.e('v_cndmask_b32 v9, v10, v9, vcc')
    if final: k.e('v_cndmask_b32 v204, v10, v204, vcc')
    k.e('s_lshl_b32 s50, s44, 2'); k.e('s_add_u32 s50, s50, s22')
    k.e('s_mul_i32 s53, s50, 18432'); k.e('s_add_u32 s54, s53, 0x%x' % XF)
    for j in range(5): k.vmem('buffer_load_dwordx2 %s, v%d, s[8:11], s54 offen' % (vr(206 + 2 * j, 2), 5 + j), 'res')
    AC = lambda i, j: ar((i * 5 + j) * 4)
    for n in range(18):
        for i in range(4):
            for j in range(5):
                k.wait_vm(('f', n, i)); k.wait_vm(('f', n, 4 + j))
                k.e('v_mfma_f32_16x16x32_bf16 %s, %s, %s, %s' % (AC(i, j), F(n, 4 + j), F(n, i), AC(i, j) if n else '0'))
        if n + RD < 18: ld(n + RD)
    for i in range(1, 4):
        k.e('s_add_u32 s46, s22, %d' % i); k.e('s_and_b32 s46, s46, 3'); k.e('s_mul_i32 s46, s46, 3'); k.e('s_add_u32 s46, s46, %d' % (i - 1)); k.e('s_mul_i32 s46, s46, 5120')
        k.e('v_add_u32 v3, s46, v1')
        for j in range(5): k.lds('ds_write_b128 v3, %s offset:%d' % (AC(i, j), j * 1024))
    k.e('s_mul_i32 s46, s22, 15360'); k.e('v_add_u32 v3, s46, v1')
    for r in range(20): k.e('v_accvgpr_read_b32 v%d, a%d' % (16 + r, r))
    k.wait_lg_all()
    k.e('s_barrier')
    for s_ in range(3):
        for j in range(5): k.lds('ds_read_b128 %s, v3 offset:%d' % (vr(36 + (s_ * 5 + j) * 4), (s_ * 5 + j) * 1024))
    k.e('v_mov_b32 v12, 0'); k.e('v_mov_b32 v13, 0')
    k.wait_lg_all(); k.wait_vm_all()
    for j in range(5):
        b = 16 + 4 * j; rs = 206 + 2 * j
        if j == 4: k.setexec(32)
        for r in range(4):
            k.e('v_add_f32 v%d, v%d, v%d' % (b + r, b + r, 36 + 4 * j + r)); k.e('v_add_f32 v%d, v%d, v%d' % (56 + 4 * j + r, 56 + 4 * j + r, 76 + 4 * j + r))
            if r % 2 == 0: k.e('v_lshlrev_b32 v%d, 16, v%d' % (100 + r, rs + r // 2))
            else: k.e('v_and_b32 v%d, 0xffff0000, v%d' % (100 + r, rs + r // 2))
            k.e('v_add_f32 v%d, v%d, v%d' % (b + r, b + r, 56 + 4 * j + r)); k.e('v_add_f32 v%d, v%d, v%d' % (b + r, b + r, 100 + r))
            if not final:
                k.e('v_add_f32 v12, v12, v%d' % (b + r)); k.e('v_fmac_f32 v13, v%d, v%d' % (b + r, b + r))
        k.e('v_cvt_pk_bf16_f32 v%d, v%d, v%d' % (b, b, b + 1)); k.e('v_cvt_pk_bf16_f32 v%d, v%d, v%d' % (b + 1, b + 2, b + 3))
        if final: k.vmem('buffer_store_dwordx2 %s, v%d, s[12:15], s53 offen' % (vr(b, 2), 200 + j))
        else: k.vmem('buffer_store_dwordx2 %s, v%d, s[8:11], s54 offen' % (vr(b, 2), 5 + j))
    if not final:
        k.e('s_mov_b64 exec, -1')
        rowsum_g(k, 12, 10); rowsum_g(k, 13, 10)
        k.e('s_lshl_b32 s46, s50, 10'); k.e('s_lshl_b32 s47, s45, 3'); k.e('s_add_u32 s46, s46, s47'); k.e('s_add_u32 s46, s46, 0x%x' % XS)
        k.e('v_lshlrev_b32 v2, 6, v14')
        k.e('s_mov_b64 exec, 0xffff')
        k.vmem('buffer_store_dwordx2 v[12:13], v2, s[8:11], s46 offen')
    k.finish()
    return k.text(216, agprs=80), (name, (256, 1, 1), (256, 1, 1), 4 * 15360)

PARTS = {'k1': gen_k1, 'k2': gen_k2, 'k3': gen_k3, 'k4': gen_k4, 'k5a': lambda: gen_k5(False), 'k5b': lambda: gen_k5(True)}
ORDER = ['p0', 'k1', 'k2', 'k3', 'k4', 'k5a', 'k1', 'k2', 'k3', 'k4', 'k5b']
```

```python
from lib import *

def div_const(k, vq, vx, d, maxv, stmp=41):
    for sh in range(16, 24):
        m = (1 << sh) // d + 1
        if m * maxv < (1 << 32) and m < (1 << 24) and all((x * m) >> sh == x // d for x in range(maxv + 1)):
            k.e('s_mov_b32 s%d, %d' % (stmp, m))
            k.e('v_mul_u32_u24 v%d, s%d, v%d' % (vq, stmp, vx))
            k.e('v_lshrrev_b32 v%d, %d, v%d' % (vq, sh, vq))
            return
    raise ValueError('no magic')

def gather_chunks(k, srd, nch, row_off, vcol, emit_store, colsum_v=None):
    def loads(i):
        for e in range(8):
            row_off(i, e)
            k.vmem('buffer_load_ushort v%d, v%d, s[%d:%d], s40 offen' % (64 + 8 * (i % 7) + e, vcol, srd, srd + 3), ('c', i))
    for i in range(min(7, nch)): loads(i)
    for i in range(nch):
        k.wait_vm(('c', i))
        k.wait_vm(('st', i - 4))
        p = 32 + 4 * (i % 4); r = 64 + 8 * (i % 7)
        for q in range(4):
            k.e('v_lshl_or_b32 v%d, v%d, 16, v%d' % (p + q, r + 2 * q + 1, r + 2 * q))
            if colsum_v is not None:
                k.e('v_dot2_f32_bf16 v%d, v%d, v31, v%d' % (colsum_v, p + q, colsum_v))
        emit_store(i, p)
        if i + 7 < nch: loads(i + 7)

def colsum_finish(k, vacc, dst_base):
    k.e('v_lshlrev_b32 v2, 2, v0')
    k.e('s_lshl_b32 s40, s22, 8')
    k.e('v_add_u32 v3, s40, v2')
    k.lds('ds_write_b32 v3, v%d' % vacc)
    k.wait_lg_all()
    k.e('s_barrier')
    k.e('s_cmp_lg_u32 s22, 0')
    k.e('s_cbranch_scc1 %s' % k.end)
    for w in range(8): k.lds('ds_read_b32 v%d, v2 offset:%d' % (8 + w, w * 256))
    k.wait_lg_all()
    for w in range(1, 8): k.e('v_add_f32 v8, v8, v%d' % (8 + w))
    k.e('s_lshl_b32 s40, s42, 8')
    k.e('s_add_u32 s40, s40, 0x%x' % dst_base)
    k.vmem('buffer_store_dword v8, v2, s[8:11], s40 offen')
    k.e('s_endpgm')

def gen_p0():
    k = K('p0_kernel')
    R = dict(WS=(0, 128), WI=(128, 200), WQ=(200, 236), WOUT=(236, 272), WO=(272, 281), XF=(281, 297), KZ=(297, 321), PZ=(321, 325))
    NWG = 325
    k.start(NWG, [(0, 12, 2048 * 576 * 2), (1, 16, 576 * 1728 * 2), (2, 24, 576 * 576 * 2), (4, 28, 576 * 4608 * 2), (5, 32, 2048 * 2048 * 2), (7, 36, 2304 * 576 * 2)])
    k.e('v_mov_b32 v31, 0x3f803f80')
    k.e('v_and_b32 v4, 15, v0')
    k.e('v_lshrrev_b32 v5, 4, v0')
    k.e('v_lshlrev_b32 v1, 4, v0')
    names = list(R.keys())
    for n in names[1:][::-1]:
        k.e('s_cmp_ge_u32 s2, %d' % R[n][0])
        k.e('s_cbranch_scc1 P0_%s' % n)
    k.vm = []
    k.e('v_lshlrev_b32 v2, 12, v4'); k.e('v_lshl_add_u32 v2, v5, 4, v2')
    k.e('s_lshl_b32 s40, s2, 16'); k.e('s_lshl_b32 s41, s22, 9'); k.e('s_add_u32 s40, s40, s41')
    k.e('s_lshl_b32 s42, s2, 16'); k.e('s_lshl_b32 s41, s22, 13'); k.e('s_add_u32 s42, s42, s41'); k.e('s_add_u32 s42, s42, 0x%x' % WS)
    for i in range(8): k.vmem('buffer_load_dwordx4 %s, v2, s[32:35], s40 offen offset:%d' % (vr(32 + 4 * i), i * 64), i)
    for i in range(8):
        k.wait_vm(i)
        if i == 4: k.e('s_add_u32 s42, s42, 4096')
        k.vmem('buffer_store_dwordx4 %s, v1, s[8:11], s42 offen offset:%d' % (vr(32 + 4 * i), (i % 4) * 1024))
    k.e('s_endpgm')
    k.label('P0_WI'); k.vm = []
    k.e('s_sub_u32 s42, s2, %d' % R['WI'][0])
    k.e('s_lshl_b32 s40, s42, 6'); k.e('v_add_u32 v6, s40, v0')
    div_const(k, 7, 6, 288, 4607)
    k.e('v_mul_u32_u24 v8, 288, v7'); k.e('v_sub_u32 v8, v6, v8'); k.e('v_lshrrev_b32 v8, 4, v8')
    k.e('v_lshlrev_b32 v9, 4, v8')
    k.e('v_add_u32 v10, 2304, v9')
    k.e('v_subrev_u32 v11, 80, v9'); k.e('v_cmp_le_u32 vcc, 5, v8'); k.e('v_cndmask_b32 v10, v10, v11, vcc')
    k.e('v_add_u32 v11, %d, v9' % (2304 - 64)); k.e('v_cmp_le_u32 vcc, 9, v8'); k.e('v_cndmask_b32 v10, v10, v11, vcc')
    k.e('v_subrev_u32 v11, 144, v9'); k.e('v_cmp_le_u32 vcc, 13, v8'); k.e('v_cndmask_b32 v10, v10, v11, vcc')
    k.e('v_mul_u32_u24 v11, 144, v7'); k.e('v_add3_u32 v10, v10, v11, v4'); k.e('v_lshlrev_b32 v10, 1, v10')
    k.e('v_mul_u32_u24 v11, 324, v7'); k.e('v_add_u32 v11, v11, v8'); k.e('v_lshlrev_b32 v11, 10, v11'); k.e('v_lshl_add_u32 v11, v4, 4, v11')
    k.e('v_mov_b32 v12, 0')
    k.e('s_mul_i32 s43, s22, %d' % (72 * 9216)); k.e('s_mul_i32 s44, s22, 9')
    def ro(i, e): k.e('s_add_u32 s40, s43, %d' % ((8 * i + e) * 9216))
    def st(i, p):
        k.e('s_add_u32 s45, s44, %d' % i); k.e('s_lshr_b32 s46, s45, 2'); k.e('s_and_b32 s45, s45, 3')
        k.e('s_mul_i32 s46, s46, %d' % (18 * 1024)); k.e('s_lshl_b32 s45, s45, 8'); k.e('s_add_u32 s45, s45, s46'); k.e('s_add_u32 s45, s45, 0x%x' % WI)
        k.vmem('buffer_store_dwordx4 %s, v11, s[8:11], s45 offen' % vr(p), ('st', i))
    gather_chunks(k, 28, 9, ro, 10, st, colsum_v=12)
    colsum_finish(k, 12, CSI)
    k.label('P0_WQ'); k.vm = []; k.lg = []
    k.e('s_sub_u32 s42, s2, %d' % R['WQ'][0])
    k.e('s_lshl_b32 s40, s42, 6'); k.e('v_add_u32 v6, s40, v0')
    div_const(k, 7, 6, 144, 2303)
    k.e('v_mul_u32_u24 v8, 144, v7'); k.e('v_sub_u32 v8, v6, v8'); k.e('v_lshrrev_b32 v8, 4, v8')
    div_const(k, 9, 8, 3, 8)
    k.e('v_mul_u32_u24 v10, 3, v9'); k.e('v_sub_u32 v10, v8, v10'); k.e('v_lshl_add_u32 v10, v10, 4, v4')
    k.e('v_cmp_gt_u32 vcc, 36, v10')
    k.e('v_mul_u32_u24 v9, 576, v9'); k.e('v_mul_u32_u24 v11, 36, v7'); k.e('v_add3_u32 v10, v10, v9, v11'); k.e('v_lshlrev_b32 v10, 1, v10')
    k.e('v_mov_b32 v9, 0x%x' % OOB); k.e('v_cndmask_b32 v10, v9, v10, vcc')
    k.e('v_mul_u32_u24 v11, 162, v7'); k.e('v_add_u32 v11, v11, v8'); k.e('v_lshlrev_b32 v11, 10, v11'); k.e('v_lshl_add_u32 v11, v4, 4, v11')
    k.e('v_mov_b32 v12, 0')
    k.e('s_mul_i32 s43, s22, %d' % (72 * 3456)); k.e('s_mul_i32 s44, s22, 9')
    def ro(i, e): k.e('s_add_u32 s40, s43, %d' % ((8 * i + e) * 3456))
    def st(i, p):
        k.e('s_add_u32 s45, s44, %d' % i); k.e('s_lshr_b32 s46, s45, 2'); k.e('s_and_b32 s45, s45, 3')
        k.e('s_mul_i32 s46, s46, %d' % (9 * 1024)); k.e('s_lshl_b32 s45, s45, 8'); k.e('s_add_u32 s45, s45, s46'); k.e('s_add_u32 s45, s45, 0x%x' % WQ)
        k.vmem('buffer_store_dwordx4 %s, v11, s[8:11], s45 offen' % vr(p), ('st', i))
    gather_chunks(k, 16, 9, ro, 10, st, colsum_v=12)
    colsum_finish(k, 12, CSQ)
    k.label('P0_WOUT'); k.vm = []; k.lg = []
    k.e('s_sub_u32 s42, s2, %d' % R['WOUT'][0])
    k.e('s_mul_i32 s47, s42, 57'); k.e('s_lshr_b32 s47, s47, 9')
    k.e('s_mul_i32 s40, s47, 9'); k.e('s_sub_u32 s42, s42, s40')
    k.e('s_lshl_b32 s40, s42, 6'); k.e('v_add_u32 v6, s40, v0')
    div_const(k, 7, 6, 72, 575)
    k.e('v_mul_u32_u24 v8, 72, v7'); k.e('v_sub_u32 v8, v6, v8')
    k.e('v_lshlrev_b32 v10, 1, v6')
    k.e('v_lshrrev_b32 v9, 4, v8'); k.e('v_and_b32 v8, 15, v8')
    k.e('s_mov_b32 s40, %d' % (72 * 4608)); k.e('v_mul_lo_u32 v11, s40, v7')
    k.e('v_lshl_add_u32 v11, v9, 10, v11'); k.e('v_lshl_add_u32 v11, v8, 4, v11')
    k.e('v_cmp_gt_u32 vcc, 4, v9'); k.e('v_mov_b32 v13, 128'); k.e('v_mov_b32 v14, 256'); k.e('v_cndmask_b32 v13, v13, v14, vcc')
    k.e('s_mul_i32 s44, s47, 72'); k.e('s_mul_i32 s40, s22, 9'); k.e('s_add_u32 s44, s44, s40')
    k.e('s_mul_i32 s43, s44, %d' % (8 * 1152))
    def ro(i, e): k.e('s_add_u32 s40, s43, %d' % ((8 * i + e) * 1152))
    def st(i, p):
        k.e('s_add_u32 s45, s44, %d' % i); k.e('s_lshr_b32 s46, s45, 2'); k.e('s_and_b32 s45, s45, 3')
        k.e('v_mad_u32_u24 v%d, s45, v13, v11' % (16 + i % 4))
        k.e('s_mul_i32 s46, s46, 4608'); k.e('s_add_u32 s46, s46, 0x%x' % WOUT)
        k.vmem('buffer_store_dwordx4 %s, v%d, s[8:11], s46 offen' % (vr(p), 16 + i % 4), ('st', i))
    gather_chunks(k, 36, 9, ro, 10, st)
    k.e('s_endpgm')
    k.label('P0_WO'); k.vm = []; k.lg = []
    k.e('s_sub_u32 s42, s2, %d' % R['WO'][0])
    k.e('s_lshl_b32 s40, s42, 6'); k.e('v_add_u32 v6, s40, v0')
    div_const(k, 7, 6, 144, 575)
    k.e('v_mul_u32_u24 v8, 144, v7'); k.e('v_sub_u32 v8, v6, v8'); k.e('v_lshrrev_b32 v8, 4, v8')
    k.e('v_lshlrev_b32 v10, 1, v6')
    k.e('v_mul_u32_u24 v11, 180, v7'); k.e('v_add_u32 v11, v11, v8'); k.e('v_lshlrev_b32 v11, 10, v11'); k.e('v_lshl_add_u32 v11, v4, 4, v11')
    k.e('s_lshr_b32 s47, s22, 1')
    k.e('s_and_b32 s44, s22, 1'); k.e('s_mul_i32 s44, s44, 10')
    def qg(i):
        k.e('s_add_u32 s45, s44, %d' % i); k.e('s_lshr_b32 s46, s45, 2'); k.e('s_and_b32 s45, s45, 3')
    def ro(i, e):
        if e == 0:
            qg(i)
            k.e('s_mul_i32 s43, s47, 144'); k.e('s_lshl_b32 s48, s46, 5'); k.e('s_add_u32 s43, s43, s48'); k.e('s_lshl_b32 s48, s45, 2'); k.e('s_add_u32 s43, s43, s48')
            k.e('s_mul_i32 s43, s43, 1152')
        k.e('s_add_u32 s40, s43, %d' % (((e % 4) + 16 * (e // 4)) * 1152))
    def st(i, p):
        qg(i)
        k.e('s_mul_i32 s48, s47, 5'); k.e('s_add_u32 s48, s48, s46'); k.e('s_mul_i32 s48, s48, 9216'); k.e('s_lshl_b32 s45, s45, 8'); k.e('s_add_u32 s48, s48, s45'); k.e('s_add_u32 s48, s48, 0x%x' % WO)
        k.vmem('buffer_store_dwordx4 %s, v11, s[8:11], s48 offen' % vr(p), ('st', i))
    gather_chunks(k, 24, 10, ro, 10, st)
    k.e('s_endpgm')
    k.label('P0_XF'); k.vm = []; k.lg = []
    k.e('s_sub_u32 s42, s2, %d' % R['XF'][0]); k.e('s_lshl_b32 s42, s42, 3'); k.e('s_add_u32 s42, s42, s22')
    k.e('v_mul_u32_u24 v2, 1152, v4'); k.e('v_lshl_add_u32 v2, v5, 4, v2')
    k.e('s_mul_i32 s40, s42, %d' % (16 * 1152))
    k.e('s_add_u32 s43, s40, 0x%x' % XF)
    for i in range(18): k.vmem('buffer_load_dwordx4 %s, v2, s[12:15], s40 offen offset:%d' % (vr(32 + 4 * i), i * 64), i)
    k.e('v_mov_b32 v8, 0'); k.e('v_mov_b32 v9, 0')
    for i in range(18):
        k.wait_vm(i)
        if i % 4 == 0 and i: k.e('s_add_u32 s43, s43, 4096')
        k.vmem('buffer_store_dwordx4 %s, v1, s[8:11], s43 offen offset:%d' % (vr(32 + 4 * i), (i % 4) * 1024))
        for q in range(4):
            k.e('v_dot2_f32_bf16 v8, v%d, v31, v8' % (32 + 4 * i + q))
            k.e('v_dot2_f32_bf16 v9, v%d, v%d, v9' % (32 + 4 * i + q, 32 + 4 * i + q))
    for vv in (8, 9):
        k.e('v_mov_b32 v10, v%d' % vv); k.e('v_permlane32_swap_b32 v%d, v10' % vv); k.e('v_add_f32 v%d, v%d, v10' % (vv, vv))
        k.e('v_mov_b32 v10, v%d' % vv); k.e('v_permlane16_swap_b32 v%d, v10' % vv); k.e('v_add_f32 v%d, v%d, v10' % (vv, vv))
    k.e('v_cmp_eq_u32 vcc, 0, v5')
    k.e('v_cndmask_b32 v8, 0, v8, vcc'); k.e('v_cndmask_b32 v9, 0, v9, vcc'); k.e('v_mov_b32 v10, 0'); k.e('v_mov_b32 v11, 0')
    k.e('v_lshlrev_b32 v2, 6, v4'); k.e('v_lshl_add_u32 v2, v5, 4, v2')
    k.e('s_lshl_b32 s40, s42, 10'); k.e('s_add_u32 s40, s40, 0x%x' % XS)
    k.vmem('buffer_store_dwordx4 v[8:11], v2, s[8:11], s40 offen')
    k.e('s_endpgm')
    k.label('P0_KZ'); k.vm = []
    k.e('s_sub_u32 s42, s2, %d' % R['KZ'][0]); k.e('s_lshl_b32 s42, s42, 16'); k.e('s_lshl_b32 s40, s22, 13'); k.e('s_add_u32 s42, s42, s40'); k.e('s_add_u32 s42, s42, 0x%x' % KVT)
    for q in range(4): k.e('v_mov_b32 v%d, 0' % (8 + q))
    for i in range(8):
        if i == 4: k.e('s_add_u32 s42, s42, 4096')
        k.vmem('buffer_store_dwordx4 v[8:11], v1, s[8:11], s42 offen offset:%d' % ((i % 4) * 1024))
    k.e('s_endpgm')
    k.label('P0_PZ'); k.vm = []
    k.e('s_sub_u32 s42, s2, %d' % R['PZ'][0]); k.e('s_lshl_b32 s42, s42, 3'); k.e('s_add_u32 s42, s42, s22')
    k.e('s_mul_i32 s42, s42, %d' % (4 * 20 * 1024)); k.e('s_add_u32 s42, s42, 0x%x' % (PQ + 4 * 1024 + 512))
    k.e('v_lshrrev_b32 v2, 5, v0'); k.e('v_mul_u32_u24 v2, 5120, v2'); k.e('v_and_b32 v3, 31, v0'); k.e('v_lshl_add_u32 v2, v3, 4, v2')
    for q in range(4): k.e('v_mov_b32 v%d, 0' % (8 + q))
    for i in range(8):
        k.e('s_add_u32 s40, s42, %d' % (i * 10240))
        k.vmem('buffer_store_dwordx4 v[8:11], v2, s[8:11], s40 offen')
    k.finish()
    return k.text(128), ('p0_kernel', (NWG, 1, 1), (512, 1, 1), 2048)
```

```python
XF   = 0x0
XS   = 0x240000
WQ   = 0x280000
CSQ  = 0x510000
PQ   = 0x520000
KVT  = 0x7A0000
WO   = 0xAA0000
WI   = 0xB60000
CSI  = 0x1070000
Z2   = 0x1080000
Z1   = 0x1980000
WS   = 0x2280000
Y    = 0x2A80000
WOUT = 0x3380000
US   = 0x3610000
WS_BYTES = 0x10000000
KVT_BYTES = 608 * 640 * 4
OOB = 0x7ff00000
```

```python
from asmlib import K as K0, assemble_file
import hz
from layout import *

class K(K0):
    def text(self, vgprs, agprs=0, sgprs=102, wgy=False):
        self.lines = hz.fix(self.lines)
        return K0.text(self, vgprs, agprs, sgprs, wgy)
    def srd(self, d, lo, size):
        self.e('s_mov_b32 s%d, s%d' % (d, lo))
        self.e('s_and_b32 s%d, s%d, 0xffff' % (d + 1, lo + 1))
        self.e('s_mov_b32 s%d, 0x%x' % (d + 2, size))
        self.e('s_mov_b32 s%d, 0x00020000' % (d + 3))
    def start(self, nwg, ptrs):
        self.end = 'END_' + self.name
        self.e('s_cmp_ge_u32 s2, %d' % nwg)
        self.e('s_cbranch_scc1 %s' % self.end)
        allp = [(10, 8, WS_BYTES)] + list(ptrs)
        for i, (slot, d, size) in enumerate(allp):
            self.e('s_load_dwordx2 s[%d:%d], s[0:1], %d' % (80 + 2 * i, 81 + 2 * i, slot * 8))
        self.e('v_lshrrev_b32 v1, 6, v0')
        self.e('v_readfirstlane_b32 s22, v1')
        self.e('v_and_b32 v0, 63, v0')
        self.e('s_waitcnt lgkmcnt(0)')
        for i, (slot, d, size) in enumerate(allp):
            self.srd(d, 80 + 2 * i, size)
    def setexec(self, lanes):
        m = (1 << lanes) - 1
        self.e('s_mov_b32 exec_lo, 0x%x' % (m & 0xffffffff)); self.e('s_mov_b32 exec_hi, 0x%x' % (m >> 32))
    def finish(self):
        self.label(self.end)

def vr(b, n=4): return 'v[%d:%d]' % (b, b + n - 1)
def ar(b, n=4): return 'a[%d:%d]' % (b, b + n - 1)
def f32(x):
    import struct
    return '0x%08x' % struct.unpack('<I', struct.pack('<f', x))[0]
```

```python
import sys
from lib import *
import k_p0
HDR = open('interleave_layers__linear_attn_block__mixer_gmlp__prompt.s.ref').read().split('\n')
hdr = [l[2:] for l in HDR if l.startswith(';') and '@launch' not in l and 'Override' not in l and 'grid=ceil' not in l]
def build(parts, order, out):
    ks = {}
    for name, fn in parts.items(): ks[name] = fn()
    launches = [ks[n][1] for n in order]
    texts = [ks[n][0] for n in parts]
    open(out, 'w').write(assemble_file(hdr, launches, texts))
if __name__ == '__main__':
    parts = {'p0': k_p0.gen_p0}
    order = ['p0']
    try:
        import k_main
        parts.update(k_main.PARTS); order = k_main.ORDER
    except ImportError: pass
    build(parts, order, sys.argv[1] if len(sys.argv) > 1 else 'main.s')
```

```python
class K:
    def __init__(self, name):
        self.name = name
        self.lines = []
        self.vm = []
        self.lg = []
        self.nlabel = 0
    def e(self, s):
        self.lines.append('    ' + s)
    def c(self, s):
        self.lines.append('    ; ' + s)
    def label(self, l):
        self.lines.append(l + ':')
    def newlabel(self, base='L'):
        self.nlabel += 1
        return '%s_%s_%d' % (base, self.name, self.nlabel)
    def vmem(self, s, tag=None):
        if len(self.vm) >= 62:
            self.e('s_waitcnt vmcnt(56)'); self.vm = self.vm[-56:]
        self.e(s); self.vm.append(tag)
    def lds(self, s, tag=None):
        if len(self.lg) >= 15:
            self.e('s_waitcnt lgkmcnt(12)'); self.lg = self.lg[-12:]
        self.e(s); self.lg.append(tag)
    def wait_vm(self, tag):
        if tag not in self.vm: return
        idx = max(i for i, t in enumerate(self.vm) if t == tag)
        n = len(self.vm) - 1 - idx
        assert n <= 63
        self.e('s_waitcnt vmcnt(%d)' % n)
        self.vm = self.vm[idx + 1:]
    def wait_lg(self, tag):
        if tag not in self.lg: return
        idx = max(i for i, t in enumerate(self.lg) if t == tag)
        n = len(self.lg) - 1 - idx
        assert n <= 15, n
        self.e('s_waitcnt lgkmcnt(%d)' % n)
        self.lg = self.lg[idx + 1:]
    def wait_all(self):
        self.e('s_waitcnt vmcnt(0) lgkmcnt(0)'); self.vm = []; self.lg = []
    def wait_vm_all(self):
        self.e('s_waitcnt vmcnt(0)'); self.vm = []
    def wait_lg_all(self):
        self.e('s_waitcnt lgkmcnt(0)'); self.lg = []
    def text(self, vgprs, agprs=0, sgprs=102, wgy=False):
        acc = (vgprs + 3) // 4 * 4
        nfv = acc + agprs if agprs else vgprs
        body = '\n'.join(self.lines)
        s = '.text\n.globl %s\n.p2align 8\n.type %s,@function\n%s:\n%s\n    s_endpgm\n' % (self.name, self.name, self.name, body)
        d = '.section .rodata,"a"\n.p2align 6\n.amdhsa_kernel %s\n' % self.name
        d += '  .amdhsa_next_free_vgpr %d\n  .amdhsa_next_free_sgpr %d\n  .amdhsa_accum_offset %d\n' % (nfv, sgprs, acc)
        d += '  .amdhsa_group_segment_fixed_size 0\n  .amdhsa_kernarg_size 88\n  .amdhsa_user_sgpr_count 2\n  .amdhsa_user_sgpr_kernarg_segment_ptr 1\n  .amdhsa_system_sgpr_workgroup_id_x 1\n'
        if wgy: d += '  .amdhsa_system_sgpr_workgroup_id_y 1\n'
        d += '.end_amdhsa_kernel\n'
        return s, d

def assemble_file(header_comments, launches, kernels):
    out = []
    for h in header_comments: out.append('; ' + h)
    for (n, g, b, l) in launches:
        out.append('; @launch kernel=%s grid=(%d,%d,%d) block=(%d,%d,%d) lds=%d' % (n, g[0], g[1], g[2], b[0], b[1], b[2], l))
    out.append('.amdgcn_target "amdgcn-amd-amdhsa--gfx950"')
    out.append('.macro MF a, b, c, d\nv_mfma_f32_16x16x32_bf16 \\a, \\b, \\c, \\d\n.endm')
    for t, d in kernels:
        out.append('\n'.join(l.strip().replace('v_mfma_f32_16x16x32_bf16 ', 'MF ').replace(', ', ',') for l in t.split('\n')))
    out.append('CODE_END:')
    for t, d in kernels: out.append(d)
    return '\n'.join(out) + '\n'
```

```python
from lib import *
BR = 16; NR = 8; D = 6

def stats_load(k, xs):
    k.e('v_and_b32 v12, 31, v0'); k.e('v_lshlrev_b32 v12, 3, v12'); k.e('v_lshrrev_b32 v13, 5, v0'); k.e('v_lshl_add_u32 v12, v13, 16, v12')
    k.e('s_lshl_b32 s46, s44, 10'); k.e('s_lshl_b32 s47, s22, 8'); k.e('s_add_u32 s46, s46, s47'); k.e('s_add_u32 s46, s46, 0x%x' % xs)
    for q in range(4):
        if q: k.e('s_add_u32 s46, s46, 16384')
        k.vmem('buffer_load_dwordx2 v[%d:%d], v12, s[8:11], s46 offen sc1' % (4 + 2 * q, 5 + 2 * q), 'xs')

def stats_finish(k, stat_base, n=576.0):
    k.wait_vm('xs')
    k.e('v_add_f32 v4, v4, v6'); k.e('v_add_f32 v8, v8, v10'); k.e('v_add_f32 v4, v4, v8')
    k.e('v_add_f32 v5, v5, v7'); k.e('v_add_f32 v9, v9, v11'); k.e('v_add_f32 v5, v5, v9')
    for vv in (4, 5):
        k.e('v_mov_b32 v6, v%d' % vv); k.e('v_permlane32_swap_b32 v%d, v6' % vv); k.e('v_add_f32 v%d, v%d, v6' % (vv, vv))
    k.e('v_mul_f32 v4, %s, v4' % f32(-1.0 / n))
    k.e('v_mul_f32 v5, %s, v5' % f32(1.0 / n))
    k.e('v_mul_f32 v6, v4, v4'); k.e('v_sub_f32 v5, v5, v6'); k.e('v_max_f32 v5, 0, v5')
    k.e('v_add_f32 v5, %s, v5' % f32(1e-5)); k.e('v_rsq_f32 v5, v5')
    k.e('v_cmp_gt_u32 vcc, 32, v0'); k.e('v_cndmask_b32 v4, v5, v4, vcc')
    k.e('s_lshl_b32 s30, s22, 8'); k.e('s_add_u32 s30, s30, %d' % stat_base)
    k.e('v_lshlrev_b32 v6, 2, v0'); k.e('v_add_u32 v6, s30, v6')
    k.lds('ds_write_b32 v6, v4')

class H4:
    def __init__(self, k, xf, wbase, panel_frags, passes, macros, C, burst=14, pace=2):
        self.k = k; self.passes = passes; self.C = C; self.burst = burst; self.pace = pace
        self.groups = [(p, ks, t) for p, (nt, o, a) in enumerate(passes) for ks in range(18) for t in range(nt)]
        self.NG = len(self.groups)
        self.mstart = []; s = 0
        for g in macros: self.mstart.append(s); s += g
        assert s >= self.NG and all(g % 4 == 0 for g in macros)
        self.tot = s
        self.macro_of = {}
        for m, st in enumerate(self.mstart):
            for f in range(st, st + macros[m]): self.macro_of[f] = m
        k.e('v_add_u32 v2, 65536, v1'); k.e('v_add_u32 v3, 131072, v1')
        k.e('s_lshl_b32 s25, s22, 10')
        k.e('s_mul_i32 s26, s45, %d' % (panel_frags * 1024)); k.e('s_add_u32 s26, s26, 0x%x' % wbase); k.e('s_add_u32 s26, s26, s25')
        k.e('v_add_u32 v253, 4096, v1'); k.e('v_add_u32 v254, 8192, v1'); k.e('v_add_u32 v255, 12288, v1')
        k.e('s_lshl_b32 s46, s44, 3'); k.e('s_lshl_b32 s47, s22, 1'); k.e('s_add_u32 s46, s46, s47')
        k.e('s_mul_i32 s24, s46, 18432'); k.e('s_add_u32 s24, s24, 0x%x' % xf)
        k.e('s_add_u32 s27, s24, 18432'); k.e('s_add_u32 s29, s24, 16384'); k.e('s_add_u32 s21, s27, 16384')
        self.dbase = -1
        ops = []
        for q in range(0, self.tot, 4): ops.append((max(self.mstart[self.macro_of[q]] - D, 0), 0, ('d', q)))
        nt0 = passes[0][0]
        for ks in range(18):
            for i in range(2): ops.append((ks * nt0, 1, ('a', ks, i)))
        ops.sort(key=lambda x: (x[0], x[1]))
        self.dops = [o for o in ops if o[2][0] == 'd']
        self.ops = ops
        self.limit = min(C, 96)
    def issue(self, op):
        k = self.k
        if op[0] == 'd':
            q = op[1]
            k.e('s_add_u32 m0, s25, %d' % ((q % self.C) * 1024))
            if self.dbase != q // 16:
                self.dbase = q // 16; k.e('s_add_u32 s28, s26, %d' % (q // 16 * 16384))
            k.vmem('buffer_load_dwordx4 v%d, s[8:11], s28 offen lds' % [1, 253, 254, 255][(q % 16) // 4], ('D', self.macro_of[q]))
        else:
            _, ks, i = op
            sreg = [[24, 27], [29, 21]][ks // 16][i]
            k.vmem('buffer_load_dwordx4 %s, v%d, s[8:11], s%d offen offset:%d sc1' % (ar((ks * 2 + i) * 4), [1, 253, 254, 255][(ks % 16) // 4], sreg, (ks % 4) * 1024), ('A', ks))
    def pump(self, n=1, weights_only=False, upto=None):
        done = 0; i = 0
        while done < n and i < len(self.ops):
            need, _, op = self.ops[i]
            if upto is not None and need > upto: break
            if (op[0] == 'd' and op[1] + 4 > self.limit) or (weights_only and op[0] == 'a'): i += 1; continue
            self.issue(op); self.ops.pop(i); done += 1
    def prefetch_weights(self, n): self.pump(n, weights_only=True)
    def run(self, fillers=None, after_burst=None):
        k = self.k
        self.limit = self.C
        self.pump(self.burst)
        if after_burst: after_burst()
        k.wait_lg_all()
        Bq = lambda g: vr(BR + (g % NR) * 4)
        def rd(g):
            if g in self.mstart:
                m = self.mstart.index(g)
                self.pump(100, upto=g)
                assert not any(o[2][0] == 'd' and self.macro_of[o[2][1]] <= m for o in self.ops)
                k.wait_vm(('D', m))
                k.e('s_barrier')
                if m == 0: k.stamp(1)
                self.limit = max(self.limit, ((g - D - 4) // 4) * 4 + self.C)
            off = (g % self.C) * 1024
            qq, o = divmod(off, 65536)
            k.lds('ds_read_b128 %s, v%d offset:%d' % (Bq(g), 1 + qq, o), ('B', g))
        for g in range(D): rd(g)
        credit = 0.0
        for g, (p, ks, t) in enumerate(self.groups):
            nt, orient, ab = self.passes[p]
            if p == 1 and ks == 0 and t == 0: k.stamp(7)
            if g + D < self.NG: rd(g + D)
            if g % self.pace == 0: self.pump(1)
            if p == 0 and t == 0:
                self.pump(100, upto=g)
                k.wait_vm(('A', ks))
            if g % 2 == 0: k.wait_lg(('B', min(g + 1, self.NG - 1)))
            k.wait_lg(('B', g))
            for i in range(2):
                acc = vr(ab + (i * nt + t) * 4)
                c = acc if ks else '0'
                A = ar((ks * 2 + i) * 4)
                if orient == 's': k.e('v_mfma_f32_16x16x32_bf16 %s, %s, %s, %s' % (acc, A, Bq(g), c))
                else: k.e('v_mfma_f32_16x16x32_bf16 %s, %s, %s, %s' % (acc, Bq(g), A, c))
                if fillers and p in fillers and not (ks == 0 and t < 2):
                    gen, per = fillers[p]
                    credit += per
                    while credit >= 1:
                        credit -= 1
                        next(gen, None)
        if fillers:
            for gen, per in fillers.values():
                for _ in gen: pass
        assert not self.ops, self.ops
```

```python
from lib import *
from phases import FUSED

K4_LDS = 2 * 73728
def phase_k4(k, layer, slot=4):
    map_8x4(k)
    NS = 16; T = 3
    for q in range(1, 4): k.e('v_add_u32 v%d, %d, v1' % (1 + q, 4096 * q))
    for i in range(8):
        k.e('s_lshl_b32 s46, s22, 1'); k.e('s_add_u32 s46, s46, %d' % i); k.e('s_and_b32 s46, s46, 7')
        k.e('s_lshl_b32 s47, s44, 3'); k.e('s_add_u32 s46, s46, s47'); k.e('s_lshl_b32 s46, s46, 16')
        k.e('s_lshl_b32 s47, s22, 14'); k.e('s_add_u32 s46, s46, s47'); k.e('s_add_u32 s%d, s46, 0x%x' % (24 + i, WS))
    k.e('s_lshl_b32 s46, s45, 6'); k.e('s_lshl_b32 s47, s22, 4'); k.e('s_add_u32 s46, s46, s47'); k.e('s_mul_i32 s32, s46, 9216'); k.e('s_add_u32 s32, s32, 0x%x' % Z2(layer))
    k.stamp(0)
    ACC0 = 184
    AF = 16
    BF = 64
    TMP = 172
    def acc(i, j):
        if i < 2: return vr(ACC0 + (i * 9 + j) * 4)
        return ar(((i - 2) * 9 + j) * 4)
    B = lambda n, j: vr(BF + (n % 3) * 36 + 4 * j)
    aslot = {}
    def ldA(i, n, slot):
        aslot[(i, n)] = slot
        k.vmem('buffer_load_dwordx4 %s, v%d, s[8:11], s%d offen offset:%d' % (vr(AF + 4 * slot), 1 + n // 4, 24 + i, (n % 4) * 1024), ('A', i, n))
    A = lambda i, n: vr(AF + 4 * aslot[(i, n)])
    def ldB(j, n):
        if j % 4 == 0: k.e('s_add_u32 s33, s32, %d' % (n * 9216 + j * 1024))
        k.vmem('buffer_load_dwordx4 %s, v1, s[8:11], s33 offen offset:%d sc1' % (B(n, j), (j % 4) * 1024), ('B', j, n))
    def mfma(i, j, n):
        k.wait_vm(('A', i, n)); k.wait_vm(('B', j, n))
        k.e('v_mfma_f32_16x16x32_bf16 %s, %s, %s, %s' % (acc(i, j), B(n, j), A(i, n), acc(i, j) if n else '0'))
    for i in range(0, 8): ldA(i, 0, i)
    yield
    k.flag_addr(79, 5 * layer + 2, 45)
    k.e('v_lshlrev_b32 v12, 1, v14'); k.e('s_lshl_b32 s46, s44, 8'); k.e('s_lshl_b32 s47, s22, 6'); k.e('s_add_u32 s46, s46, s47')
    for i in range(2): k.vmem('buffer_load_ushort v%d, v12, s[12:15], s46 offen offset:%d' % (10 + i, 32 * i), 'bias')
    for b in range(1, 4):
        k.e('s_add_u32 s46, s22, %d' % b); k.e('s_and_b32 s46, s46, 3'); k.e('s_mul_i32 s46, s46, 18432')
        k.e('s_add_u32 s46, s46, %d' % (73728 if b == 2 else 0))
        k.e('v_add_u32 v%d, s46, v1' % (4 + b))
    k.e('s_mul_i32 s46, s22, 18432'); k.e('v_add_u32 v8, s46, v1'); k.e('v_add_u32 v9, 73728, v8')
    yield
    k.stamp(6)
    for j in range(9): ldB(j, 0)
    NM = NS - T
    forder = [(i, n) for b in (1, 2, 3, 0) for i in (2 * b, 2 * b + 1) for n in range(NM, NS)]
    for n in range(NM):
        last = (n == NM - 1)
        for i in range(8):
            for j in range(9):
                mfma(i, j, n)
                if i < 3 and j % 3 == 1: ldB(i * 3 + j // 3, n + 1)
                if last and 3 <= i < 6 and j % 3 == 1: ldB((i - 3) * 3 + j // 3, n + 2)
                if last and i == 0 and j in (2, 4, 6, 8):
                    q = j // 2 - 1; ldA(*forder[q], 8 + q)
            if not last: ldA(i, n + 1, i)
            else: ldA(*forder[4 + i], i)
    nextA = 12
    for j in range(9): ldB(j, NS - 1)
    k.stamp(1)
    k.e('s_lshl_b32 s46, s44, 4'); k.e('s_add_u32 s46, s46, s45'); k.e('s_lshl_b32 s46, s46, 3'); k.e('s_lshl_b32 s47, s22, 1'); k.e('s_add_u32 s46, s46, s47')
    k.e('s_mul_i32 s34, s46, 4608'); k.e('s_add_u32 s34, s34, 0x%x' % Z1(layer))
    k.e('v_lshlrev_b32 v13, 3, v0')
    def phase(b, side, pre_tile=None):
        nonlocal nextA
        ms = [(i, n, j) for i in (2 * b, 2 * b + 1) for n in range(NM, NS) for j in range(9)]
        if pre_tile: ms = [(i, n, j) for i in (2 * b, 2 * b + 1) for j in range(9) for n in range(NM, NS)]
        tot = len(ms); si = 0
        done = {}
        for c, (i, n, j) in enumerate(ms):
            if pre_tile and n == NM: pre_tile(i, j)
            mfma(i, j, n)
            done[(i, n)] = done.get((i, n), 0) + 1
            if done[(i, n)] == 9 and nextA < len(forder):
                ldA(*forder[nextA], aslot[(i, n)]); nextA += 1
            while si < len(side) and si * tot <= c * len(side):
                side[si](); si += 1
        while si < len(side): side[si](); si += 1
    def writes(b):
        return [(lambda t=t: k.lds('ds_write_b128 v%d, %s offset:%d' % (4 + b, acc(2 * b + t // 9, t % 9), t * 1024))) for t in range(18)]
    def readadd(vaddr):
        ops = []
        for t in range(18):
            tm = TMP + (t % 3) * 4
            ops.append(lambda t=t, tm=tm: k.lds('ds_read_b128 %s, v%d offset:%d' % (vr(tm), vaddr, t * 1024), ('R', t)))
            if t >= 2:
                def add(t=t - 2):
                    tm = TMP + (t % 3) * 4
                    k.wait_lg(('R', t))
                    for q in range(4): k.e('v_add_f32 v%d, v%d, v%d' % (ACC0 + 4 * t + q, ACC0 + 4 * t + q, tm + q))
                ops.append(add)
        for t in (16, 17):
            def add(t=t):
                tm = TMP + (t % 3) * 4
                k.wait_lg(('R', t))
                for q in range(4): k.e('v_add_f32 v%d, v%d, v%d' % (ACC0 + 4 * t + q, ACC0 + 4 * t + q, tm + q))
            ops.append(add)
        return ops
    def merge(a, b):
        out = []; n = max(len(a), len(b))
        ia = ib = 0
        for c in range(len(a) + len(b)):
            if ib >= len(b) or (ia < len(a) and ia * len(b) <= ib * len(a)): out.append(a[ia]); ia += 1
            else: out.append(b[ib]); ib += 1
        return out
    phase(1, [])
    phase(2, writes(1))
    k.wait_lg_all(); k.e('s_barrier')
    phase(3, merge(writes(2), readadd(8)))
    k.wait_lg_all(); k.e('s_barrier')
    z1ld = [(lambda t=t: (k.e('s_add_u32 s35, s34, %d' % ((t // 8) * 4096)), k.vmem('buffer_load_dwordx2 a[%d:%d], v13, s[8:11], s35 offen offset:%d sc1' % (2 * t, 2 * t + 1, (t % 8) * 512), 'z1'))) for t in range(18)]
    for t in range(2): k.lds('ds_read_b128 %s, v9 offset:%d' % (vr(TMP + (t % 3) * 4), t * 1024), ('R', t))
    def pre(i, j):
        t = i * 9 + j
        if t + 2 < 18: k.lds('ds_read_b128 %s, v9 offset:%d' % (vr(TMP + ((t + 2) % 3) * 4), (t + 2) * 1024), ('R', t + 2))
        k.wait_lg(('R', t))
        tm = TMP + (t % 3) * 4
        for q in range(4): k.e('v_add_f32 v%d, v%d, v%d' % (ACC0 + 4 * t + q, ACC0 + 4 * t + q, tm + q))
    phase(0, writes(3) if FUSED else merge(writes(3), z1ld), pre_tile=pre)
    k.wait_lg_all(); k.e('s_barrier')
    k.stamp(2)
    for t in range(18): k.lds('ds_read_b128 %s, v8 offset:%d' % (vr(16 + 4 * t), t * 1024), ('R', t))
    k.e('v_lshlrev_b32 v10, 16, v10'); k.e('v_lshlrev_b32 v11, 16, v11')
    k.e('s_mul_i32 s46, s45, 144'); k.e('v_lshlrev_b32 v13, 2, v15'); k.e('v_add_u32 v13, s46, v13')
    fm_store_voff(k, 12, 13, 14, 9)
    k.e('s_lshl_b32 s46, s44, 3'); k.e('s_lshl_b32 s47, s22, 1'); k.e('s_add_u32 s46, s46, s47'); k.e('s_mul_i32 s46, s46, %d' % (72 * 1024)); k.e('s_add_u32 s36, s46, 0x%x' % Y(layer))
    k.e('s_add_u32 s37, s36, 4096'); k.e('s_add_u32 s38, s36, %d' % (72 * 1024)); k.e('s_add_u32 s39, s38, 4096')
    k.wait_vm_all()
    for t in range(18):
        i, j = divmod(t, 9)
        b = ACC0 + 4 * t; tm = 16 + 4 * t; z = 100 + (t % 2) * 6
        zo = 216 if FUSED else 0
        k.e('v_accvgpr_read_b32 v%d, a%d' % (z + 4, zo + 2 * t)); k.e('v_accvgpr_read_b32 v%d, a%d' % (z + 5, zo + 2 * t + 1))
        k.wait_lg(('R', t))
        for r in range(4):
            if r % 2 == 0: k.e('v_lshlrev_b32 v%d, 16, v%d' % (z + r, z + 4 + r // 2))
            else: k.e('v_and_b32 v%d, 0xffff0000, v%d' % (z + r, z + 4 + r // 2))
            k.e('v_add_f32 v%d, v%d, v%d' % (tm + r, tm + r, 10 + i)); k.e('v_add_f32 v%d, v%d, v%d' % (b + r, b + r, tm + r)); k.e('v_mul_f32 v%d, v%d, v%d' % (b + r, b + r, z + r))
        k.e('v_cvt_pk_bf16_f32 v%d, v%d, v%d' % (b, b, b + 1)); k.e('v_cvt_pk_bf16_f32 v%d, v%d, v%d' % (b + 1, b + 2, b + 3))
        k.st('buffer_store_dwordx2 %s, v12, s[8:11], s%d offen offset:%d' % (vr(b, 2), 36 + 2 * i + j // 8, (j % 8) * 512))
    k.stamp(3)
    k.flag_addr(78, 5 * layer + 3, 44, 45)
    k.dump(slot, 5)
```

```python
from lib import *
K5_LDS = 4 * 15360
RB = 96 * 1024
def phase_k5(k, inst, YB, KB, WB, xin, xout, slot=5):
    final = xout is None
    NST = (KB + 3) // 4
    map_4x8(k)
    k.e('v_and_b32 v2, 7, v0'); k.e('v_lshl_add_u32 v2, v15, 3, v2'); k.e('v_lshlrev_b32 v2, 4, v2'); k.e('v_add_u32 v2, 4096, v2')
    RD = 5; FR = 16
    k.e('s_mul_i32 s55, s22, %d' % NST); k.e('s_mov_b32 s56, 0')
    if KB % 4:
        k.e('s_cmp_eq_u32 s22, 3'); k.e('s_cselect_b32 s46, 1, 0'); k.e('s_sub_u32 s55, s55, s46')
        k.e('s_cmp_ge_u32 s22, 2'); k.e('s_cselect_b32 s56, 0x40000000, 0')
    for i in range(4):
        k.e('s_add_u32 s46, s22, %d' % i); k.e('s_and_b32 s46, s46, 3'); k.e('s_lshl_b32 s47, s44, 2'); k.e('s_add_u32 s46, s46, s47')
        k.e('s_mul_i32 s46, s46, %d' % KB); k.e('s_add_u32 s46, s46, s55'); k.e('s_lshl_b32 s46, s46, 10'); k.e('s_add_u32 s%d, s46, 0x%x' % (24 + i, YB))
    k.e('s_mul_i32 s46, s45, %d' % KB); k.e('s_add_u32 s46, s46, s55'); k.e('s_mul_i32 s28, s46, 4608'); k.e('s_add_u32 s28, s28, 0x%x' % WB)
    F = lambda n, f: vr(FR + ((n % RD) * 9 + f) * 4)
    def ldw(n):
        if n: k.e('s_add_u32 s28, s28, 4608')
        if KB % 4 and n == NST - 1: k.e('s_add_u32 s28, s28, s56')
        for j in range(5):
            if j < 4: k.vmem('buffer_load_dwordx4 %s, v1, s[8:11], s28 offen offset:%d' % (F(n, 4 + j), j * 1024), ('f', n, 4 + j))
            else: k.vmem('buffer_load_dwordx4 %s, v2, s[8:11], s28 offen' % F(n, 8), ('f', n, 8))
    def ldy(n):
        if n % 4 == 0 and n:
            for i in range(4): k.e('s_add_u32 s%d, s%d, 4096' % (24 + i, 24 + i))
        if KB % 4 and n == NST - 1:
            for i in range(4): k.e('s_add_u32 s%d, s%d, s56' % (24 + i, 24 + i))
        for j in range(4): k.vmem('buffer_load_dwordx4 %s, v1, s[8:11], s%d offen offset:%d sc1' % (F(n, j), 24 + j, (n % 4) * 1024), ('f', n, j))
    def ld(n): ldw(n); ldy(n)
    k.stamp(0)
    ldw(0)
    yield
    for n in range(1, RD): ldw(n)
    k.e('s_lshr_b32 s51, s44, 1')
    k.flag_addr(79, inst - 1, 51)
    k.e('s_mul_i32 s46, s45, 72'); k.e('v_lshlrev_b32 v4, 2, v15'); k.e('v_add_u32 v4, s46, v4')
    for j in range(5):
        if j: k.e('v_add_u32 v4, 16, v4')
        fm_store_voff(k, 5 + j, 4, 14, 10)
        if final:
            k.e('v_mul_u32_u24 v%d, 1152, v14' % (200 + j)); k.e('v_lshl_add_u32 v%d, v4, 1, v%d' % (200 + j, 200 + j))
    k.e('v_cmp_gt_u32 vcc, 2, v15'); k.e('v_mov_b32 v10, 0x%x' % OOB); k.e('v_cndmask_b32 v9, v10, v9, vcc')
    if final: k.e('v_cndmask_b32 v204, v10, v204, vcc')
    k.e('s_lshl_b32 s50, s44, 2'); k.e('s_add_u32 s50, s50, s22')
    k.e('s_mul_i32 s52, s50, 18432'); k.e('s_add_u32 s54, s52, 0x%x' % XF(xin)); k.e('s_add_u32 s57, s52, 0x%x' % XF(xout or 0))
    for j in range(5): k.vmem('buffer_load_dwordx2 %s, v%d, s[8:11], s54 offen sc1' % (vr(206 + 2 * j, 2), 5 + j), 'res')
    yield
    k.stamp(6)
    for n in range(RD): ldy(n)
    AC = lambda i, j: ar((i * 5 + j) * 4)
    for n in range(NST):
        for i in range(4):
            for j in range(5):
                k.wait_vm(('f', n, i)); k.wait_vm(('f', n, 4 + j))
                k.e('v_mfma_f32_16x16x32_bf16 %s, %s, %s, %s' % (AC(i, j), F(n, 4 + j), F(n, i), AC(i, j) if n else '0'))
        if n + RD < NST: ld(n + RD)
    k.stamp(2)
    for i in range(1, 4):
        k.e('s_add_u32 s46, s22, %d' % i); k.e('s_and_b32 s46, s46, 3'); k.e('s_mul_i32 s46, s46, 3'); k.e('s_add_u32 s46, s46, %d' % (i - 1)); k.e('s_mul_i32 s46, s46, 5120'); k.e('s_add_u32 s46, s46, %d' % RB)
        k.e('v_add_u32 v3, s46, v1')
        for j in range(5): k.lds('ds_write_b128 v3, %s offset:%d' % (AC(i, j), j * 1024))
    k.e('s_mul_i32 s46, s22, 15360'); k.e('s_add_u32 s46, s46, %d' % RB); k.e('v_add_u32 v3, s46, v1')
    for r in range(20): k.e('v_accvgpr_read_b32 v%d, a%d' % (16 + r, r))
    k.wait_lg_all()
    k.e('s_barrier')
    for s_ in range(3):
        for j in range(5): k.lds('ds_read_b128 %s, v3 offset:%d' % (vr(36 + (s_ * 5 + j) * 4), (s_ * 5 + j) * 1024))
    k.e('v_mov_b32 v12, 0'); k.e('v_mov_b32 v13, 0')
    k.wait_lg_all(); k.wait_vm_all()
    for j in range(5):
        b = 16 + 4 * j; rs = 206 + 2 * j
        if j == 4: k.setexec(32)
        for r in range(4):
            k.e('v_add_f32 v%d, v%d, v%d' % (b + r, b + r, 36 + 4 * j + r)); k.e('v_add_f32 v%d, v%d, v%d' % (56 + 4 * j + r, 56 + 4 * j + r, 76 + 4 * j + r))
            if r % 2 == 0: k.e('v_lshlrev_b32 v%d, 16, v%d' % (100 + r, rs + r // 2))
            else: k.e('v_and_b32 v%d, 0xffff0000, v%d' % (100 + r, rs + r // 2))
            k.e('v_add_f32 v%d, v%d, v%d' % (b + r, b + r, 56 + 4 * j + r)); k.e('v_add_f32 v%d, v%d, v%d' % (b + r, b + r, 100 + r))
            if not final:
                k.e('v_add_f32 v12, v12, v%d' % (b + r)); k.e('v_fmac_f32 v13, v%d, v%d' % (b + r, b + r))
        k.e('v_cvt_pk_bf16_f32 v%d, v%d, v%d' % (b, b, b + 1)); k.e('v_cvt_pk_bf16_f32 v%d, v%d, v%d' % (b + 1, b + 2, b + 3))
        if final: k.vmem('buffer_store_dwordx2 %s, v%d, s[16:19], s52 offen' % (vr(b, 2), 200 + j))
        else: k.st('buffer_store_dwordx2 %s, v%d, s[8:11], s57 offen' % (vr(b, 2), 5 + j))
    if not final:
        k.e('s_mov_b64 exec, -1')
        rowsum_g(k, 12, 10); rowsum_g(k, 13, 10)
        k.e('s_lshl_b32 s46, s50, 7'); k.e('s_lshl_b32 s47, s45, 14'); k.e('s_add_u32 s46, s46, s47'); k.e('s_add_u32 s46, s46, 0x%x' % XS(xout))
        k.e('v_lshlrev_b32 v2, 3, v14')
        k.e('s_mov_b64 exec, 0xffff')
        k.st('buffer_store_dwordx2 v[12:13], v2, s[8:11], s46 offen')
    k.stamp(3)
    k.e('s_mov_b64 exec, -1')
    k.e('s_and_b32 s46, s44, 1'); k.e('s_lshl_b32 s46, s46, 3'); k.e('s_add_u32 s46, s46, s45')
    k.flag_addr(78, inst, 51, 46)
    k.dump(slot, 5)
    k.e('s_mov_b64 exec, -1')
```

```python
from lib import *

def gather_chunks(k, srd, nch, row_off, vcol, emit_store, colsum_v=None):
    def loads(i):
        for e in range(8):
            row_off(i, e)
            k.vmem('buffer_load_ushort v%d, v%d, s[%d:%d], s40 offen' % (64 + 8 * (i % 7) + e, vcol, srd, srd + 3), ('c', i))
    for i in range(min(7, nch)): loads(i)
    for i in range(nch):
        k.wait_vm(('c', i))
        k.wait_vm(('st', i - 4))
        p = 32 + 4 * (i % 4); r = 64 + 8 * (i % 7)
        for q in range(4):
            k.e('v_lshl_or_b32 v%d, v%d, 16, v%d' % (p + q, r + 2 * q + 1, r + 2 * q))
            if colsum_v is not None:
                k.e('v_dot2_f32_bf16 v%d, v%d, v31, v%d' % (colsum_v, p + q, colsum_v))
        emit_store(i, p)
        if i + 7 < nch: loads(i + 7)

def colsum_finish(k, vacc, dst_base):
    k.e('v_lshlrev_b32 v2, 2, v0')
    k.e('s_lshl_b32 s40, s22, 8')
    k.e('v_add_u32 v3, s40, v2')
    k.lds('ds_write_b32 v3, v%d' % vacc)
    k.wait_lg_all()
    k.e('s_barrier')
    k.e('s_cmp_lg_u32 s22, 0')
    k.e('s_cbranch_scc1 %s' % k.end)
    for w in range(8): k.lds('ds_read_b32 v%d, v2 offset:%d' % (8 + w, w * 256))
    k.wait_lg_all()
    for w in range(1, 8): k.e('v_add_f32 v8, v8, v%d' % (8 + w))
    k.e('s_lshl_b32 s40, s42, 8')
    k.e('s_add_u32 s40, s40, 0x%x' % dst_base)
    k.vmem('buffer_store_dword v8, v2, s[8:11], s40 offen')
    k.e('s_endpgm')

def gen_p0():
    k = K('p0_kernel')
    R = dict(WS=(0, 128), WI=(128, 200), WQ=(200, 236), WOUT=(236, 272), WO=(272, 281), XF=(281, 297), KZ=(297, 329), FZ=(329, 334))
    NWG = 334
    k.start(NWG, [(0, 12, 2048 * 576 * 2), (1, 16, 576 * 1728 * 2), (2, 24, 576 * 576 * 2), (4, 28, 576 * 4608 * 2), (5, 32, 2048 * 2048 * 2), (7, 36, 2304 * 576 * 2)])
    k.e('v_mov_b32 v31, 0x3f803f80')
    k.e('v_and_b32 v4, 15, v0')
    k.e('v_lshrrev_b32 v5, 4, v0')
    names = list(R.keys())
    for n in names[1:][::-1]:
        k.e('s_cmp_ge_u32 s2, %d' % R[n][0])
        k.e('s_cbranch_scc1 P0_%s' % n)
    k.vm = []
    k.e('v_lshlrev_b32 v2, 12, v4'); k.e('v_lshl_add_u32 v2, v5, 4, v2')
    k.e('s_lshl_b32 s40, s2, 16'); k.e('s_lshl_b32 s41, s22, 9'); k.e('s_add_u32 s40, s40, s41')
    k.e('s_lshl_b32 s42, s2, 16'); k.e('s_lshl_b32 s41, s22, 13'); k.e('s_add_u32 s42, s42, s41'); k.e('s_add_u32 s42, s42, 0x%x' % WS)
    for i in range(8): k.vmem('buffer_load_dwordx4 %s, v2, s[32:35], s40 offen offset:%d' % (vr(32 + 4 * i), i * 64), i)
    for i in range(8):
        k.wait_vm(i)
        if i == 4: k.e('s_add_u32 s42, s42, 4096')
        k.vmem('buffer_store_dwordx4 %s, v1, s[8:11], s42 offen offset:%d' % (vr(32 + 4 * i), (i % 4) * 1024))
    k.e('s_endpgm')
    k.label('P0_WI'); k.vm = []
    k.e('s_sub_u32 s42, s2, %d' % R['WI'][0])
    k.e('s_lshl_b32 s40, s42, 6'); k.e('v_add_u32 v6, s40, v0')
    div_const(k, 7, 6, 288, 4607)
    k.e('v_mul_u32_u24 v8, 288, v7'); k.e('v_sub_u32 v8, v6, v8'); k.e('v_lshrrev_b32 v8, 4, v8')
    k.e('v_lshlrev_b32 v9, 4, v8')
    k.e('v_add_u32 v10, 2304, v9'); k.e('v_subrev_u32 v11, 144, v9'); k.e('v_cmp_le_u32 vcc, 9, v8'); k.e('v_cndmask_b32 v10, v10, v11, vcc')
    k.e('v_mul_u32_u24 v11, 144, v7'); k.e('v_add3_u32 v10, v10, v11, v4'); k.e('v_lshlrev_b32 v10, 1, v10')
    k.e('v_add_u32 v9, 153, v8'); k.e('v_cndmask_b32 v8, v8, v9, vcc')
    k.e('v_mul_u32_u24 v11, 324, v7'); k.e('v_add_u32 v11, v11, v8'); k.e('v_lshlrev_b32 v11, 10, v11'); k.e('v_lshl_add_u32 v11, v4, 4, v11')
    k.e('v_mov_b32 v12, 0')
    k.e('s_mul_i32 s43, s22, %d' % (72 * 9216)); k.e('s_mul_i32 s44, s22, 9')
    def ro(i, e): k.e('s_add_u32 s40, s43, %d' % ((8 * i + e) * 9216))
    def st(i, p):
        k.e('s_add_u32 s45, s44, %d' % i); k.e('s_lshr_b32 s46, s45, 2'); k.e('s_and_b32 s45, s45, 3')
        k.e('s_mul_i32 s46, s46, %d' % (9 * 1024)); k.e('s_lshl_b32 s45, s45, 8'); k.e('s_add_u32 s45, s45, s46'); k.e('s_add_u32 s45, s45, 0x%x' % WI)
        k.vmem('buffer_store_dwordx4 %s, v11, s[8:11], s45 offen' % vr(p), ('st', i))
    gather_chunks(k, 28, 9, ro, 10, st, colsum_v=12)
    colsum_finish(k, 12, CSI)
    k.label('P0_WQ'); k.vm = []; k.lg = []
    k.e('s_sub_u32 s42, s2, %d' % R['WQ'][0])
    k.e('s_lshl_b32 s40, s42, 6'); k.e('v_add_u32 v6, s40, v0')
    div_const(k, 7, 6, 144, 2303)
    k.e('v_mul_u32_u24 v8, 144, v7'); k.e('v_sub_u32 v8, v6, v8'); k.e('v_lshrrev_b32 v8, 4, v8')
    div_const(k, 9, 8, 3, 8)
    k.e('v_mul_u32_u24 v10, 3, v9'); k.e('v_sub_u32 v10, v8, v10'); k.e('v_lshl_add_u32 v10, v10, 4, v4')
    k.e('v_cmp_gt_u32 vcc, 36, v10')
    k.e('v_mul_u32_u24 v9, 576, v9'); k.e('v_mul_u32_u24 v11, 36, v7'); k.e('v_add3_u32 v10, v10, v9, v11'); k.e('v_lshlrev_b32 v10, 1, v10')
    k.e('v_mov_b32 v9, 0x%x' % OOB); k.e('v_cndmask_b32 v10, v9, v10, vcc')
    k.e('v_cmp_le_u32 vcc, 3, v8'); k.e('v_add_u32 v9, 108, v8'); k.e('v_subrev_u32 v8, 3, v8'); k.e('v_cndmask_b32 v8, v9, v8, vcc')
    k.e('v_mov_b32 v13, 3072'); k.e('v_mov_b32 v9, 6144'); k.e('v_cndmask_b32 v13, v13, v9, vcc')
    k.e('v_mul_u32_u24 v11, 162, v7'); k.e('v_add_u32 v11, v11, v8'); k.e('v_lshlrev_b32 v11, 10, v11'); k.e('v_lshl_add_u32 v11, v4, 4, v11')
    k.e('v_mov_b32 v12, 0')
    k.e('s_mul_i32 s43, s22, %d' % (72 * 3456)); k.e('s_mul_i32 s44, s22, 9')
    def ro(i, e): k.e('s_add_u32 s40, s43, %d' % ((8 * i + e) * 3456))
    def st(i, p):
        k.e('s_add_u32 s45, s44, %d' % i); k.e('s_lshr_b32 s46, s45, 2'); k.e('s_and_b32 s45, s45, 3')
        k.e('v_mad_u32_u24 v%d, s46, v13, v11' % (16 + i % 4))
        k.e('s_lshl_b32 s45, s45, 8'); k.e('s_add_u32 s45, s45, 0x%x' % WQ)
        k.vmem('buffer_store_dwordx4 %s, v%d, s[8:11], s45 offen' % (vr(p), 16 + i % 4), ('st', i))
    gather_chunks(k, 16, 9, ro, 10, st, colsum_v=12)
    colsum_finish(k, 12, CSQ)
    k.label('P0_WOUT'); k.vm = []; k.lg = []
    k.e('s_sub_u32 s42, s2, %d' % R['WOUT'][0])
    k.e('s_mul_i32 s47, s42, 57'); k.e('s_lshr_b32 s47, s47, 9')
    k.e('s_mul_i32 s40, s47, 9'); k.e('s_sub_u32 s42, s42, s40')
    k.e('s_lshl_b32 s40, s42, 6'); k.e('v_add_u32 v6, s40, v0')
    div_const(k, 7, 6, 72, 575)
    k.e('v_mul_u32_u24 v8, 72, v7'); k.e('v_sub_u32 v8, v6, v8')
    k.e('v_lshlrev_b32 v10, 1, v6')
    k.e('v_lshrrev_b32 v9, 4, v8'); k.e('v_and_b32 v8, 15, v8')
    k.e('s_mov_b32 s40, %d' % (72 * 4608)); k.e('v_mul_lo_u32 v11, s40, v7')
    k.e('v_lshl_add_u32 v11, v9, 10, v11'); k.e('v_lshl_add_u32 v11, v8, 4, v11')
    k.e('v_cmp_gt_u32 vcc, 4, v9'); k.e('v_mov_b32 v13, 128'); k.e('v_mov_b32 v14, 256'); k.e('v_cndmask_b32 v13, v13, v14, vcc')
    k.e('s_mul_i32 s44, s47, 72'); k.e('s_mul_i32 s40, s22, 9'); k.e('s_add_u32 s44, s44, s40')
    k.e('s_mul_i32 s43, s44, %d' % (8 * 1152))
    def ro(i, e): k.e('s_add_u32 s40, s43, %d' % ((8 * i + e) * 1152))
    def st(i, p):
        k.e('s_add_u32 s45, s44, %d' % i); k.e('s_lshr_b32 s46, s45, 2'); k.e('s_and_b32 s45, s45, 3')
        k.e('v_mad_u32_u24 v%d, s45, v13, v11' % (16 + i % 4))
        k.e('s_mul_i32 s46, s46, 4608'); k.e('s_add_u32 s46, s46, 0x%x' % WOUT)
        k.vmem('buffer_store_dwordx4 %s, v%d, s[8:11], s46 offen' % (vr(p), 16 + i % 4), ('st', i))
    gather_chunks(k, 36, 9, ro, 10, st)
    k.e('s_endpgm')
    k.label('P0_WO'); k.vm = []; k.lg = []
    k.e('s_sub_u32 s42, s2, %d' % R['WO'][0])
    k.e('s_lshl_b32 s40, s42, 6'); k.e('v_add_u32 v6, s40, v0')
    div_const(k, 7, 6, 72, 575)
    k.e('v_mul_u32_u24 v8, 72, v7'); k.e('v_sub_u32 v8, v6, v8')
    k.e('v_lshlrev_b32 v10, 1, v6')
    k.e('v_lshrrev_b32 v9, 4, v8'); k.e('v_and_b32 v8, 15, v8')
    k.e('s_mov_b32 s40, %d' % (18 * 4608)); k.e('v_mul_lo_u32 v11, s40, v7')
    k.e('v_lshl_add_u32 v11, v9, 10, v11'); k.e('v_lshl_add_u32 v11, v8, 4, v11')
    k.e('v_cmp_gt_u32 vcc, 4, v9'); k.e('v_mov_b32 v13, 128'); k.e('v_mov_b32 v14, 256'); k.e('v_cndmask_b32 v13, v13, v14, vcc')
    k.e('s_mul_i32 s44, s22, 9')
    k.e('s_mul_i32 s43, s44, %d' % (8 * 1152))
    def ro(i, e): k.e('s_add_u32 s40, s43, %d' % ((8 * i + e) * 1152))
    def st(i, p):
        k.e('s_add_u32 s45, s44, %d' % i); k.e('s_lshr_b32 s46, s45, 2'); k.e('s_and_b32 s45, s45, 3')
        k.e('v_mad_u32_u24 v%d, s45, v13, v11' % (16 + i % 4))
        k.e('s_mul_i32 s46, s46, 4608'); k.e('s_add_u32 s46, s46, 0x%x' % WO)
        k.vmem('buffer_store_dwordx4 %s, v%d, s[8:11], s46 offen' % (vr(p), 16 + i % 4), ('st', i))
    gather_chunks(k, 24, 9, ro, 10, st)
    k.e('s_endpgm')
    k.label('P0_XF'); k.vm = []; k.lg = []
    k.e('s_sub_u32 s42, s2, %d' % R['XF'][0]); k.e('s_lshl_b32 s42, s42, 3'); k.e('s_add_u32 s42, s42, s22')
    k.e('v_mul_u32_u24 v2, 1152, v4'); k.e('v_lshl_add_u32 v2, v5, 4, v2')
    k.e('s_mul_i32 s40, s42, %d' % (16 * 1152))
    k.e('s_add_u32 s43, s40, 0x%x' % XF(0))
    for i in range(18): k.vmem('buffer_load_dwordx4 %s, v2, s[12:15], s40 offen offset:%d' % (vr(32 + 4 * i), i * 64), i)
    k.e('v_mov_b32 v8, 0'); k.e('v_mov_b32 v9, 0')
    for i in range(18):
        k.wait_vm(i)
        if i % 4 == 0 and i: k.e('s_add_u32 s43, s43, 4096')
        k.vmem('buffer_store_dwordx4 %s, v1, s[8:11], s43 offen offset:%d' % (vr(32 + 4 * i), (i % 4) * 1024))
        for q in range(4):
            k.e('v_dot2_f32_bf16 v8, v%d, v31, v8' % (32 + 4 * i + q))
            k.e('v_dot2_f32_bf16 v9, v%d, v%d, v9' % (32 + 4 * i + q, 32 + 4 * i + q))
    for vv in (8, 9):
        k.e('v_mov_b32 v10, v%d' % vv); k.e('v_permlane32_swap_b32 v%d, v10' % vv); k.e('v_add_f32 v%d, v%d, v10' % (vv, vv))
        k.e('v_mov_b32 v10, v%d' % vv); k.e('v_permlane16_swap_b32 v%d, v10' % vv); k.e('v_add_f32 v%d, v%d, v10' % (vv, vv))
    k.e('v_cmp_eq_u32 vcc, 0, v5')
    k.e('v_cndmask_b32 v8, 0, v8, vcc'); k.e('v_cndmask_b32 v9, 0, v9, vcc'); k.e('v_mov_b32 v10, 0'); k.e('v_mov_b32 v11, 0')
    k.e('v_lshlrev_b32 v2, 3, v4'); k.e('v_lshl_add_u32 v2, v5, 14, v2')
    k.e('s_lshl_b32 s40, s42, 7'); k.e('s_add_u32 s40, s40, 0x%x' % XS(0)); k.e('s_add_u32 s41, s40, 65536')
    k.vmem('buffer_store_dwordx2 v[8:9], v2, s[8:11], s40 offen')
    k.vmem('buffer_store_dwordx2 v[10:11], v2, s[8:11], s41 offen')
    k.e('s_endpgm')
    k.label('P0_KZ'); k.vm = []
    k.e('s_getpc_b64 s[58:59]')
    k.lines.append('P0_PC:;nohz')
    k.e('s_sub_u32 s46, s2, %d' % R['KZ'][0]); k.e('s_lshl_b32 s46, s46, 3'); k.e('s_add_u32 s46, s46, s22'); k.e('s_lshl_b32 s46, s46, 10')
    k.e('v_add_u32 v4, s46, v1'); k.e('v_min_u32 v4, CODE_END-P0_PC-16, v4'); k.e('v_and_b32 v4, -4, v4')
    k.vmem('global_load_dwordx4 v[16:19], v4, s[58:59]')
    k.e('s_sub_u32 s42, s2, %d' % R['KZ'][0]); k.e('s_lshr_b32 s43, s42, 4'); k.e('s_and_b32 s42, s42, 15')
    k.e('s_cmp_ge_u32 s42, 12'); k.e('s_cselect_b32 s44, 0xbf800000, -1')
    k.e('s_lshl_b32 s42, s42, 16'); k.e('s_lshl_b32 s40, s22, 13'); k.e('s_add_u32 s42, s42, s40'); k.e('s_mul_i32 s43, s43, 0x%x' % LSZ); k.e('s_add_u32 s42, s42, s43'); k.e('s_add_u32 s42, s42, 0x%x' % KVP(0))
    for q in range(4): k.e('v_mov_b32 v%d, s44' % (8 + q))
    for i in range(8):
        if i == 4: k.e('s_add_u32 s42, s42, 4096')
        k.vmem('buffer_store_dwordx4 v[8:11], v1, s[8:11], s42 offen offset:%d' % ((i % 4) * 1024))
    k.e('s_endpgm')
    k.label('P0_FZ'); k.vm = []
    k.e('s_sub_u32 s42, s2, %d' % R['FZ'][0]); k.e('s_lshl_b32 s42, s42, 16'); k.e('s_lshl_b32 s40, s22, 13'); k.e('s_add_u32 s42, s42, s40'); k.e('s_add_u32 s42, s42, 0x%x' % FLG)
    for q in range(4): k.e('v_mov_b32 v%d, 0' % (8 + q))
    for i in range(8):
        if i == 4: k.e('s_add_u32 s42, s42, 4096')
        k.vmem('buffer_store_dwordx4 v[8:11], v1, s[8:11], s42 offen offset:%d' % ((i % 4) * 1024))
    k.finish()
    return k.text(128), ('p0_kernel', (NWG, 1, 1), (512, 1, 1), 2048)
```

```python
WQ   = 0x0000000
CSQ  = 0x0290000
WO   = 0x02A0000
WI   = 0x0350000
CSI  = 0x0860000
WS   = 0x0880000
WOUT = 0x1080000
FLG  = 0x1310000
def XF(i): return 0x1400000 + i * 0x280000
def XS(i): return 0x1E00000 + i * 0x20000
ACT = 0x2000000
LSZ = 0x2000000
def OB(l):  return ACT + l * LSZ
def KVP(l): return ACT + l * LSZ + 0x0240000
def US(l):  return ACT + l * LSZ + 0x0300000
def Z2(l):  return ACT + l * LSZ + 0x0400000
def Z1(l):  return ACT + l * LSZ + 0x0D00000
def Y(l):   return ACT + l * LSZ + 0x1600000
WS_BYTES = 0x10000000
OOB = 0x7ff00000
PROF_BASE = 0x8000000
```

```python
import os, struct
from asmlib import K as K0, assemble_file
import hz
from layout import *
PROF = int(os.environ.get('PROF', '0'))

class K(K0):
    pfx = ''
    def L(self, s): return '%s_%s' % (self.pfx, s)
    def st(self, s, tag='out'):
        K0.vmem(self, s + ' sc1', tag)
    def stamp(self, n):
        if not PROF: return
        self.e('s_memrealtime s[%d:%d]' % (60 + 2 * n, 61 + 2 * n))
        self.wait_lg_all()
    def dump(self, slot, nst):
        if not PROF: return
        self.e('s_mov_b64 exec, -1')
        self.wait_vm_all()
        self.stamp(nst - 1)
        self.e('s_lshl_b32 s46, s2, 3'); self.e('s_add_u32 s46, s46, s22'); self.e('s_lshl_b32 s46, s46, 6')
        self.e('s_add_u32 s46, s46, 0x%x' % (PROF_BASE + slot * 0x40000))
        self.e('v_mov_b32 v4, 0')
        for q in range(nst):
            self.e('v_mov_b32 v5, s%d' % (60 + 2 * q))
            self.e('buffer_store_dword v5, v4, s[8:11], s46 offen offset:%d' % (4 * q))
        self.e('v_mov_b32 v5, s72')
        self.e('buffer_store_dword v5, v4, s[8:11], s46 offen offset:48')
        self.e('v_mov_b32 v5, s74')
        self.e('buffer_store_dword v5, v4, s[8:11], s46 offen offset:52')
        self.e('v_mov_b32 v5, s76')
        self.e('buffer_store_dword v5, v4, s[8:11], s46 offen offset:56')
        self.wait_vm_all()
    def text(self, vgprs, agprs=0, sgprs=102, wgy=False):
        self.lines = hz.fix(self.lines)
        return K0.text(self, vgprs, agprs, sgprs, wgy)
    def srd(self, d, lo, size):
        self.e('s_mov_b32 s%d, s%d' % (d, lo))
        self.e('s_and_b32 s%d, s%d, 0xffff' % (d + 1, lo + 1))
        self.e('s_mov_b32 s%d, 0x%x' % (d + 2, size))
        self.e('s_mov_b32 s%d, 0x00020000' % (d + 3))
    def start(self, nwg, ptrs):
        self.end = 'END_' + self.name
        if PROF: self.e('s_memrealtime s[76:77]')
        self.e('s_cmp_ge_u32 s2, %d' % nwg)
        self.e('s_cbranch_scc0 GO_%s' % self.name)
        self.e('s_endpgm')
        self.lines.append('GO_%s:;nohz' % self.name)
        allp = [(10, 8, WS_BYTES)] + list(ptrs)
        for i, (slot, d, size) in enumerate(allp):
            self.e('s_load_dwordx2 s[%d:%d], s[0:1], %d' % (80 + 2 * i, 81 + 2 * i, slot * 8))
        self.e('v_lshrrev_b32 v1, 6, v0')
        self.e('v_readfirstlane_b32 s22, v1')
        self.e('v_and_b32 v0, 63, v0')
        self.e('v_lshlrev_b32 v1, 4, v0'); self.e('v_and_b32 v14, 15, v0'); self.e('v_lshrrev_b32 v15, 4, v0')
        self.e('s_and_b32 s3, s2, 7'); self.e('s_lshr_b32 s23, s2, 3')
        self.e('s_waitcnt lgkmcnt(0)')
        for i, (slot, d, size) in enumerate(allp):
            self.srd(d, 80 + 2 * i, size)
    def code_prefetch(self, endlabel, nw=4, startlabel=None):
        here = self.newlabel('PC')
        self.e('s_getpc_b64 s[58:59]')
        self.lines.append(here + ':;nohz')
        self.e('s_mul_i32 s46, s23, %d' % nw); self.e('s_add_u32 s46, s46, s22'); self.e('s_lshl_b32 s46, s46, 10')
        self.e('v_add_u32 v13, s46, v1')
        if startlabel: self.e('v_add_u32 v13, %s-%s, v13' % (startlabel, here))
        self.e('v_min_u32 v13, %s-%s-16, v13' % (endlabel, here))
        self.e('v_and_b32 v13, -4, v13')
        self.vmem('global_load_dwordx4 a[252:255], v13, s[58:59]')
    def flag_addr(self, sd, inst, sgrp, sprod=None):
        self.e('s_lshl_b32 s%d, s%d, 11' % (sd, sgrp)); self.e('s_add_u32 s%d, s%d, 0x%x' % (sd, sd, FLG + inst * 32768))
        if sprod is not None:
            self.e('s_lshl_b32 s47, s%d, 7' % sprod); self.e('s_add_u32 s%d, s%d, s47' % (sd, sd))
            self.e('s_lshl_b32 s47, s22, 2'); self.e('s_add_u32 s%d, s%d, s47' % (sd, sd))
    def signal(self):
        self.wait_vm('out')
        self.e('v_mov_b32 v13, 1'); self.e('v_mov_b32 v12, 0')
        self.setexec(1)
        self.vmem('buffer_store_dword v13, v12, s[8:11], s78 offen sc0 sc1')
        self.e('s_mov_b64 exec, -1')
    def depwait(self):
        name = self.newlabel('DW')
        self.e('v_lshlrev_b32 v12, 7, v14'); self.e('v_lshl_add_u32 v12, v15, 2, v12')
        self.e('s_mov_b32 s53, 0')
        self.label(name)
        self.e('buffer_load_dword v13, v12, s[8:11], s79 offen sc0 sc1')
        self.e('s_add_u32 s53, s53, 1')
        self.wait_vm_all()
        self.e('v_cmp_eq_u32 vcc, 0, v13')
        self.e('s_cbranch_vccz %sG' % name)
        self.e('s_cmp_lt_u32 s53, 100000')
        self.e('s_cbranch_scc1 %s' % name)
        self.label(name + 'G')
        self.e('s_barrier')
    def setexec(self, lanes):
        m = (1 << lanes) - 1
        self.e('s_mov_b32 exec_lo, 0x%x' % (m & 0xffffffff)); self.e('s_mov_b32 exec_hi, 0x%x' % (m >> 32))
    def finish(self):
        self.label(self.end)

def vr(b, n=4): return 'v[%d:%d]' % (b, b + n - 1)
def ar(b, n=4): return 'a[%d:%d]' % (b, b + n - 1)
def f32(x): return '0x%08x' % struct.unpack('<I', struct.pack('<f', x))[0]

def div_const(k, vq, vx, d, maxv, stmp=41):
    for sh in range(16, 24):
        m = (1 << sh) // d + 1
        if m * maxv < (1 << 32) and m < (1 << 24) and all((x * m) >> sh == x // d for x in range(maxv + 1)):
            k.e('s_mov_b32 s%d, %d' % (stmp, m))
            k.e('v_mul_u32_u24 v%d, s%d, v%d' % (vq, stmp, vx))
            k.e('v_lshrrev_b32 v%d, %d, v%d' % (vq, sh, vq))
            return
    raise ValueError('no magic')

def map_8x4(k):
    k.e('s_and_b32 s44, s3, 1'); k.e('s_lshl_b32 s44, s44, 3'); k.e('s_and_b32 s45, s23, 7'); k.e('s_add_u32 s44, s44, s45')
    k.e('s_lshr_b32 s45, s3, 1'); k.e('s_lshl_b32 s45, s45, 2'); k.e('s_lshr_b32 s46, s23, 3'); k.e('s_add_u32 s45, s45, s46')
def map_4x8(k):
    k.e('s_lshl_b32 s44, s3, 2'); k.e('s_and_b32 s45, s23, 3'); k.e('s_add_u32 s44, s44, s45'); k.e('s_lshr_b32 s45, s23, 2')

def fm_store_voff(k, vdst, vk, vr16, tmp):
    k.e('v_lshrrev_b32 v%d, 3, v%d' % (vdst, vk))
    k.e('v_lshlrev_b32 v%d, 8, v%d' % (vdst, vdst))
    k.e('v_lshl_add_u32 v%d, v%d, 4, v%d' % (vdst, vr16, vdst))
    k.e('v_and_b32 v%d, 4, v%d' % (tmp, vk))
    k.e('v_lshl_add_u32 v%d, v%d, 1, v%d' % (vdst, tmp, vdst))

def rowsum_g(k, vv, tmp):
    k.e('v_mov_b32 v%d, v%d' % (tmp, vv)); k.e('v_permlane32_swap_b32 v%d, v%d' % (vv, tmp)); k.e('v_add_f32 v%d, v%d, v%d' % (vv, vv, tmp))
    k.e('v_mov_b32 v%d, v%d' % (tmp, vv)); k.e('v_permlane16_swap_b32 v%d, v%d' % (vv, tmp)); k.e('v_add_f32 v%d, v%d, v%d' % (vv, vv, tmp))

def capture(k, fn):
    n0 = len(k.lines); fn(); c = k.lines[n0:]; del k.lines[n0:]; return c
def rr(chunks):
    out = []
    for i in range(max(len(c) for c in chunks)):
        for c in chunks:
            if i < len(c): out.append(c[i])
    return out
```

```python
import math
from lib import *
from h4 import *
LOG2E = 1.4426950408889634
GC0 = -2.0 * math.sqrt(2.0 / math.pi) * LOG2E
GC1 = GC0 * 0.044715
A1 = 48; A2 = 120
FUSED = int(os.environ.get('FUSED', '1'))
PRE1 = 6 if FUSED else 0
PRE2 = 18 if FUSED else 0

def phi_ops(k, v, t1, t2, sm):
    k.e('v_mul_f32 v%d, %s, v%d' % (t1, f32(LOG2E), v))
    k.e('v_exp_f32 v%d, v%d' % (t1, t1))
    k.e('v_add_f32 v%d, %s, v%d' % (t2, f32(1.000001), v))
    k.e('v_cmp_lt_f32 %s, 0, v%d' % (sm, v))
    k.e('v_add_f32 v%d, %s, v%d' % (t1, f32(1e-6), t1))
    k.e('v_cndmask_b32 v%d, v%d, v%d, %s' % (v, t1, t2, sm))

def gelu_ops(k, v, t, vC1):
    k.e('v_mul_f32 v%d, v%d, v%d' % (t, v, v))
    k.e('v_fmaak_f32 v%d, v%d, v%d, %s' % (t, t, vC1, f32(GC0)))
    k.e('v_mul_f32 v%d, v%d, v%d' % (t, t, v))
    k.e('v_exp_f32 v%d, v%d' % (t, t))
    k.e('v_add_f32 v%d, 1.0, v%d' % (t, t))
    k.e('v_rcp_f32 v%d, v%d' % (t, t))
    k.e('v_mul_f32 v%d, v%d, v%d' % (v, v, t))

def pk(op, d, *src, sel=None):
    ops = []; lo = []; hi = []
    for s_ in src:
        if isinstance(s_, tuple):
            r = s_[1]; ops.append(vr(r & ~1, 2)); lo.append(r & 1); hi.append(r & 1)
        elif isinstance(s_, str):
            ops.append(s_); lo.append(0); hi.append(1)
        else:
            ops.append(vr(s_, 2)); lo.append(0); hi.append(1)
    m = ''
    if any(lo): m += ' op_sel:[%s]' % ','.join(map(str, lo))
    if not all(hi): m += ' op_sel_hi:[%s]' % ','.join(map(str, hi))
    return 'v_pk_%s_f32 %s, %s%s' % (op, vr(d, 2), ', '.join(ops), m)

def gelu_pk(k, v, t, CC):
    k.e(pk('mul', t, v, v))
    k.e(pk('fma', t, t, ('b', CC), ('b', CC + 1)))
    k.e(pk('mul', t, t, v))
    k.e('v_exp_f32 v%d, v%d' % (t, t)); k.e('v_exp_f32 v%d, v%d' % (t + 1, t + 1))
    k.e(pk('add', t, t, ('b', CC + 2)))
    k.e('v_rcp_f32 v%d, v%d' % (t, t)); k.e('v_rcp_f32 v%d, v%d' % (t + 1, t + 1))
    k.e(pk('mul', v, v, t))

def emit_gen(k, lines):
    for l in lines:
        k.lines.append(l); yield

def poll_loop(k, name, loads, check):
    k.e('s_mov_b32 s53, 0')
    k.wait_vm_all()
    k.label(k.L(name))
    loads()
    k.e('s_add_u32 s53, s53, 1')
    k.wait_vm_all()
    check()
    k.e('s_cbranch_vccz %s' % k.L(name + 'G'))
    k.e('s_cmp_lt_u32 s53, 50000')
    k.e('s_cbranch_scc1 %s' % k.L(name))
    k.label(k.L(name + 'G'))

K1_C = 96
K1_PART = K1_C * 1024; K1_IMG = K1_PART + 49152; K1_STAT = 156 * 1024
LDS_ALL = K1_STAT + 1024
def phase_k1(k, layer, slot=1):
    xi = 2 * layer
    map_8x4(k)
    k.stamp(0)
    h = H4(k, XF(xi), WQ, 162, [(6, 's', A1), (3, 'f', A2)], [12, 24, 36, 36, 36, 20], K1_C)
    h.prefetch_weights(PRE1)
    yield
    h.prefetch_weights(PRE2)
    k.flag_addr(79, 5 * layer - 1, 44)
    k.e('s_mul_i32 s31, s45, 576'); k.e('s_add_u32 s31, s31, 0x%x' % CSQ)
    k.e('v_lshlrev_b32 v12, 2, v14'); k.e('v_lshlrev_b32 v13, 4, v15')
    for tt in range(6): k.vmem('buffer_load_dword v%d, v12, s[8:11], s31 offen offset:%d' % (192 + tt, (3 + tt) * 64), 'cs')
    for tt in range(3): k.vmem('buffer_load_dwordx4 %s, v13, s[8:11], s31 offen offset:%d' % (vr(200 + 4 * tt), tt * 64), 'cs')
    yield
    k.stamp(6)
    stats_load(k, XS(xi))
    NM4 = 212; RS4 = 220; NM1 = 228; RS1 = 230; PK = 144; KVT = 168
    def setup():
        stats_finish(k, K1_STAT)
        k.e('v_lshlrev_b32 v12, 4, v15'); k.e('v_add_u32 v12, s30, v12')
        k.e('v_lshlrev_b32 v13, 2, v14'); k.e('v_add_u32 v13, s30, v13')
        for i in range(2):
            k.lds('ds_read_b128 %s, v12 offset:%d' % (vr(NM4 + 4 * i), 64 * i))
            k.lds('ds_read_b128 %s, v12 offset:%d' % (vr(RS4 + 4 * i), 128 + 64 * i))
            k.lds('ds_read_b32 v%d, v13 offset:%d' % (NM1 + i, 64 * i))
            k.lds('ds_read_b32 v%d, v13 offset:%d' % (RS1 + i, 128 + 64 * i))
        for q in range(4): k.e('v_mov_b32 v%d, 0x3f803f80' % (232 + q))
        for q in range(4): k.e('v_mov_b32 v%d, 0' % (8 + q))
        k.e('s_lshl_b32 s46, s22, 11'); k.e('s_add_u32 s46, s46, %d' % K1_IMG); k.e('v_add_u32 v12, s46, v1')
        k.lds('ds_write_b128 v12, v[8:11]'); k.lds('ds_write_b128 v12, v[8:11] offset:1024')
        k.e('s_mul_i32 s46, s22, 12288'); k.e('s_add_u32 s46, s46, %d' % K1_PART); k.e('v_add_u32 v236, s46, v1')
    def kv_epi():
        for tt in range(6):
            for i in range(2):
                b = A1 + (i * 6 + tt) * 4
                def one(r):
                    k.e('v_fma_f32 v%d, v%d, v%d, v%d' % (b + r, NM4 + 4 * i + r, 192 + tt, b + r))
                    k.e('v_mul_f32 v%d, v%d, v%d' % (b + r, b + r, RS4 + 4 * i + r))
                    if tt < 3: phi_ops(k, b + r, 4 + 2 * r, 5 + 2 * r, 's[%d:%d]' % (32 + 2 * r, 33 + 2 * r))
                lines = rr([capture(k, lambda r=r: one(r)) for r in range(4)])
                f = PK + tt * 4 + 2 * i
                lines.append('    v_cvt_pk_bf16_f32 v%d, v%d, v%d' % (f, b, b + 1))
                lines.append('    v_cvt_pk_bf16_f32 v%d, v%d, v%d' % (f + 1, b + 2, b + 3))
                yield from emit_gen(k, lines)
        for a in range(3):
            for b in range(4):
                T = (3 * a + b) if b < 3 else 9 + a
                k.e('v_mfma_f32_16x16x32_bf16 %s, %s, %s, 0' % (vr(A1 + 4 * T), vr(PK + 4 * a), vr(PK + 12 + 4 * b) if b < 3 else vr(232))); yield
        for _ in range(6): yield
        for T in range(12):
            k.lds('ds_write_b128 v236, %s offset:%d' % (vr(A1 + 4 * T), T * 1024)); yield
    h.run(fillers={1: (kv_epi(), 3.0)}, after_burst=setup)
    k.stamp(2)
    k.wait_lg_all()
    k.e('s_barrier')
    k.e('s_lshl_b32 s46, s22, 8')
    k.e('s_mul_i32 s50, s45, %d' % (16 * 3072)); k.e('s_add_u32 s50, s50, 0x%x' % KVP(layer))
    k.e('s_mul_i32 s51, s44, 3072'); k.e('s_add_u32 s51, s51, s50')
    k.e('v_lshlrev_b32 v4, 2, v0'); k.e('v_add_u32 v4, s46, v4')
    k.e('v_lshlrev_b32 v5, 2, v4'); k.e('v_cmp_gt_u32 vcc, 684, v4'); k.e('v_mov_b32 v6, 0x%x' % OOB); k.e('v_cndmask_b32 v5, v6, v5, vcc')
    k.e('v_min_u32 v4, 680, v4')
    def elem(c):
        B0 = 48 + c * 16
        u, q, dd, hh, row, d, e, T, lp = [B0 + x for x in range(9)]
        sm = 's[%d:%d]' % (32 + 2 * c, 33 + 2 * c)
        k.e('v_add_u32 v%d, %d, v4' % (u, c))
        k.e('v_mul_u32_u24 v%d, s41, v%d' % (q, u)); k.e('v_lshrrev_b32 v%d, 16, v%d' % (q, q))
        k.e('v_mul_u32_u24 v%d, 18, v%d' % (dd, q)); k.e('v_sub_u32 v%d, v%d, v%d' % (dd, u, dd))
        k.e('v_cmp_le_u32 %s, 19, v%d' % (sm, q)); k.e('v_cndmask_b32 v%d, 0, 1, %s' % (hh, sm))
        k.e('v_mul_u32_u24 v%d, 19, v%d' % (row, hh)); k.e('v_sub_u32 v%d, v%d, v%d' % (row, q, row))
        k.e('v_mad_u32_u24 v%d, v%d, 18, v%d' % (d, hh, dd))
        k.e('v_mad_u32_u24 v%d, v%d, 18, v%d' % (e, hh, row))
        k.e('v_cmp_eq_u32 %s, 18, v%d' % (sm, row))
        k.e('v_lshrrev_b32 v%d, 4, v%d' % (T, d))
        k.e('v_lshrrev_b32 v%d, 4, v%d' % (lp, e))
        k.e('v_mad_u32_u24 v%d, v%d, 3, v%d' % (lp, T, lp))
        k.e('v_add_u32 v%d, 9, v%d' % (T, T))
        k.e('v_cndmask_b32 v%d, v%d, v%d, %s' % (T, lp, T, sm))
        k.e('v_and_b32 v%d, 15, v%d' % (lp, e))
        k.e('v_lshlrev_b32 v%d, 10, v%d' % (T, T)); k.e('v_lshl_add_u32 v%d, v%d, 4, v%d' % (T, lp, T))
        k.e('v_bfe_u32 v%d, v%d, 2, 2' % (q, d)); k.e('v_lshl_add_u32 v%d, v%d, 8, v%d' % (T, q, T))
        k.e('v_and_b32 v%d, 3, v%d' % (dd, d)); k.e('v_lshl_add_u32 v%d, v%d, 2, v%d' % (T, dd, T))
        k.e('v_add_u32 v%d, %d, v%d' % (T, K1_PART, T))
        k.e('v_bfe_u32 v%d, v%d, 4, 1' % (row, d)); k.e('v_lshl_add_u32 v%d, v%d, 2, v%d' % (dd, row, dd)); k.e('v_lshlrev_b32 v%d, 1, v%d' % (dd, dd))
        k.e('v_lshrrev_b32 v%d, 5, v%d' % (row, d))
        k.e('v_lshrrev_b32 v%d, 4, v%d' % (e, e)); k.e('v_lshl_add_u32 v%d, v%d, 1, v%d' % (e, e, row)); k.e('v_lshlrev_b32 v%d, 10, v%d' % (e, e))
        k.e('v_lshl_add_u32 v%d, v%d, 8, v%d' % (e, q, e)); k.e('v_lshl_add_u32 v%d, v%d, 4, v%d' % (e, lp, e))
        k.e('v_lshl_add_u32 v%d, v%d, 1, v%d' % (hh, hh, row)); k.e('v_lshlrev_b32 v%d, 6, v%d' % (hh, hh)); k.e('v_lshl_add_u32 v%d, v%d, 4, v%d' % (hh, q, hh)); k.e('v_add_u32 v%d, 6144, v%d' % (hh, hh))
        k.e('v_cndmask_b32 v%d, v%d, v%d, %s' % (e, e, hh, sm)); k.e('v_add_u32 v%d, v%d, v%d' % (e, e, dd))
        k.e('v_mov_b32 v%d, 7168' % lp); k.e('v_cndmask_b32 v%d, v%d, v%d, vcc' % (e, lp, e))
        k.e('v_add_u32 v%d, %d, v%d' % (240 + c, K1_IMG, e))
    k.e('s_mov_b32 s41, 3641')
    k.lines.extend(rr([capture(k, lambda c=c: elem(c)) for c in range(4)]))
    for c in range(4):
        for w in range(4): k.lds('ds_read_b32 v%d, v%d offset:%d' % (48 + c * 16 + 10 + w, 48 + c * 16 + 7, w * 12288))
    k.wait_lg_all()
    for c in range(4):
        B0 = 48 + c * 16
        k.e('v_add_f32 v%d, v%d, v%d' % (B0 + 10, B0 + 10, B0 + 11)); k.e('v_add_f32 v%d, v%d, v%d' % (B0 + 12, B0 + 12, B0 + 13)); k.e('v_add_f32 v%d, v%d, v%d' % (8 + c, B0 + 10, B0 + 12))
    k.vmem('buffer_store_dwordx4 v[8:11], v5, s[8:11], s51 offen sc0 sc1')
    k.stamp(3)
    PQF = 144
    for tt in range(3):
        for i in range(2):
            b = A2 + (i * 3 + tt) * 4
            def one(r):
                k.e('v_fma_f32 v%d, v%d, v%d, v%d' % (b + r, NM1 + i, 200 + 4 * tt + r, b + r))
                k.e('v_mul_f32 v%d, v%d, v%d' % (b + r, b + r, RS1 + i))
                phi_ops(k, b + r, 16 + 2 * r, 17 + 2 * r, 's[%d:%d]' % (32 + 2 * r, 33 + 2 * r))
            k.lines.extend(rr([capture(k, lambda r=r: one(r)) for r in range(4)]))
            f = PQF + i * 8 + tt * 2
            k.e('v_cvt_pk_bf16_f32 v%d, v%d, v%d' % (f, b, b + 1)); k.e('v_cvt_pk_bf16_f32 v%d, v%d, v%d' % (f + 1, b + 2, b + 3))
    for i in range(2):
        k.e('v_mov_b32 v%d, 0' % (PQF + i * 8 + 6)); k.e('v_mov_b32 v%d, 0' % (PQF + i * 8 + 7))
    k.e('s_mul_i32 s46, s45, 36'); k.e('v_lshlrev_b32 v13, 2, v15'); k.e('v_add_u32 v13, s46, v13')
    for tt in range(3):
        if tt: k.e('v_add_u32 v13, 16, v13')
        fm_store_voff(k, 244 + tt, 13, 14, 8)
    k.e('v_cmp_eq_u32 vcc, 0, v15'); k.e('v_mov_b32 v8, 0x%x' % OOB); k.e('v_cndmask_b32 v246, v8, v246, vcc')
    def loads():
        for p in range(16):
            k.e('s_add_u32 s52, s50, %d' % (p * 3072))
            k.vmem('buffer_load_dwordx4 %s, v5, s[8:11], s52 offen sc0 sc1' % vr(48 + 4 * p))
    def check():
        k.e('v_max_u32 v8, v48, v49')
        for p in range(1, 32): k.e('v_max3_u32 v8, v8, v%d, v%d' % (48 + 2 * p, 49 + 2 * p))
        k.e('v_cmp_eq_u32 vcc, -1, v8')
    poll_loop(k, 'P1', loads, check)
    k.stamp(4)
    for st in (32, 16, 8, 4):
        for p in range(st): k.e('v_add_f32 v%d, v%d, v%d' % (48 + p, 48 + p, 48 + p + st))
    for c in range(4):
        k.e('v_cvt_pk_bf16_f32 v%d, v%d, v%d' % (48 + c, 48 + c, 48 + c))
        k.lds('ds_write_b16 v%d, v%d' % (240 + c, 48 + c))
    k.e('v_add_u32 v12, %d, v1' % K1_IMG); k.e('v_lshlrev_b32 v13, 4, v15'); k.e('v_add_u32 v13, %d, v13' % (K1_IMG + 6144))
    k.e('s_lshl_b32 s46, s44, 3'); k.e('s_lshl_b32 s47, s22, 1'); k.e('s_add_u32 s46, s46, s47')
    k.e('s_mul_i32 s46, s46, 18432'); k.e('s_add_u32 s46, s46, 0x%x' % OB(layer)); k.e('s_add_u32 s47, s46, 18432')
    k.e('s_mov_b32 s32, 0xffff'); k.e('s_mov_b32 s33, 0')
    k.wait_lg_all()
    k.e('s_barrier')
    for f in range(4): k.lds('ds_read_b128 %s, v13 offset:%d' % (vr(40 + 4 * f), f * 64))
    for f in range(6): k.lds('ds_read_b128 %s, v12 offset:%d' % (vr(16 + 4 * f), f * 1024))
    k.wait_lg_all()
    for kq in range(2):
        for i in range(2):
            for hh in range(2):
                d = 60 + (i * 2 + hh) * 4
                k.e('v_mfma_f32_16x16x32_bf16 %s, %s, %s, %s' % (vr(d), vr(40 + (hh * 2 + kq) * 4), vr(PQF + i * 8 + kq * 4), vr(d) if kq else '0'))
            for b in range(3):
                d = 80 + (i * 3 + b) * 4
                k.e('v_mfma_f32_16x16x32_bf16 %s, %s, %s, %s' % (vr(d), vr(16 + (b * 2 + kq) * 4), vr(PQF + i * 8 + kq * 4), vr(d) if kq else '0'))
    for i in range(2):
        r0 = 60 + i * 8; r1 = r0 + 4
        for rr_ in (r0, r1):
            k.e('v_add_f32 v%d, %s, v%d' % (rr_, f32(1e-6), rr_)); k.e('v_rcp_f32 v%d, v%d' % (rr_, rr_))
        k.e('v_cndmask_b32 v%d, v%d, v%d, s[32:33]' % (r0 + 1, r1, r0))
        for b in range(3):
            d = 80 + (i * 3 + b) * 4
            for r in range(4):
                sel = r0 if b == 0 else (r1 if b == 2 or r >= 2 else r0 + 1)
                k.e('v_mul_f32 v%d, v%d, v%d' % (d + r, d + r, sel))
            k.e('v_cvt_pk_bf16_f32 v%d, v%d, v%d' % (d, d, d + 1)); k.e('v_cvt_pk_bf16_f32 v%d, v%d, v%d' % (d + 1, d + 2, d + 3))
            k.st('buffer_store_dwordx2 %s, v%d, s[8:11], s%d offen' % (vr(d, 2), 244 + b, 46 + i))
    k.flag_addr(78, 5 * layer, 44, 45)
    k.dump(slot, 6)

K3_C = 144
K3_STAT = K1_STAT
PKZ2 = int(os.environ.get('PKZ2', '0'))
def phase_k3(k, layer, slot=3, per=float(os.environ.get('PER3', '3.0'))):
    xi = 2 * layer + 1
    map_8x4(k)
    k.stamp(0)
    h = H4(k, XF(xi), WI, 324, [(9, 's', A1), (9, 'f', A2)], [12, 24] + [36] * 8, K3_C)
    h.prefetch_weights(PRE1)
    yield
    h.prefetch_weights(PRE2)
    k.flag_addr(79, 5 * layer + 1, 44)
    k.e('s_mul_i32 s31, s45, 1152'); k.e('s_add_u32 s31, s31, 0x%x' % CSI)
    k.e('v_lshlrev_b32 v12, 2, v14')
    for t in range(9): k.vmem('buffer_load_dword v%d, v12, s[8:11], s31 offen offset:%d' % (192 + t, t * 64), 'cs')
    yield
    k.stamp(6)
    stats_load(k, XS(xi))
    NM4 = 202; RS4 = 210; NM1 = 218; RS1 = 220; C1 = 222; SQ = 224; CC = 248
    def setup():
        stats_finish(k, K3_STAT)
        k.e('v_lshlrev_b32 v252, 4, v15'); k.e('v_add_u32 v252, s30, v252')
        k.e('v_lshlrev_b32 v13, 2, v14'); k.e('v_add_u32 v13, s30, v13')
        for i in range(2):
            k.lds('ds_read_b128 %s, v252 offset:%d' % (vr(NM4 + 4 * i), 64 * i))
            k.lds('ds_read_b128 %s, v252 offset:%d' % (vr(RS4 + 4 * i), 128 + 64 * i))
            k.lds('ds_read_b32 v%d, v13 offset:%d' % (NM1 + i, 64 * i))
            k.lds('ds_read_b32 v%d, v13 offset:%d' % (RS1 + i, 128 + 64 * i))
        k.e('v_mov_b32 v%d, %s' % (C1, f32(GC1))); k.e('v_mov_b32 v%d, %s' % (CC, f32(GC1))); k.e('v_mov_b32 v%d, %s' % (CC + 1, f32(GC0))); k.e('v_mov_b32 v%d, 1.0' % (CC + 2))
        for q in range(16): k.e('v_mov_b32 v%d, 0' % (SQ + q))
        k.e('s_lshl_b32 s50, s44, 2'); k.e('s_add_u32 s50, s50, s22')
        k.e('s_lshl_b32 s51, s50, 12'); k.e('s_add_u32 s51, s51, 0x%x' % US(layer))
        k.e('s_lshl_b32 s52, s45, 8'); k.e('s_add_u32 s52, s52, s51')
    def z2_epi():
        for t in range(9):
            def two(i, r):
                b = A1 + (i * 9 + t) * 4 + r
                if PKZ2:
                    k.e(pk('fma', b, NM4 + 4 * i + r, ('b', 192 + t), b))
                    k.e(pk('mul', b, b, RS4 + 4 * i + r))
                    gelu_pk(k, b, 240 + i * 4 + r, CC)
                    k.e(pk('add', SQ + i * 4 + r, SQ + i * 4 + r, b)); k.e(pk('fma', SQ + 8 + i * 4 + r, b, b, SQ + 8 + i * 4 + r))
                else:
                    for q in range(2):
                        k.e('v_fma_f32 v%d, v%d, v%d, v%d' % (b + q, NM4 + 4 * i + r + q, 192 + t, b + q))
                        k.e('v_mul_f32 v%d, v%d, v%d' % (b + q, b + q, RS4 + 4 * i + r + q))
                        gelu_ops(k, b + q, 240 + i * 4 + r + q, C1)
                        k.e('v_add_f32 v%d, v%d, v%d' % (SQ + i * 4 + r + q, SQ + i * 4 + r + q, b + q)); k.e('v_fmac_f32 v%d, v%d, v%d' % (SQ + 8 + i * 4 + r + q, b + q, b + q))
            yield from emit_gen(k, rr([capture(k, lambda i=i, r=r: two(i, r)) for i in range(2) for r in (0, 2)]))
        for sh in (8, 4, 2, 1):
            for q in range(16):
                k.e('v_add_f32_dpp v%d, v%d, v%d row_ror:%d row_mask:0xf bank_mask:0xf' % (SQ + q, SQ + q, SQ + q, sh)); yield
        k.e('s_mov_b32 exec_lo, 0x00010001'); k.e('s_mov_b32 exec_hi, 0x00010001')
        for i in range(2):
            k.lds('ds_write_b128 v252, %s offset:%d' % (vr(SQ + 4 * i), 64 * i))
            k.lds('ds_write_b128 v252, %s offset:%d' % (vr(SQ + 8 + 4 * i), 128 + 64 * i))
        k.e('s_mov_b64 exec, -1'); yield
        k.e('v_lshlrev_b32 v5, 2, v0'); k.e('v_and_b32 v4, 1, v0'); k.e('v_lshlrev_b32 v4, 7, v4'); k.e('v_lshrrev_b32 v6, 1, v0'); k.e('v_lshl_add_u32 v4, v6, 2, v4'); k.e('v_add_u32 v4, s30, v4'); yield
        k.lds('ds_read_b32 v6, v4', 'pub'); yield
        for _ in range(8): yield
        k.wait_lg('pub')
        k.vmem('buffer_store_dword v6, v5, s[8:11], s52 offen sc0 sc1'); yield
        k.e('v_lshlrev_b32 v13, 4, v15'); yield
    h.run(fillers={1: (z2_epi(), per)}, after_burst=setup)
    k.stamp(2)
    CS1 = lambda t: (16 + 4 * t) if t < 8 else 192
    for t in range(9): k.vmem('buffer_load_dwordx4 %s, v13, s[8:11], s31 offen offset:%d' % (vr(CS1(t)), 576 + t * 64), 'cs1')
    def loads():
        for q in range(4): k.vmem('buffer_load_dwordx4 %s, v1, s[8:11], s51 offen offset:%d sc0 sc1' % (vr(SQ + 4 * q), q * 1024))
    def check():
        k.e('v_min_f32 v240, v%d, v%d' % (SQ + 1, SQ + 3))
        for q in range(1, 4): k.e('v_min3_f32 v240, v240, v%d, v%d' % (SQ + 1 + 4 * q, SQ + 3 + 4 * q))
        k.e('v_cmp_gt_f32 vcc, 0, v240')
    poll_loop(k, 'P3', loads, check)
    k.stamp(3)
    for q in range(1, 4):
        for c in range(4): k.e('v_add_f32 v%d, v%d, v%d' % (SQ + c, SQ + c, SQ + 4 * q + c))
    k.lines.extend(rr([capture(k, lambda c=c: rowsum_g(k, SQ + c, SQ + 4 + c)) for c in range(4)]))
    for c in range(2):
        S = SQ + 2 * c; Q = S + 1
        k.e('v_mul_f32 v%d, %s, v%d' % (SQ + 8 + c, f32(-1.0 / 2304), S))
        k.e('v_mul_f32 v%d, %s, v%d' % (Q, f32(1.0 / 2304), Q))
        k.e('v_mul_f32 v%d, v%d, v%d' % (S, SQ + 8 + c, SQ + 8 + c)); k.e('v_sub_f32 v%d, v%d, v%d' % (Q, Q, S)); k.e('v_max_f32 v%d, 0, v%d' % (Q, Q))
        k.e('v_add_f32 v%d, %s, v%d' % (Q, f32(1e-5), Q)); k.e('v_rsq_f32 v%d, v%d' % (SQ + 10 + c, Q))
    k.e('v_lshlrev_b32 v4, 3, v14'); k.e('v_add_u32 v4, s30, v4')
    k.e('s_mov_b64 exec, 0xffff')
    k.lds('ds_write_b64 v4, %s' % vr(SQ + 8, 2)); k.lds('ds_write_b64 v4, %s offset:128' % vr(SQ + 10, 2))
    k.e('s_mov_b64 exec, -1')
    for i in range(2):
        k.lds('ds_read_b128 %s, v252 offset:%d' % (vr(NM4 + 4 * i), 64 * i))
        k.lds('ds_read_b128 %s, v252 offset:%d' % (vr(RS4 + 4 * i), 128 + 64 * i))
    k.e('v_lshrrev_b32 v4, 1, v15'); k.e('v_lshl_add_u32 v4, v4, 4, v14'); k.e('v_lshlrev_b32 v4, 4, v4'); k.e('v_and_b32 v5, 1, v15'); k.e('v_lshl_add_u32 v4, v5, 3, v4')
    k.e('s_lshl_b32 s46, s45, 6'); k.e('s_add_u32 s46, s46, s50'); k.e('s_mul_i32 s46, s46, 9216'); k.e('s_add_u32 s34, s46, 0x%x' % Z2(layer)); k.e('s_add_u32 s35, s34, 4096'); k.e('s_add_u32 s36, s34, 8192')
    k.wait_lg_all()
    for t in range(9):
        for i in range(2):
            b = A1 + (i * 9 + t) * 4
            for r in (0, 2):
                k.e('v_pk_add_f32 %s, %s, %s' % (vr(b + r, 2), vr(b + r, 2), vr(NM4 + 4 * i + r, 2)))
                k.e('v_pk_mul_f32 %s, %s, %s' % (vr(b + r, 2), vr(b + r, 2), vr(RS4 + 4 * i + r, 2)))
            k.e('v_cvt_pk_bf16_f32 v%d, v%d, v%d' % (b, b, b + 1)); k.e('v_cvt_pk_bf16_f32 v%d, v%d, v%d' % (b + 1, b + 2, b + 3))
            k.st('buffer_store_dwordx2 %s, v4, s[8:11], s%d offen offset:%d' % (vr(b, 2), 34 + t // 4, (t % 4) * 1024 + i * 512))
    k.stamp(4)
    k.flag_addr(78, 5 * layer + 2, 45, 44)
    k.e('s_lshl_b32 s46, s44, 4'); k.e('s_add_u32 s46, s46, s45'); k.e('s_lshl_b32 s46, s46, 3'); k.e('s_lshl_b32 s47, s22, 1'); k.e('s_add_u32 s46, s46, s47')
    k.e('s_mul_i32 s46, s46, 4608'); k.e('s_add_u32 s34, s46, 0x%x' % Z1(layer)); k.e('s_add_u32 s35, s34, 4096'); k.e('s_add_u32 s36, s34, 8192')
    k.e('v_lshlrev_b32 v9, 3, v0')
    for t in range(9):
        if FUSED and t == 3: k.signal()
        def two(i, r):
            b = A2 + (i * 9 + t) * 4 + r
            k.e(pk('fma', b, ('b', NM1 + i), CS1(t) + r, b))
            k.e(pk('mul', b, b, ('b', RS1 + i)))
            gelu_pk(k, b, 240 + i * 4 + r, CC)
        k.lines.extend(rr([capture(k, lambda i=i, r=r: two(i, r)) for i in range(2) for r in (0, 2)]))
        for i in range(2):
            b = A2 + (i * 9 + t) * 4
            k.e('v_cvt_pk_bf16_f32 v%d, v%d, v%d' % (b, b, b + 1)); k.e('v_cvt_pk_bf16_f32 v%d, v%d, v%d' % (b + 1, b + 2, b + 3))
            tt = i * 9 + t
            if FUSED:
                k.e('v_accvgpr_write_b32 a%d, v%d' % (216 + 2 * tt, b)); k.e('v_accvgpr_write_b32 a%d, v%d' % (217 + 2 * tt, b + 1))
            else: k.st('buffer_store_dwordx2 %s, v9, s[8:11], s%d offen offset:%d' % (vr(b, 2), 34 + tt // 8, (tt % 8) * 512))
    k.dump(slot, 6)
```

```python
XF   = 0x0
XS   = 0x240000
WQ   = 0x280000
CSQ  = 0x510000
PQ   = 0x520000
KVT  = 0x7A0000
WO   = 0xAA0000
WI   = 0xB60000
CSI  = 0x1070000
Z2   = 0x1080000
Z1   = 0x1980000
WS   = 0x2280000
Y    = 0x2A80000
WOUT = 0x3380000
US   = 0x3610000
WS_BYTES = 0x10000000
KVT_BYTES = 608 * 640 * 4
OOB = 0x7ff00000
KVP = KVT
OB = PQ
```

```python
from asmlib import K as K0, assemble_file
import hz
from layout import *

import os
PROF = int(os.environ.get('PROF', '0'))
PROF_BASE = 0x8000000
STFLAG = os.environ.get('STFLAG', '')
class K(K0):
    def vmem(self, s, tag=None):
        if STFLAG and s.startswith('buffer_store') and ' sc' not in s: s = s + ' ' + STFLAG
        K0.vmem(self, s, tag)
    def stamp(self, n):
        if not PROF: return
        self.e('s_memrealtime s[%d:%d]' % (60 + 2 * n, 61 + 2 * n))
        self.wait_lg_all()
    def dump(self, slot, nst):
        if not PROF: return
        self.e('s_mov_b64 exec, -1')
        self.wait_vm_all()
        self.stamp(nst - 1)
        self.e('s_lshl_b32 s46, s2, 3'); self.e('s_add_u32 s46, s46, s22'); self.e('s_lshl_b32 s46, s46, 6')
        self.e('s_add_u32 s46, s46, 0x%x' % (PROF_BASE + slot * 0x40000))
        self.e('v_mov_b32 v1, 0')
        for q in range(nst):
            self.e('v_mov_b32 v2, s%d' % (60 + 2 * q))
            self.e('buffer_store_dword v2, v1, s[8:11], s46 offen offset:%d' % (4 * q))
        self.e('v_mov_b32 v2, s76')
        self.e('buffer_store_dword v2, v1, s[8:11], s46 offen offset:56')
        self.wait_vm_all()
    def text(self, vgprs, agprs=0, sgprs=102, wgy=False):
        self.lines = hz.fix(self.lines)
        return K0.text(self, vgprs, agprs, sgprs, wgy)
    def srd(self, d, lo, size):
        self.e('s_mov_b32 s%d, s%d' % (d, lo))
        self.e('s_and_b32 s%d, s%d, 0xffff' % (d + 1, lo + 1))
        self.e('s_mov_b32 s%d, 0x%x' % (d + 2, size))
        self.e('s_mov_b32 s%d, 0x00020000' % (d + 3))
    def start(self, nwg, ptrs):
        self.end = 'END_' + self.name
        if PROF: self.e('s_memrealtime s[76:77]')
        self.e('s_cmp_ge_u32 s2, %d' % nwg)
        self.e('s_cbranch_scc1 %s' % self.end)
        allp = [(10, 8, WS_BYTES)] + list(ptrs)
        for i, (slot, d, size) in enumerate(allp):
            self.e('s_load_dwordx2 s[%d:%d], s[0:1], %d' % (80 + 2 * i, 81 + 2 * i, slot * 8))
        self.e('v_lshrrev_b32 v1, 6, v0')
        self.e('v_readfirstlane_b32 s22, v1')
        self.e('v_and_b32 v0, 63, v0')
        self.e('s_waitcnt lgkmcnt(0)')
        for i, (slot, d, size) in enumerate(allp):
            self.srd(d, 80 + 2 * i, size)
    def setexec(self, lanes):
        m = (1 << lanes) - 1
        self.e('s_mov_b32 exec_lo, 0x%x' % (m & 0xffffffff)); self.e('s_mov_b32 exec_hi, 0x%x' % (m >> 32))
    def finish(self):
        self.label(self.end)

def vr(b, n=4): return 'v[%d:%d]' % (b, b + n - 1)
def ar(b, n=4): return 'a[%d:%d]' % (b, b + n - 1)
def f32(x):
    import struct
    return '0x%08x' % struct.unpack('<I', struct.pack('<f', x))[0]
```

```python
import sys
from lib import *
import k_p0, phases, k_k4, k_k5
from phases import FUSED, LDS_ALL, SIDE
HDR = open('interleave_layers__linear_attn_block__mixer_gmlp__prompt.s.ref').read().split('\n')
hdr = [l[2:] for l in HDR if l.startswith(';') and '@launch' not in l and 'Override' not in l and 'grid=ceil' not in l]
PTRS = [(6, 12, 4096), (8, 16, 2048 * 576 * 2)]
def plist():
    out = []
    for l in range(2):
        o = 5 * l
        out.append(('k1_%d' % l, lambda k, l=l, o=o: phases.phase_k1(k, l, o + 1)))
        out.append(('k2_%d' % l, lambda k, l=l, o=o: k_k5.phase_k5(k, 5 * l + 1, OB(l), 18, WO, 2 * l, 2 * l + 1, o + 2)))
        out.append(('k3_%d' % l, lambda k, l=l, o=o: phases.phase_k3(k, l, o + 3)))
        out.append(('k4_%d' % l, lambda k, l=l, o=o: k_k4.phase_k4(k, l, o + 4)))
        out.append(('k5_%d' % l, lambda k, l=l, o=o: k_k5.phase_k5(k, 5 * l + 4, Y(l), 72, WOUT, 2 * l + 1, 2 if l == 0 else None, o + 5)))
    return out
parts = [k_p0.gen_p0(not SIDE)]
if not FUSED:
    for name, fn in plist():
        k = K(name + '_kernel'); k.pfx = name
        k.start(256, PTRS)
        k.code_prefetch(k.end)
        for _ in fn(k): pass
        k.finish()
        parts.append((k.text(256, agprs=256), (name + '_kernel', (256, 1, 1), (256, 1, 1), LDS_ALL)))
else:
    k = K('mega_kernel')
    k.start(256, PTRS)
    k.e('s_load_dwordx4 s[84:87], s[0:1], 24'); k.e('s_load_dwordx2 s[88:89], s[0:1], 40'); k.e('s_load_dwordx2 s[98:99], s[0:1], 56'); k.e('s_waitcnt lgkmcnt(0)')
    pl = plist()
    k.code_prefetch('PH_' + pl[1][0])
    for n, (name, fn) in enumerate(pl):
        k.pfx = name
        k.lines.append('PH_%s:;nohz' % name)
        g = fn(k)
        next(g)
        if n > 0 and not pl[n - 1][0].startswith('k3'): k.signal()
        if n > 0: k.dep_issue()
        next(g)
        if n + 1 < len(pl):
            k.code_prefetch('PH_' + pl[n + 2][0] if n + 2 < len(pl) else k.end, startlabel='PH_' + pl[n + 1][0])
        if n > 0: k.depwait()
        for _ in g: pass
    k.finish()
    parts.append((k.text(256, agprs=256), ('mega_kernel', (256, 1, 1), (256, 1, 1), LDS_ALL)))
open(sys.argv[1], 'w').write(assemble_file(hdr, [p[1] for p in parts], [p[0] for p in parts]))
```

```python
from lib import *
SKEW = int(os.environ.get('SKEW', '0'))
BR = 16; NR = 8; D = 6

def stats_load(k, xs):
    k.e('v_and_b32 v12, 31, v0'); k.e('v_lshlrev_b32 v12, 3, v12'); k.e('v_lshrrev_b32 v13, 5, v0'); k.e('v_lshl_add_u32 v12, v13, 16, v12')
    k.e('s_lshl_b32 s46, s44, 10'); k.e('s_lshl_b32 s47, s22, 8'); k.e('s_add_u32 s46, s46, s47'); k.e('s_add_u32 s46, s46, 0x%x' % xs)
    for q in range(4):
        if q: k.e('s_add_u32 s46, s46, 16384')
        k.vmem('buffer_load_dwordx2 v[%d:%d], v12, s[8:11], s46 offen sc1' % (4 + 2 * q, 5 + 2 * q), 'xs')

def stats_finish(k, stat_base, n=576.0):
    k.wait_vm('xs')
    k.e('v_add_f32 v4, v4, v6'); k.e('v_add_f32 v8, v8, v10'); k.e('v_add_f32 v4, v4, v8')
    k.e('v_add_f32 v5, v5, v7'); k.e('v_add_f32 v9, v9, v11'); k.e('v_add_f32 v5, v5, v9')
    for vv in (4, 5):
        k.e('v_mov_b32 v6, v%d' % vv); k.e('v_permlane32_swap_b32 v%d, v6' % vv); k.e('v_add_f32 v%d, v%d, v6' % (vv, vv))
    k.e('v_mul_f32 v4, %s, v4' % f32(-1.0 / n))
    k.e('v_mul_f32 v5, %s, v5' % f32(1.0 / n))
    k.e('v_mul_f32 v6, v4, v4'); k.e('v_sub_f32 v5, v5, v6'); k.e('v_max_f32 v5, 0, v5')
    k.e('v_add_f32 v5, %s, v5' % f32(1e-5)); k.e('v_rsq_f32 v5, v5')
    k.e('v_cmp_gt_u32 vcc, 32, v0'); k.e('v_cndmask_b32 v4, v5, v4, vcc')
    k.e('s_lshl_b32 s30, s22, 8'); k.e('s_add_u32 s30, s30, %d' % stat_base)
    k.e('v_lshlrev_b32 v6, 2, v0'); k.e('v_add_u32 v6, s30, v6')
    k.lds('ds_write_b32 v6, v4')

class H4:
    def __init__(self, k, xf, wbase, panel_frags, passes, macros, C, burst=14, pace=2):
        self.k = k; self.passes = passes; self.C = C; self.burst = burst; self.pace = pace
        self.groups = [(p, ks, t) for p, (nt, o, a) in enumerate(passes) for ks in range(18) for t in range(nt)]
        self.NG = len(self.groups)
        self.mstart = []; s = 0
        for g in macros: self.mstart.append(s); s += g
        assert s >= self.NG and all(g % 4 == 0 for g in macros)
        self.tot = s
        self.macro_of = {}
        for m, st in enumerate(self.mstart):
            for f in range(st, st + macros[m]): self.macro_of[f] = m
        k.e('v_add_u32 v2, 65536, v1'); k.e('v_add_u32 v3, 131072, v1')
        k.e('s_lshl_b32 s25, s22, 10')
        k.e('s_mul_i32 s26, s45, %d' % (panel_frags * 1024)); k.e('s_add_u32 s26, s26, 0x%x' % wbase); k.e('s_add_u32 s26, s26, s25')
        k.e('v_add_u32 v253, 4096, v1'); k.e('v_add_u32 v254, 8192, v1'); k.e('v_add_u32 v255, 12288, v1')
        k.e('s_lshl_b32 s46, s44, 3'); k.e('s_lshl_b32 s47, s22, 1'); k.e('s_add_u32 s46, s46, s47')
        k.e('s_mul_i32 s24, s46, 18432'); k.e('s_add_u32 s24, s24, 0x%x' % xf)
        k.e('s_add_u32 s27, s24, 18432'); k.e('s_add_u32 s29, s24, 16384'); k.e('s_add_u32 s21, s27, 16384')
        self.dbase = -1
        ops = []
        for q in range(0, self.tot, 4): ops.append((max(self.mstart[self.macro_of[q]] - D, 0), 0, ('d', q)))
        nt0 = passes[0][0]
        for ks in range(18):
            for i in range(2): ops.append((ks * nt0, 1, ('a', ks, i)))
        ops.sort(key=lambda x: (x[0], x[1]))
        self.dops = [o for o in ops if o[2][0] == 'd']
        self.ops = ops
        self.limit = C
        self.hook = None
    def issue(self, op):
        k = self.k
        if os.environ.get('H4NOD') and op[0] == 'd' and op[1] >= 96: return
        if os.environ.get('H4NOA') and op[0] == 'a': return
        if op[0] == 'd':
            q = op[1]
            k.e('s_add_u32 m0, s25, %d' % ((q % self.C) * 1024))
            if self.dbase != q // 16:
                self.dbase = q // 16; k.e('s_add_u32 s28, s26, %d' % (q // 16 * 16384))
            k.vmem('buffer_load_dwordx4 v%d, s[8:11], s28 offen sc1 lds' % [1, 253, 254, 255][(q % 16) // 4], ('D', self.macro_of[q]))
        else:
            _, ks, i = op
            sreg = [[24, 27], [29, 21]][ks // 16][i]
            k.vmem('buffer_load_dwordx4 %s, v%d, s[8:11], s%d offen offset:%d sc1' % (ar((ks * 2 + i) * 4), [1, 253, 254, 255][(ks % 16) // 4], sreg, (ks % 4) * 1024), ('A', ks))
    def pump(self, n=1, weights_only=False, upto=None):
        done = 0; i = 0
        while done < n and i < len(self.ops):
            need, _, op = self.ops[i]
            if upto is not None and need > upto: break
            if (op[0] == 'd' and op[1] + 4 > self.limit) or (weights_only and op[0] == 'a'): i += 1; continue
            self.issue(op); self.ops.pop(i); done += 1
    def prefetch_weights(self, n): self.pump(n, weights_only=True)
    def run(self, fillers=None, after_burst=None, mid=None, skip=2):
        k = self.k
        self.limit = self.C
        self.pump(self.burst)
        if after_burst: after_burst()
        k.wait_lg_all()
        Bq = lambda g: vr(BR + (g % NR) * 4)
        def rd(g):
            if g in self.mstart:
                m = self.mstart.index(g)
                self.pump(100, upto=g)
                assert not any(o[2][0] == 'd' and self.macro_of[o[2][1]] <= m for o in self.ops)
                k.wait_vm(('D', m))
                if not (os.environ.get('H4NOB') and m): k.e('s_barrier')
                if m == 0: k.stamp(1)
                if SKEW:
                    lb = k.newlabel('SK')
                    k.e('s_mul_i32 s20, s22, %d' % SKEW)
                    k.lines.append(lb + ':;nohz')
                    k.e('s_sub_u32 s20, s20, 1'); k.e('s_cbranch_scc0 %s' % lb)
                self.limit = max(self.limit, ((g - D - 4) // 4) * 4 + self.C)
            off = (g % self.C) * 1024
            qq, o = divmod(off, 65536)
            k.lds('ds_read_b128 %s, v%d offset:%d' % (Bq(g), 1 + qq, o), ('B', g))
        for g in range(D): rd(g)
        credit = 0.0
        for g, (p, ks, t) in enumerate(self.groups):
            nt, orient, ab = self.passes[p]
            if p == 1 and ks == 0 and t == 0:
                k.stamp(7)
                if mid: mid()
            if g + D < self.NG: rd(g + D)
            if g % self.pace == 0: self.pump(1)
            if self.hook and all(o[2][0] == 'd' and o[0] >= 130 for o in self.ops):
                self.hook(); self.hook = None
            if p == 0 and t == 0:
                self.pump(100, upto=g)
                k.wait_vm(('A', ks))
            if g % 2 == 0: k.wait_lg(('B', min(g + 1, self.NG - 1)))
            k.wait_lg(('B', g))
            for i in range(2):
                acc = vr(ab + (i * nt + t) * 4)
                c = acc if ks else '0'
                A = ar((ks * 2 + i) * 4)
                if orient == 's': k.e('v_mfma_f32_16x16x32_bf16 %s, %s, %s, %s' % (acc, A, Bq(g), c))
                else: k.e('v_mfma_f32_16x16x32_bf16 %s, %s, %s, %s' % (acc, Bq(g), A, c))
                if fillers and p in fillers and not (ks == 0 and t < skip):
                    gen, per = fillers[p]
                    credit += per
                    while credit >= 1:
                        credit -= 1
                        next(gen, None)
        if fillers:
            for gen, per in fillers.values():
                for _ in gen: pass
        assert not self.ops, self.ops
```

```python
from lib import *
from phases import FUSED, DEFER, SIDE, gelu_ops, GC1, pk
import side

K4_LDS = 2 * 73728
def phase_k4(k, layer, slot=4):
    map_8x4(k)
    NS = 16; T = 3
    for q in range(1, 4): k.e('v_add_u32 v%d, %d, v1' % (1 + q, 4096 * q))
    for i in range(8):
        k.e('s_lshl_b32 s46, s22, 1'); k.e('s_add_u32 s46, s46, %d' % i); k.e('s_and_b32 s46, s46, 7')
        k.e('s_lshl_b32 s47, s44, 3'); k.e('s_add_u32 s46, s46, s47'); k.e('s_lshl_b32 s46, s46, 16')
        k.e('s_lshl_b32 s47, s22, 14'); k.e('s_add_u32 s46, s46, s47'); k.e('s_add_u32 s%d, s46, 0x%x' % (24 + i, WS))
    k.e('s_lshl_b32 s46, s45, 6'); k.e('s_lshl_b32 s47, s22, 4'); k.e('s_add_u32 s46, s46, s47'); k.e('s_mul_i32 s32, s46, 9216'); k.e('s_add_u32 s32, s32, 0x%x' % Z2(layer))
    k.stamp(0)
    ACC0 = 184
    AF = 16
    BF = 64
    TMP = 172
    def acc(i, j):
        if i < 2: return vr(ACC0 + (i * 9 + j) * 4)
        return ar(((i - 2) * 9 + j) * 4)
    B = lambda n, j: vr(BF + (n % 3) * 36 + 4 * j)
    aslot = {}
    def ldA(i, n, slot):
        aslot[(i, n)] = slot
        k.vmem('buffer_load_dwordx4 %s, v%d, s[8:11], s%d offen offset:%d sc1' % (vr(AF + 4 * slot), 1 + n // 4, 24 + i, (n % 4) * 1024), ('A', i, n))
    A = lambda i, n: vr(AF + 4 * aslot[(i, n)])
    def ldB(j, n):
        if j % 4 == 0: k.e('s_add_u32 s33, s32, %d' % (n * 9216 + j * 1024))
        k.vmem('buffer_load_dwordx4 %s, v1, s[8:11], s33 offen offset:%d sc1' % (B(n, j), (j % 4) * 1024), ('B', j, n))
    def mfma(i, j, n):
        k.wait_vm(('A', i, n)); k.wait_vm(('B', j, n))
        k.e('v_mfma_f32_16x16x32_bf16 %s, %s, %s, %s' % (acc(i, j), B(n, j), A(i, n), acc(i, j) if n else '0'))
    if SIDE and layer == 0: side.wait(k, 64, 2)
    for i in range(0, 8): ldA(i, 0, i)
    yield
    k.flag_addr(79, 5 * layer + 2, 45)
    k.e('v_lshlrev_b32 v12, 1, v14'); k.e('s_lshl_b32 s46, s44, 8'); k.e('s_lshl_b32 s47, s22, 6'); k.e('s_add_u32 s46, s46, s47')
    for i in range(2): k.vmem('buffer_load_ushort v%d, v12, s[12:15], s46 offen offset:%d' % (10 + i, 32 * i), 'bias')
    for b in range(1, 4):
        k.e('s_add_u32 s46, s22, %d' % b); k.e('s_and_b32 s46, s46, 3'); k.e('s_mul_i32 s46, s46, 18432')
        k.e('s_add_u32 s46, s46, %d' % (73728 if b == 2 else 0))
        k.e('v_add_u32 v%d, s46, v1' % (4 + b))
    k.e('s_mul_i32 s46, s22, 18432'); k.e('v_add_u32 v8, s46, v1'); k.e('v_add_u32 v9, 73728, v8')
    yield
    k.stamp(6)
    for j in range(9): ldB(j, 0)
    NM = NS - T
    def z1_gelu():
        k.e('v_mov_b32 v13, %s' % f32(GC1)); yield
        for q0 in range(0, 36, 2):
            def one(c):
                a = 216 + q0 + c; t = TMP + 6 * c
                k.e('v_accvgpr_read_b32 v%d, a%d' % (t + 4, a))
                k.e('v_lshlrev_b32 v%d, 16, v%d' % (t, t + 4)); k.e('v_and_b32 v%d, 0xffff0000, v%d' % (t + 1, t + 4))
                L = rr([capture(k, lambda e=e: gelu_ops(k, t + e, t + 2 + e, 13)) for e in range(2)])
                k.lines.extend(L)
                k.e('v_cvt_pk_bf16_f32 v%d, v%d, v%d' % (t + 4, t, t + 1))
                k.e('v_accvgpr_write_b32 a%d, v%d' % (a, t + 4))
            for l in rr([capture(k, lambda c=c: one(c)) for c in range(2)]):
                k.lines.append(l); yield
    zg = z1_gelu() if DEFER else iter(())
    forder = [(i, n) for b in (1, 2, 3, 0) for i in (2 * b, 2 * b + 1) for n in range(NM, NS)]
    for n in range(NM - 1):
        for i in range(8):
            for j in range(9):
                mfma(i, j, n)
                next(zg, None)
                if i < 3 and j % 3 == 1: ldB(i * 3 + j // 3, n + 1)
                if n == NM - 2 and 3 <= i < 6 and j % 3 == 1: ldB((i - 3) * 3 + j // 3, n + 2)
            ldA(i, n + 1, i)
            if n == NM - 2 and i >= 4: ldA(*forder[i - 4], 4 + i)
    n = NM - 1
    c = 0
    for i in (2, 3):
        for j in range(9):
            mfma(i, j, n); next(zg, None)
            if c % 2 == 0: ldB(c // 2, n + 2)
            c += 1
        ldA(*forder[4 + i - 2], i)
    for q in range(4): ldA(*forder[q], 8 + q) if False else None
    rest = (4, 5, 6, 7, 0, 1)
    for j in range(9):
        for i in rest:
            mfma(i, j, n); next(zg, None)
        ldB(j, NS - 1)
    for q, i in enumerate(rest): ldA(*forder[6 + q], i)
    for _ in zg: pass
    nextA = 12
    k.stamp(1)
    k.e('s_lshl_b32 s46, s44, 4'); k.e('s_add_u32 s46, s46, s45'); k.e('s_lshl_b32 s46, s46, 3'); k.e('s_lshl_b32 s47, s22, 1'); k.e('s_add_u32 s46, s46, s47')
    k.e('s_mul_i32 s34, s46, 4608'); k.e('s_add_u32 s34, s34, 0x%x' % Z1(layer))
    k.e('v_lshlrev_b32 v13, 3, v0')
    def phase(b, side, pre_tile=None):
        nonlocal nextA
        ms = [(i, n, j) for i in (2 * b, 2 * b + 1) for n in range(NM, NS) for j in range(9)]
        if pre_tile: ms = [(i, n, j) for i in (2 * b, 2 * b + 1) for j in range(9) for n in range(NM, NS)]
        tot = len(ms); si = 0
        done = {}
        for c, (i, n, j) in enumerate(ms):
            if pre_tile and n == NM: pre_tile(i, j)
            mfma(i, j, n)
            done[(i, n)] = done.get((i, n), 0) + 1
            if done[(i, n)] == 9 and nextA < len(forder):
                ldA(*forder[nextA], aslot[(i, n)]); nextA += 1
            while si < len(side) and si * tot <= c * len(side):
                side[si](); si += 1
        while si < len(side): side[si](); si += 1
    def writes(b):
        return [(lambda t=t: k.lds('ds_write_b128 v%d, %s offset:%d' % (4 + b, acc(2 * b + t // 9, t % 9), t * 1024))) for t in range(18)]
    def readadd(vaddr):
        ops = []
        for t in range(18):
            tm = TMP + (t % 3) * 4
            ops.append(lambda t=t, tm=tm: k.lds('ds_read_b128 %s, v%d offset:%d' % (vr(tm), vaddr, t * 1024), ('R', t)))
            if t >= 2:
                def add(t=t - 2):
                    tm = TMP + (t % 3) * 4
                    k.wait_lg(('R', t))
                    for q in range(4): k.e('v_add_f32 v%d, v%d, v%d' % (ACC0 + 4 * t + q, ACC0 + 4 * t + q, tm + q))
                ops.append(add)
        for t in (16, 17):
            def add(t=t):
                tm = TMP + (t % 3) * 4
                k.wait_lg(('R', t))
                for q in range(4): k.e('v_add_f32 v%d, v%d, v%d' % (ACC0 + 4 * t + q, ACC0 + 4 * t + q, tm + q))
            ops.append(add)
        return ops
    def merge(a, b):
        out = []; n = max(len(a), len(b))
        ia = ib = 0
        for c in range(len(a) + len(b)):
            if ib >= len(b) or (ia < len(a) and ia * len(b) <= ib * len(a)): out.append(a[ia]); ia += 1
            else: out.append(b[ib]); ib += 1
        return out
    k.e('v_lshlrev_b32 v10, 16, v10'); k.e('v_lshlrev_b32 v11, 16, v11')
    phase(1, [(lambda r=r: k.e('v_add_f32 v%d, v%d, v%d' % (ACC0 + r, ACC0 + r, 10 + r // 36))) for r in range(72)])
    k.warm(WOUT, 8 * 72 * 4608, vt=12)
    phase(2, writes(1))
    k.wait_lg_all(); k.e('s_barrier')
    phase(3, merge(writes(2), readadd(8)))
    k.wait_lg_all(); k.e('s_barrier')
    z1ld = [(lambda t=t: (k.e('s_add_u32 s35, s34, %d' % ((t // 8) * 4096)), k.vmem('buffer_load_dwordx2 a[%d:%d], v13, s[8:11], s35 offen offset:%d sc1' % (2 * t, 2 * t + 1, (t % 8) * 512), 'z1'))) for t in range(18)]
    for t in range(2): k.lds('ds_read_b128 %s, v9 offset:%d' % (vr(TMP + (t % 3) * 4), t * 1024), ('R', t))
    def pre(i, j):
        t = i * 9 + j
        if t + 2 < 18: k.lds('ds_read_b128 %s, v9 offset:%d' % (vr(TMP + ((t + 2) % 3) * 4), (t + 2) * 1024), ('R', t + 2))
        k.wait_lg(('R', t))
        tm = TMP + (t % 3) * 4
        for q in range(4): k.e('v_add_f32 v%d, v%d, v%d' % (ACC0 + 4 * t + q, ACC0 + 4 * t + q, tm + q))
    phase(0, writes(3) if FUSED else merge(writes(3), z1ld), pre_tile=pre)
    k.wait_lg_all(); k.e('s_barrier')
    k.stamp(2)
    for t in range(18): k.lds('ds_read_b128 %s, v8 offset:%d' % (vr(16 + 4 * t), t * 1024), ('R', t))
    k.e('s_mul_i32 s46, s45, 144'); k.e('v_lshlrev_b32 v13, 2, v15'); k.e('v_add_u32 v13, s46, v13')
    fm_store_voff(k, 12, 13, 14, 9)
    k.e('s_lshl_b32 s46, s44, 3'); k.e('s_lshl_b32 s47, s22, 1'); k.e('s_add_u32 s46, s46, s47'); k.e('s_mul_i32 s46, s46, %d' % (72 * 1024)); k.e('s_add_u32 s36, s46, 0x%x' % Y(layer))
    k.e('s_add_u32 s37, s36, 4096'); k.e('s_add_u32 s38, s36, %d' % (72 * 1024)); k.e('s_add_u32 s39, s38, 4096')
    k.wait_vm_all()
    for t in range(18):
        i, j = divmod(t, 9)
        b = ACC0 + 4 * t; tm = 16 + 4 * t; z = 100 + (t % 2) * 6
        zo = 216 if FUSED else 0
        k.e('v_accvgpr_read_b32 v%d, a%d' % (z + 4, zo + 2 * t)); k.e('v_accvgpr_read_b32 v%d, a%d' % (z + 5, zo + 2 * t + 1))
        for r in range(4):
            if r % 2 == 0: k.e('v_lshlrev_b32 v%d, 16, v%d' % (z + r, z + 4 + r // 2))
            else: k.e('v_and_b32 v%d, 0xffff0000, v%d' % (z + r, z + 4 + r // 2))
        k.wait_lg(('R', t))
        for r in (0, 2): k.e(pk('add', b + r, b + r, tm + r))
        for r in (0, 2): k.e(pk('mul', b + r, b + r, z + r))
        k.e('v_cvt_pk_bf16_f32 v%d, v%d, v%d' % (b, b, b + 1)); k.e('v_cvt_pk_bf16_f32 v%d, v%d, v%d' % (b + 1, b + 2, b + 3))
        k.st('buffer_store_dwordx2 %s, v12, s[8:11], s%d offen offset:%d' % (vr(b, 2), 36 + 2 * i + j // 8, (j % 8) * 512))
    k.stamp(3)
    k.flag_addr(78, 5 * layer + 3, 44, 45)
    k.dump(slot, 5)
```

```python
from lib import *
import side
from phases import SIDE, pk
K5_LDS = 4 * 15360
RB = 96 * 1024
def phase_k5(k, inst, YB, KB, WB, xin, xout, slot=5):
    final = xout is None
    NST = (KB + 3) // 4
    map_4x8(k)
    k.e('v_and_b32 v2, 7, v0'); k.e('v_lshl_add_u32 v2, v15, 3, v2'); k.e('v_lshlrev_b32 v2, 4, v2'); k.e('v_add_u32 v2, 4096, v2')
    RD = 5; FR = 16
    k.e('s_mul_i32 s55, s22, %d' % NST); k.e('s_mov_b32 s56, 0')
    if KB % 4:
        k.e('s_cmp_eq_u32 s22, 3'); k.e('s_cselect_b32 s46, 1, 0'); k.e('s_sub_u32 s55, s55, s46')
        k.e('s_cmp_ge_u32 s22, 2'); k.e('s_cselect_b32 s56, 0x40000000, 0')
    for i in range(4):
        k.e('s_add_u32 s46, s22, %d' % i); k.e('s_and_b32 s46, s46, 3'); k.e('s_lshl_b32 s47, s44, 2'); k.e('s_add_u32 s46, s46, s47')
        k.e('s_mul_i32 s46, s46, %d' % KB); k.e('s_add_u32 s46, s46, s55'); k.e('s_lshl_b32 s46, s46, 10'); k.e('s_add_u32 s%d, s46, 0x%x' % (24 + i, YB))
    k.e('s_mul_i32 s46, s45, %d' % KB); k.e('s_add_u32 s46, s46, s55'); k.e('s_mul_i32 s28, s46, 4608'); k.e('s_add_u32 s28, s28, 0x%x' % WB)
    F = lambda n, f: vr(FR + ((n % RD) * 9 + f) * 4)
    def ldw_g(n):
        if n: k.e('s_add_u32 s28, s28, 4608')
        if KB % 4 and n == NST - 1: k.e('s_add_u32 s28, s28, s56')
        for j in range(5):
            if j < 4: k.vmem('buffer_load_dwordx4 %s, v1, s[8:11], s28 offen offset:%d sc1' % (F(n, 4 + j), j * 1024), ('f', n, 4 + j))
            else: k.vmem('buffer_load_dwordx4 %s, v2, s[8:11], s28 offen sc1' % F(n, 8), ('f', n, 8))
            yield
    def ldy_g(n):
        if n % 4 == 0 and n:
            for i in range(4): k.e('s_add_u32 s%d, s%d, 4096' % (24 + i, 24 + i))
        if KB % 4 and n == NST - 1:
            for i in range(4): k.e('s_add_u32 s%d, s%d, s56' % (24 + i, 24 + i))
        for j in range(4):
            k.vmem('buffer_load_dwordx4 %s, v1, s[8:11], s%d offen offset:%d sc1' % (F(n, j), 24 + j, (n % 4) * 1024), ('f', n, j))
            yield
    def ldw(n):
        for _ in ldw_g(n): pass
    def ldy(n):
        for _ in ldy_g(n): pass
    def ld_g(n):
        yield from ldw_g(n); yield from ldy_g(n)
    k.stamp(0)
    ldw(0)
    yield
    for n in range(1, RD): ldw(n)
    k.e('s_lshr_b32 s51, s44, 1')
    k.flag_addr(79, inst - 1, 51)
    k.e('s_mul_i32 s46, s45, 72'); k.e('v_lshlrev_b32 v4, 2, v15'); k.e('v_add_u32 v4, s46, v4')
    for j in range(5):
        if j: k.e('v_add_u32 v4, 16, v4')
        fm_store_voff(k, 5 + j, 4, 14, 10)
        if final:
            k.e('v_mul_u32_u24 v%d, 1152, v14' % (200 + j)); k.e('v_lshl_add_u32 v%d, v4, 1, v%d' % (200 + j, 200 + j))
    k.e('v_cmp_gt_u32 vcc, 2, v15'); k.e('v_mov_b32 v10, 0x%x' % OOB); k.e('v_cndmask_b32 v9, v10, v9, vcc')
    if final: k.e('v_cndmask_b32 v204, v10, v204, vcc')
    k.e('s_lshl_b32 s50, s44, 2'); k.e('s_add_u32 s50, s50, s22')
    k.e('s_mul_i32 s52, s50, 18432'); k.e('s_add_u32 s54, s52, 0x%x' % XF(xin)); k.e('s_add_u32 s57, s52, 0x%x' % XF(xout or 0))
    for j in range(5): k.vmem('buffer_load_dwordx2 %s, v%d, s[8:11], s54 offen sc1' % (vr(206 + 2 * j, 2), 5 + j), 'res')
    if SIDE and inst == 1:
        side.process(k, 216, 1)
    O0 = 216
    for i in range(1, 4):
        k.e('s_add_u32 s46, s22, %d' % i); k.e('s_and_b32 s46, s46, 3'); k.e('s_mul_i32 s46, s46, 3'); k.e('s_add_u32 s46, s46, %d' % (i - 1)); k.e('s_mul_i32 s46, s46, 5120'); k.e('s_add_u32 s46, s46, %d' % RB)
        k.e('v_add_u32 v%d, s46, v1' % (240 + i))
    k.e('s_mul_i32 s46, s22, 15360'); k.e('s_add_u32 s46, s46, %d' % RB); k.e('v_add_u32 v240, s46, v1')
    for q in range(4): k.e('v_mov_b32 v%d, 0' % (244 + q))
    if not final:
        k.e('s_lshl_b32 s46, s50, 7'); k.e('s_lshl_b32 s47, s45, 14'); k.e('s_add_u32 s46, s46, s47'); k.e('s_add_u32 s29, s46, 0x%x' % XS(xout))
        k.e('v_lshlrev_b32 v248, 3, v14')
    k.wait_vm('res')
    for j in range(5):
        for r in range(4):
            if r % 2 == 0: k.e('v_lshlrev_b32 v%d, 16, v%d' % (O0 + 4 * j + r, 206 + 2 * j + r // 2))
            else: k.e('v_and_b32 v%d, 0xffff0000, v%d' % (O0 + 4 * j + r, 206 + 2 * j + r // 2))
    yield
    k.stamp(6)
    for n in range(RD): ldy(n)
    AC = lambda i, j: ar((i * 5 + j) * 4) if i else vr(O0 + 4 * j)
    for n in range(NST):
        last = n == NST - 1
        lg = ld_g(n - 1 + RD) if (n >= 1 and n - 1 + RD < NST) else iter(())
        c = 0
        for i in ((1, 2, 3, 0) if last else range(4)):
            for j in range(5):
                k.wait_vm(('f', n, i)); k.wait_vm(('f', n, 4 + j))
                k.e('v_mfma_f32_16x16x32_bf16 %s, %s, %s, %s' % (AC(i, j), F(n, 4 + j), F(n, i), AC(i, j) if (n or i == 0) else '0'))
                if c % 2 == 0: next(lg, None)
                if last and c >= 7 and c - 7 < 15:
                    pi, pj = 1 + (c - 7) // 5, (c - 7) % 5
                    k.lds('ds_write_b128 v%d, %s offset:%d' % (240 + pi, AC(pi, pj), pj * 1024))
                c += 1
        for _ in lg: pass
    for c in range(13, 15):
        pi, pj = 1 + c // 5, c % 5
        k.lds('ds_write_b128 v%d, %s offset:%d' % (240 + pi, AC(pi, pj), pj * 1024))
    k.stamp(2)
    if SIDE and inst == 1: side.signal(k, 250, 1)
    k.wait_lg_all()
    k.e('s_barrier')
    for j in range(5):
        for s_ in range(3): k.lds('ds_read_b128 %s, v240 offset:%d' % (vr(16 + (j * 3 + s_) * 4), (s_ * 5 + j) * 1024), ('r', j))
    for j in range(5):
        b = O0 + 4 * j; t = 16 + 12 * j
        k.wait_lg(('r', j))
        if j == 4: k.setexec(32)
        for r in (0, 2):
            k.e(pk('add', t + r, t + r, t + 4 + r)); k.e(pk('add', b + r, b + r, t + 8 + r))
        for r in (0, 2): k.e(pk('add', b + r, b + r, t + r))
        k.e('v_cvt_pk_bf16_f32 v%d, v%d, v%d' % (t, b, b + 1)); k.e('v_cvt_pk_bf16_f32 v%d, v%d, v%d' % (t + 1, b + 2, b + 3))
        if final: k.vmem('buffer_store_dwordx2 %s, v%d, s[16:19], s52 offen' % (vr(t, 2), 200 + j))
        else:
            k.st('buffer_store_dwordx2 %s, v%d, s[8:11], s57 offen' % (vr(t, 2), 5 + j))
            for r in (0, 2):
                k.e(pk('add', 244, 244, b + r)); k.e(pk('fma', 246, b + r, b + r, 246))
    k.e('s_mov_b64 exec, -1')
    if not final:
        k.e('v_add_f32 v12, v244, v245'); k.e('v_add_f32 v13, v246, v247')
        k.lines.extend(rr([capture(k, lambda: rowsum_g(k, 12, 10)), capture(k, lambda: rowsum_g(k, 13, 11))]))
        k.e('s_mov_b64 exec, 0xffff')
        k.st('buffer_store_dwordx2 v[12:13], v248, s[8:11], s29 offen')
        k.e('s_mov_b64 exec, -1')
    k.e('s_barrier')
    k.stamp(3)
    k.e('s_mov_b64 exec, -1')
    k.e('s_and_b32 s46, s44, 1'); k.e('s_lshl_b32 s46, s46, 3'); k.e('s_add_u32 s46, s46, s45')
    k.flag_addr(78, inst, 51, 46)
    k.dump(slot, 5)
    k.e('s_mov_b64 exec, -1')
```

```python
from lib import *
NT = 576
def unit(k, srd, pitch, vsrc, vdst, sdst, colsum):
    for e in range(8):
        k.e('s_mov_b32 s40, %d' % (e * pitch))
        k.vmem('buffer_load_dwordx2 %s, v%d, s[%d:%d], s40 offen' % (vr(16 + 2 * e, 2), vsrc, srd, srd + 3))
    k.e('s_mov_b32 s41, 0x05040100'); k.e('s_mov_b32 s42, 0x07060302')
    k.wait_vm_all()
    for c in range(4):
        for q in range(4):
            k.e('v_perm_b32 v%d, v%d, v%d, s%d' % (32 + 4 * c + q, 16 + 2 * (2 * q + 1) + c // 2, 16 + 2 * (2 * q) + c // 2, 41 + c % 2))
        k.vmem('buffer_store_dwordx4 %s, v%d, s[8:11], s%d offen offset:%d' % (vr(32 + 4 * c), vdst, sdst, 16 * c))
    if colsum:
        k.e('v_mov_b32 v52, 0x3f803f80')
        for c in range(4):
            k.e('v_mov_b32 v%d, 0' % (48 + c))
            for q in range(4): k.e('v_dot2_f32_bf16 v%d, v%d, v52, v%d' % (48 + c, 32 + 4 * c + q, 48 + c))

def colsum_finish(k, dst):
    k.e('v_lshlrev_b32 v8, 4, v3')
    k.lds('ds_write_b128 v8, v[48:51]')
    k.wait_lg_all()
    k.e('s_barrier')
    k.e('s_cmp_ge_u32 s22, 2'); k.e('s_cbranch_scc1 %s' % k.end)
    k.e('v_lshlrev_b32 v8, 2, v3')
    for c in range(18): k.lds('ds_read_b32 v%d, v8 offset:%d' % (16 + c, c * 512))
    k.wait_lg_all()
    for c in range(1, 18): k.e('v_add_f32 v16, v16, v%d' % (16 + c))
    k.e('s_add_u32 s43, s43, 0x%x' % dst)
    k.vmem('buffer_store_dword v16, v8, s[8:11], s43 offen')
    k.e('s_endpgm')

class KP(K):
    def vmem(self, s, tag=None):
        if os.environ.get('P0SC') and s.startswith('buffer_store_dwordx4') and ', v1, ' in s: s += ' ' + os.environ['P0SC']
        if os.environ.get('P0NT', 'nt') and s.startswith('buffer_load'): s += ' ' + os.environ.get('P0NT', 'nt')
        K.vmem(self, s, tag)
def gen_p0(with_ws=False):
    k = KP('p0_kernel')
    cnt = [('XF', 128), ('WQ', 72), ('WO', 18), ('KZ', 41), ('WI', 144), ('WOUT', 72), ('WS', 128)]
    if with_ws: cnt = [('XF', 128), ('WS', 128), ('WI', 144), ('WQ', 72), ('WOUT', 72), ('WO', 18), ('KZ', 41)]
    R = {}; o = 0
    for n, c in cnt: R[n] = (o, o + c); o += c
    NWG = o if with_ws else R['WI'][0]
    with_ws = True
    k.start(NWG, [(0, 12, 2048 * 576 * 2), (1, 16, 576 * 1728 * 2), (2, 24, 576 * 576 * 2), (4, 28, 576 * 4608 * 2), (5, 32, 2048 * 2048 * 2), (7, 36, 2304 * 576 * 2)])
    k.e('s_lshl_b32 s40, s22, 6'); k.e('v_add_u32 v3, s40, v0')
    names = [n for n, _ in cnt]
    for n in names[1:][::-1]:
        k.e('s_cmp_ge_u32 s2, %d' % R[n][0])
        k.e('s_cbranch_scc1 P0_%s' % n)
    k.e('v_mul_u32_u24 v2, 1152, v14'); k.e('v_lshl_add_u32 v2, v15, 4, v2')
    k.e('s_mul_i32 s40, s2, 18432'); k.e('s_lshl_b32 s41, s22, 7'); k.e('s_add_u32 s41, s41, s40')
    k.e('s_lshl_b32 s42, s22, 11'); k.e('s_add_u32 s42, s42, s40'); k.e('s_add_u32 s42, s42, 0x%x' % XF(0))
    for i in range(2): k.vmem('buffer_load_dwordx4 %s, v2, s[12:15], s41 offen offset:%d' % (vr(16 + 4 * i), i * 64), i)
    k.e('v_mov_b32 v8, 0'); k.e('v_mov_b32 v9, 0'); k.e('v_mov_b32 v31, 0x3f803f80')
    for i in range(2):
        k.wait_vm(i)
        k.vmem('buffer_store_dwordx4 %s, v1, s[8:11], s42 offen offset:%d' % (vr(16 + 4 * i), i * 1024))
        for q in range(4):
            k.e('v_dot2_f32_bf16 v8, v%d, v31, v8' % (16 + 4 * i + q))
            k.e('v_dot2_f32_bf16 v9, v%d, v%d, v9' % (16 + 4 * i + q, 16 + 4 * i + q))
    rowsum_g(k, 8, 10); rowsum_g(k, 9, 10)
    k.e('s_lshl_b32 s41, s22, 7'); k.e('v_lshlrev_b32 v4, 3, v14'); k.e('v_add_u32 v5, s41, v4')
    k.lds('ds_write_b64 v5, v[8:9]')
    k.wait_lg_all()
    k.e('s_barrier')
    k.e('s_cmp_ge_u32 s22, 1'); k.e('s_cbranch_scc1 %s' % k.end)
    for w in range(9): k.lds('ds_read_b64 %s, v4 offset:%d' % (vr(16 + 2 * w, 2), w * 128))
    k.wait_lg_all()
    for w in range(1, 9):
        k.e('v_add_f32 v16, v16, v%d' % (16 + 2 * w)); k.e('v_add_f32 v17, v17, v%d' % (17 + 2 * w))
    k.e('v_cmp_eq_u32 vcc, 0, v15')
    k.e('v_cndmask_b32 v8, 0, v16, vcc'); k.e('v_cndmask_b32 v9, 0, v17, vcc'); k.e('v_mov_b32 v10, 0'); k.e('v_mov_b32 v11, 0')
    k.e('v_lshl_add_u32 v2, v15, 14, v4')
    k.e('s_lshl_b32 s40, s2, 7'); k.e('s_add_u32 s40, s40, 0x%x' % XS(0)); k.e('s_add_u32 s41, s40, 65536')
    k.vmem('buffer_store_dwordx2 v[8:9], v2, s[8:11], s40 offen')
    k.vmem('buffer_store_dwordx2 v[10:11], v2, s[8:11], s41 offen')
    k.e('s_endpgm')
    def quarter_setup(base):
        k.e('s_sub_u32 s45, s2, %d' % base); k.e('s_and_b32 s44, s45, 3'); k.e('s_lshr_b32 s45, s45, 2')
        k.e('v_lshrrev_b32 v6, 5, v3'); k.e('s_mul_i32 s40, s44, 18'); k.e('v_add_u32 v6, s40, v6')
        k.e('v_and_b32 v7, 31, v3'); k.e('v_lshlrev_b32 v7, 2, v7'); k.e('s_lshl_b32 s40, s45, 7'); k.e('v_add_u32 v7, s40, v7')
        k.e('v_lshrrev_b32 v4, 2, v6'); k.e('v_and_b32 v5, 3, v6')
    k.label('P0_WQ'); k.vm = []; k.lg = []
    quarter_setup(R['WQ'][0])
    div_const(k, 8, 7, 144, 2303)
    k.e('v_mul_u32_u24 v9, 144, v8'); k.e('v_sub_u32 v9, v7, v9')
    k.e('v_and_b32 v10, 15, v9'); k.e('v_lshrrev_b32 v9, 4, v9')
    div_const(k, 11, 9, 3, 8)
    k.e('v_mul_u32_u24 v12, 3, v11'); k.e('v_sub_u32 v12, v9, v12'); k.e('v_lshl_add_u32 v12, v12, 4, v10')
    k.e('v_cmp_gt_u32 vcc, 36, v12')
    k.e('v_mul_u32_u24 v11, 576, v11'); k.e('v_mul_u32_u24 v13, 36, v8'); k.e('v_add3_u32 v12, v12, v11, v13'); k.e('v_lshlrev_b32 v12, 1, v12')
    k.e('s_mov_b32 s40, %d' % (8 * 3456)); k.e('v_mad_u32_u24 v12, v6, s40, v12')
    k.e('v_mov_b32 v11, 0x%x' % OOB); k.e('v_cndmask_b32 v12, v11, v12, vcc')
    k.e('v_cmp_le_u32 vcc, 3, v9'); k.e('v_add_u32 v11, 108, v9'); k.e('v_subrev_u32 v9, 3, v9'); k.e('v_cndmask_b32 v9, v11, v9, vcc')
    k.e('v_mov_b32 v13, 3'); k.e('v_mov_b32 v11, 6'); k.e('v_cndmask_b32 v13, v13, v11, vcc')
    k.e('v_mad_u32_u24 v9, v4, v13, v9'); k.e('v_mul_u32_u24 v11, 162, v8'); k.e('v_add_u32 v9, v9, v11'); k.e('v_lshlrev_b32 v9, 10, v9')
    k.e('v_lshl_add_u32 v9, v5, 8, v9'); k.e('v_lshl_add_u32 v9, v10, 4, v9')
    k.e('s_mov_b32 s46, 0x%x' % WQ)
    unit(k, 16, 3456, 12, 9, 46, True)
    k.e('s_mul_i32 s43, s44, 9216'); k.e('s_lshl_b32 s40, s45, 9'); k.e('s_add_u32 s43, s43, s40')
    colsum_finish(k, CSQ)
    k.label('P0_WI'); k.vm = []; k.lg = []
    quarter_setup(R['WI'][0])
    div_const(k, 8, 7, 288, 4607)
    k.e('v_mul_u32_u24 v9, 288, v8'); k.e('v_sub_u32 v9, v7, v9')
    k.e('v_cmp_le_u32 vcc, 144, v9')
    k.e('v_add_u32 v12, 2304, v9'); k.e('v_subrev_u32 v11, 144, v9'); k.e('v_cndmask_b32 v12, v12, v11, vcc')
    k.e('v_mul_u32_u24 v11, 144, v8'); k.e('v_add_u32 v12, v12, v11'); k.e('v_lshlrev_b32 v12, 1, v12')
    k.e('s_mov_b32 s40, %d' % (8 * 9216)); k.e('v_mad_u32_u24 v12, v6, s40, v12')
    k.e('v_and_b32 v10, 15, v9'); k.e('v_lshrrev_b32 v9, 4, v9')
    k.e('v_add_u32 v11, 153, v9'); k.e('v_cndmask_b32 v9, v9, v11, vcc')
    k.e('v_mad_u32_u24 v9, v4, 9, v9'); k.e('v_mul_u32_u24 v11, 324, v8'); k.e('v_add_u32 v9, v9, v11'); k.e('v_lshlrev_b32 v9, 10, v9')
    k.e('v_lshl_add_u32 v9, v5, 8, v9'); k.e('v_lshl_add_u32 v9, v10, 4, v9')
    k.e('s_mov_b32 s46, 0x%x' % WI)
    unit(k, 28, 9216, 12, 9, 46, True)
    k.e('s_mul_i32 s43, s44, 18432'); k.e('s_lshl_b32 s40, s45, 9'); k.e('s_add_u32 s43, s43, s40')
    colsum_finish(k, CSI)
    for nm, srd, KB, dst in (('WOUT', 36, 72, WOUT), ('WO', 24, 18, WO)):
        k.label('P0_%s' % nm); k.vm = []; k.lg = []
        k.e('s_sub_u32 s45, s2, %d' % R[nm][0]); k.e('s_mul_i32 s44, s45, 57'); k.e('s_lshr_b32 s44, s44, 9')
        k.e('s_mul_i32 s40, s44, 9'); k.e('s_sub_u32 s45, s45, s40')
        k.e('v_lshrrev_b32 v6, 4, v3'); k.e('s_mul_i32 s40, s44, 36'); k.e('v_add_u32 v6, s40, v6')
        k.e('v_lshlrev_b32 v7, 2, v14'); k.e('s_lshl_b32 s40, s45, 6'); k.e('v_add_u32 v7, s40, v7')
        k.e('v_lshrrev_b32 v4, 2, v6'); k.e('v_and_b32 v5, 3, v6')
        div_const(k, 8, 7, 72, 575)
        k.e('v_mul_u32_u24 v9, 72, v8'); k.e('v_sub_u32 v9, v7, v9')
        k.e('v_lshlrev_b32 v12, 1, v7'); k.e('s_mov_b32 s40, %d' % (8 * 1152)); k.e('v_mad_u32_u24 v12, v6, s40, v12')
        k.e('v_and_b32 v10, 15, v9'); k.e('v_lshrrev_b32 v9, 4, v9')
        k.e('v_cmp_gt_u32 vcc, 4, v9'); k.e('v_mov_b32 v13, 128'); k.e('v_mov_b32 v11, 256'); k.e('v_cndmask_b32 v13, v13, v11, vcc')
        k.e('v_mul_u32_u24 v8, %d, v8' % KB); k.e('v_add_u32 v8, v8, v4'); k.e('s_mov_b32 s40, 4608'); k.e('v_mul_lo_u32 v8, v8, s40')
        k.e('v_lshl_add_u32 v9, v9, 10, v8'); k.e('v_mad_u32_u24 v9, v5, v13, v9'); k.e('v_lshl_add_u32 v9, v10, 4, v9')
        k.e('s_mov_b32 s46, 0x%x' % dst)
        unit(k, srd, 1152, 12, 9, 46, False)
        k.e('s_endpgm')
    if with_ws:
        k.label('P0_WS'); k.vm = []
        k.e('s_cmp_ge_u32 s22, 8'); k.e('s_cbranch_scc1 %s' % k.end)
        k.e('s_sub_u32 s45, s2, %d' % R['WS'][0])
        k.e('v_lshlrev_b32 v2, 12, v14'); k.e('v_lshl_add_u32 v2, v15, 4, v2')
        k.e('s_lshl_b32 s40, s45, 16'); k.e('s_lshl_b32 s41, s22, 9'); k.e('s_add_u32 s40, s40, s41')
        k.e('s_lshl_b32 s42, s45, 16'); k.e('s_lshl_b32 s41, s22, 13'); k.e('s_add_u32 s42, s42, s41'); k.e('s_add_u32 s42, s42, 0x%x' % WS)
        for i in range(8): k.vmem('buffer_load_dwordx4 %s, v2, s[32:35], s40 offen offset:%d' % (vr(16 + 4 * i), i * 64), i)
        for i in range(8):
            k.wait_vm(i)
            if i == 4: k.e('s_add_u32 s42, s42, 4096')
            k.vmem('buffer_store_dwordx4 %s, v1, s[8:11], s42 offen offset:%d' % (vr(16 + 4 * i), (i % 4) * 1024))
        k.e('s_endpgm')
    k.label('P0_KZ'); k.vm = []
    k.e('s_cmp_ge_u32 s22, 8'); k.e('s_cbranch_scc1 %s' % k.end)
    k.e('s_getpc_b64 s[58:59]')
    k.lines.append('P0_PC:;nohz')
    k.e('s_sub_u32 s45, s2, %d' % R['KZ'][0]); k.e('s_lshl_b32 s46, s45, 3'); k.e('s_add_u32 s46, s46, s22'); k.e('s_lshl_b32 s46, s46, 10')
    k.e('v_add_u32 v4, s46, v1'); k.e('v_min_u32 v4, CODE_END-P0_PC-16, v4'); k.e('v_and_b32 v4, -4, v4')
    k.vmem('global_load_dwordx4 v[16:19], v4, s[58:59]')
    k.e('s_lshr_b32 s43, s45, 4'); k.e('s_and_b32 s42, s45, 15')
    k.e('s_mov_b32 s44, -1')
    k.e('s_lshl_b32 s42, s42, 16'); k.e('s_lshl_b32 s40, s22, 13'); k.e('s_add_u32 s42, s42, s40')
    k.e('s_mul_i32 s47, s43, 0x%x' % LSZ); k.e('s_add_u32 s47, s47, 0x%x' % KVP(0))
    k.e('s_cmp_ge_u32 s43, 2'); k.e('s_cselect_b32 s47, 0x%x, s47' % FLG); k.e('s_cselect_b32 s44, 0, s44')
    k.e('s_add_u32 s42, s42, s47')
    k.e('s_add_u32 s47, s40, 0x%x' % CSI); k.e('s_cmp_eq_u32 s45, %d' % (40 if NWG < 400 else 999)); k.e('s_cselect_b32 s42, s47, s42')
    for q in range(4): k.e('v_mov_b32 v%d, s44' % (8 + q))
    for i in range(8):
        if i == 4: k.e('s_add_u32 s42, s42, 4096')
        k.vmem('buffer_store_dwordx4 v[8:11], v1, s[8:11], s42 offen offset:%d' % ((i % 4) * 1024))
    k.finish()
    return k.text(56), ('p0_kernel', (NWG, 1, 1), (NT, 1, 1), 9216)
```

```python
import os, struct
from asmlib import K as K0, assemble_file
import hz
from layout import *
PROF = int(os.environ.get('PROF', '0'))
WARM = int(os.environ.get('WARM', '0'))
FLSH = int(os.environ.get('FLSH', '4'))
POLL1 = int(os.environ.get('POLL1', '1'))
PSLEEP = int(os.environ.get('PSLEEP', '0'))

class K(K0):
    pfx = ''
    def L(self, s): return '%s_%s' % (self.pfx, s)
    def st(self, s, tag='out'):
        K0.vmem(self, s + ' sc1', tag)
    def stamp(self, n):
        if not PROF: return
        self.e('%s s[%d:%d]' % ('s_memtime' if PROF == 2 else 's_memrealtime', 60 + 2 * n, 61 + 2 * n))
        self.wait_lg_all()
    def dump(self, slot, nst):
        if not PROF: return
        self.e('s_mov_b64 exec, -1')
        self.wait_vm_all()
        self.stamp(nst - 1)
        self.e('s_lshl_b32 s46, s2, 3'); self.e('s_add_u32 s46, s46, s22'); self.e('s_lshl_b32 s46, s46, 6')
        self.e('s_add_u32 s46, s46, 0x%x' % (PROF_BASE + slot * 0x40000))
        self.e('v_mov_b32 v4, 0')
        for q in range(nst):
            self.e('v_mov_b32 v5, s%d' % (60 + 2 * q))
            self.e('buffer_store_dword v5, v4, s[8:11], s46 offen offset:%d' % (4 * q))
        self.e('v_mov_b32 v5, s72')
        self.e('buffer_store_dword v5, v4, s[8:11], s46 offen offset:48')
        self.e('v_mov_b32 v5, s74')
        self.e('buffer_store_dword v5, v4, s[8:11], s46 offen offset:52')
        self.e('v_mov_b32 v5, s76')
        self.e('buffer_store_dword v5, v4, s[8:11], s46 offen offset:56')
        self.wait_vm_all()
    def text(self, vgprs, agprs=0, sgprs=102, wgy=False):
        self.lines = hz.fix(self.lines)
        return K0.text(self, vgprs, agprs, sgprs, wgy)
    def srd(self, d, lo, size):
        self.e('s_mov_b32 s%d, s%d' % (d, lo))
        self.e('s_and_b32 s%d, s%d, 0xffff' % (d + 1, lo + 1))
        self.e('s_mov_b32 s%d, 0x%x' % (d + 2, size))
        self.e('s_mov_b32 s%d, 0x00020000' % (d + 3))
    def start(self, nwg, ptrs):
        self.end = 'END_' + self.name
        if PROF: self.e('s_memrealtime s[76:77]')
        self.e('s_cmp_ge_u32 s2, %d' % nwg)
        self.e('s_cbranch_scc0 GO_%s' % self.name)
        self.e('s_endpgm')
        self.lines.append('GO_%s:;nohz' % self.name)
        allp = [(10, 8, WS_BYTES)] + list(ptrs)
        for i, (slot, d, size) in enumerate(allp):
            self.e('s_load_dwordx2 s[%d:%d], s[0:1], %d' % (80 + 2 * i, 81 + 2 * i, slot * 8))
        self.e('v_lshrrev_b32 v1, 6, v0')
        self.e('v_readfirstlane_b32 s22, v1')
        self.e('v_and_b32 v0, 63, v0')
        self.e('v_lshlrev_b32 v1, 4, v0'); self.e('v_and_b32 v14, 15, v0'); self.e('v_lshrrev_b32 v15, 4, v0')
        self.e('s_and_b32 s3, s2, 7'); self.e('s_lshr_b32 s23, s2, 3')
        self.e('s_waitcnt lgkmcnt(0)')
        for i, (slot, d, size) in enumerate(allp):
            self.srd(d, 80 + 2 * i, size)
    def code_prefetch(self, endlabel, nw=4, startlabel=None):
        here = self.newlabel('PC')
        self.e('s_getpc_b64 s[58:59]')
        self.lines.append(here + ':;nohz')
        self.e('s_mul_i32 s46, s23, %d' % nw); self.e('s_add_u32 s46, s46, s22'); self.e('s_lshl_b32 s46, s46, 10')
        self.e('v_add_u32 v13, s46, v1')
        if startlabel: self.e('v_add_u32 v13, %s-%s, v13' % (startlabel, here))
        self.e('v_min_u32 v13, %s-%s-16, v13' % (endlabel, here))
        self.e('v_and_b32 v13, -4, v13')
        self.vmem('global_load_dwordx4 a[252:255], v13, s[58:59]')
    def warm(self, base, per_xcd_bytes, sel=None, vt=13):
        if not WARM: return
        lines = per_xcd_bytes // 128
        per = (lines + 127) // 128
        self.e('s_lshl_b32 s46, s23, 2'); self.e('s_add_u32 s46, s46, s22'); self.e('s_mul_i32 s46, s46, %d' % (per * 128))
        self.e('v_lshlrev_b32 v%d, 7, v0' % vt); self.e('v_add_u32 v%d, s46, v%d' % (vt, vt))
        if sel:
            self.e('s_lshr_b32 s47, s3, %d' % sel[0]); self.e('s_mul_i32 s47, s47, %d' % sel[1]); self.e('s_add_u32 s47, s47, 0x%x' % base)
        else: self.e('s_mov_b32 s47, 0x%x' % base)
        for i in range(0, per, 64):
            n = min(64, per - i)
            if i: self.e('s_add_u32 s47, s47, 8192')
            if n < 64: self.setexec(n)
            self.vmem('buffer_load_dword a252, v%d, s[8:11], s47 offen' % vt)
            if n < 64: self.e('s_mov_b64 exec, -1')
    def warm_ws(self, vt=13):
        if not WARM: return
        self.e('v_lshlrev_b32 v%d, 7, v0' % vt)
        self.e('s_and_b32 s47, s3, 1'); self.e('s_lshl_b32 s47, s47, 22'); self.e('s_lshl_b32 s46, s23, 17'); self.e('s_add_u32 s47, s47, s46')
        self.e('s_lshl_b32 s46, s22, 14'); self.e('s_add_u32 s47, s47, s46'); self.e('s_add_u32 s47, s47, 0x%x' % WS)
        self.vmem('buffer_load_dword a252, v%d, s[8:11], s47 offen' % vt)
        self.e('s_add_u32 s47, s47, 65536')
        self.vmem('buffer_load_dword a252, v%d, s[8:11], s47 offen' % vt)
    def flag_addr(self, sd, inst, sgrp, sprod=None):
        self.e('s_lshl_b32 s%d, s%d, 11' % (sd, sgrp)); self.e('s_add_u32 s%d, s%d, 0x%x' % (sd, sd, FLG + inst * 32768))
        if sprod is not None:
            self.e('s_lshl_b32 s47, s%d, %d' % (sprod, FLSH)); self.e('s_add_u32 s%d, s%d, s47' % (sd, sd))
            self.e('s_lshl_b32 s47, s22, 2'); self.e('s_add_u32 s%d, s%d, s47' % (sd, sd))
    def signal(self):
        self.wait_vm('out')
        self.e('v_mov_b32 v13, 1'); self.e('v_mov_b32 v12, 0')
        self.setexec(1)
        self.vmem('buffer_store_dword v13, v12, s[8:11], s78 offen sc0 sc1')
        self.e('s_mov_b64 exec, -1')
    def depwait(self):
        name = self.newlabel('DW')
        self.e('v_lshlrev_b32 v12, %d, v14' % FLSH); self.e('v_lshl_add_u32 v12, v15, 2, v12')
        self.e('s_mov_b32 s53, 0')
        sv = list(self.vm)
        if POLL1:
            self.e('s_cmp_lg_u32 s22, 0'); self.e('s_cbranch_scc1 %sG' % name)
        self.label(name)
        self.e('buffer_load_dword v13, v12, s[8:11], s79 offen sc0 sc1')
        self.e('s_add_u32 s53, s53, 1')
        self.wait_vm_all()
        self.e('v_cmp_eq_u32 vcc, 0, v13')
        self.e('s_cbranch_vccz %sG' % name)
        if PSLEEP: self.e('s_sleep %d' % PSLEEP)
        self.e('s_cmp_lt_u32 s53, 100000')
        self.e('s_cbranch_scc1 %s' % name)
        self.label(name + 'G')
        if POLL1: self.vm = sv
        self.e('s_barrier')
    def setexec(self, lanes):
        m = (1 << lanes) - 1
        self.e('s_mov_b32 exec_lo, 0x%x' % (m & 0xffffffff)); self.e('s_mov_b32 exec_hi, 0x%x' % (m >> 32))
    def finish(self):
        self.label(self.end)

def vr(b, n=4): return 'v[%d:%d]' % (b, b + n - 1)
def ar(b, n=4): return 'a[%d:%d]' % (b, b + n - 1)
def f32(x): return '0x%08x' % struct.unpack('<I', struct.pack('<f', x))[0]

def div_const(k, vq, vx, d, maxv, stmp=41):
    for sh in range(16, 24):
        m = (1 << sh) // d + 1
        if m * maxv < (1 << 32) and m < (1 << 24) and all((x * m) >> sh == x // d for x in range(maxv + 1)):
            k.e('s_mov_b32 s%d, %d' % (stmp, m))
            k.e('v_mul_u32_u24 v%d, s%d, v%d' % (vq, stmp, vx))
            k.e('v_lshrrev_b32 v%d, %d, v%d' % (vq, sh, vq))
            return
    raise ValueError('no magic')

def map_8x4(k):
    k.e('s_and_b32 s44, s3, 1'); k.e('s_lshl_b32 s44, s44, 3'); k.e('s_and_b32 s45, s23, 7'); k.e('s_add_u32 s44, s44, s45')
    k.e('s_lshr_b32 s45, s3, 1'); k.e('s_lshl_b32 s45, s45, 2'); k.e('s_lshr_b32 s46, s23, 3'); k.e('s_add_u32 s45, s45, s46')
def map_4x8(k):
    k.e('s_lshl_b32 s44, s3, 2'); k.e('s_and_b32 s45, s23, 3'); k.e('s_add_u32 s44, s44, s45'); k.e('s_lshr_b32 s45, s23, 2')

def fm_store_voff(k, vdst, vk, vr16, tmp):
    k.e('v_lshrrev_b32 v%d, 3, v%d' % (vdst, vk))
    k.e('v_lshlrev_b32 v%d, 8, v%d' % (vdst, vdst))
    k.e('v_lshl_add_u32 v%d, v%d, 4, v%d' % (vdst, vr16, vdst))
    k.e('v_and_b32 v%d, 4, v%d' % (tmp, vk))
    k.e('v_lshl_add_u32 v%d, v%d, 1, v%d' % (vdst, tmp, vdst))

def rowsum_g(k, vv, tmp):
    k.e('v_mov_b32 v%d, v%d' % (tmp, vv)); k.e('v_permlane32_swap_b32 v%d, v%d' % (vv, tmp)); k.e('v_add_f32 v%d, v%d, v%d' % (vv, vv, tmp))
    k.e('v_mov_b32 v%d, v%d' % (tmp, vv)); k.e('v_permlane16_swap_b32 v%d, v%d' % (vv, tmp)); k.e('v_add_f32 v%d, v%d, v%d' % (vv, vv, tmp))

def capture(k, fn):
    n0 = len(k.lines); fn(); c = k.lines[n0:]; del k.lines[n0:]; return c
def rr(chunks):
    out = []
    for i in range(max(len(c) for c in chunks)):
        for c in chunks:
            if i < len(c): out.append(c[i])
    return out
```

```python
import math
from lib import *
from h4 import *
LOG2E = 1.4426950408889634
GC0 = -2.0 * math.sqrt(2.0 / math.pi) * LOG2E
GC1 = GC0 * 0.044715
A1 = 48; A2 = 120
FUSED = int(os.environ.get('FUSED', '1'))
DEFER = FUSED and int(os.environ.get('DEFER', '1'))
NCS = 4; NCI = 1 if (FUSED and int(os.environ.get('SIDE', '0'))) else 4
PRE1 = 6 if FUSED else 0
PRE2 = int(os.environ.get('PRE2', '18')) if FUSED else 0
SIDE = FUSED and int(os.environ.get('SIDE', '0'))
import side

def phi_ops(k, v, t1, t2, sm):
    k.e('v_mul_f32 v%d, %s, v%d' % (t1, f32(LOG2E), v))
    k.e('v_exp_f32 v%d, v%d' % (t1, t1))
    k.e('v_add_f32 v%d, %s, v%d' % (t2, f32(1.000001), v))
    k.e('v_cmp_lt_f32 %s, 0, v%d' % (sm, v))
    k.e('v_add_f32 v%d, %s, v%d' % (t1, f32(1e-6), t1))
    k.e('v_cndmask_b32 v%d, v%d, v%d, %s' % (v, t1, t2, sm))

def gelu_ops(k, v, t, vC1):
    k.e('v_mul_f32 v%d, v%d, v%d' % (t, v, v))
    k.e('v_fmaak_f32 v%d, v%d, v%d, %s' % (t, t, vC1, f32(GC0)))
    k.e('v_mul_f32 v%d, v%d, v%d' % (t, t, v))
    k.e('v_exp_f32 v%d, v%d' % (t, t))
    k.e('v_add_f32 v%d, 1.0, v%d' % (t, t))
    k.e('v_rcp_f32 v%d, v%d' % (t, t))
    k.e('v_mul_f32 v%d, v%d, v%d' % (v, v, t))

def pk(op, d, *src, sel=None):
    ops = []; lo = []; hi = []
    for s_ in src:
        if isinstance(s_, tuple):
            r = s_[1]; ops.append(vr(r & ~1, 2)); lo.append(r & 1); hi.append(r & 1)
        elif isinstance(s_, str):
            ops.append(s_); lo.append(0); hi.append(1)
        else:
            ops.append(vr(s_, 2)); lo.append(0); hi.append(1)
    m = ''
    if any(lo): m += ' op_sel:[%s]' % ','.join(map(str, lo))
    if not all(hi): m += ' op_sel_hi:[%s]' % ','.join(map(str, hi))
    return 'v_pk_%s_f32 %s, %s%s' % (op, vr(d, 2), ', '.join(ops), m)

def gelu_pk(k, v, t, CC):
    k.e(pk('mul', t, v, v))
    k.e(pk('fma', t, t, ('b', CC), ('b', CC + 1)))
    k.e(pk('mul', t, t, v))
    k.e('v_exp_f32 v%d, v%d' % (t, t)); k.e('v_exp_f32 v%d, v%d' % (t + 1, t + 1))
    k.e(pk('add', t, t, ('b', CC + 2)))
    k.e('v_rcp_f32 v%d, v%d' % (t, t)); k.e('v_rcp_f32 v%d, v%d' % (t + 1, t + 1))
    k.e(pk('mul', v, v, t))

def emit_gen(k, lines):
    for l in lines:
        k.lines.append(l); yield

def poll_loop(k, name, loads, check):
    k.e('s_mov_b32 s53, 0')
    k.wait_vm_all()
    k.label(k.L(name))
    loads()
    k.e('s_add_u32 s53, s53, 1')
    k.wait_vm_all()
    check()
    k.e('s_cbranch_vccz %s' % k.L(name + 'G'))
    k.e('s_cmp_lt_u32 s53, 50000')
    k.e('s_cbranch_scc1 %s' % k.L(name))
    k.label(k.L(name + 'G'))

K1_C = 156
K1_PART = 8192; K1_IMG = K1_PART + 49152; K1_STAT = 156 * 1024
CSL = K1_STAT + 1024
LDS_ALL = CSL + 1152

def gen_of(k, fn):
    fn(); yield

def soft_poll(k, name, loads, check, tag):
    k.wait_vm(tag)
    check()
    k.e('s_cbranch_vccz %s' % k.L(name + 'G'))
    sv = list(k.vm)
    k.e('s_mov_b32 s53, 0')
    k.label(k.L(name))
    loads()
    k.e('s_add_u32 s53, s53, 1')
    k.wait_vm_all()
    check()
    k.e('s_cbranch_vccz %s' % k.L(name + 'G'))
    k.e('s_cmp_lt_u32 s53, 100000')
    k.e('s_cbranch_scc1 %s' % k.L(name))
    k.label(k.L(name + 'G'))
    k.vm = sv

def phase_k1(k, layer, slot=1):
    xi = 2 * layer
    map_8x4(k)
    k.stamp(0)
    h = H4(k, XF(xi), WQ, 162, [(6, 's', A1), (3, 'f', A2)], [12, 24, 36, 36, 36, 20], K1_C, burst=int(os.environ.get('B1', '20')), pace=1 if layer == 0 else int(os.environ.get('PC1', '2')))
    h.prefetch_weights(PRE1 if layer else 3)
    yield
    if layer: h.prefetch_weights(PRE2)
    k.flag_addr(79, 5 * layer - 1, 44)
    k.e('s_mul_i32 s31, s45, 576'); k.e('s_add_u32 s31, s31, 0x%x' % CSQ)
    k.e('s_lshl_b32 s46, s22, 8'); k.e('v_lshlrev_b32 v12, 2, v0'); k.e('v_add_u32 v238, s46, v12'); k.e('v_min_u32 v238, 572, v238')
    for q in range(NCS):
        if q: k.e('s_add_u32 s31, s31, 9216')
        k.vmem('buffer_load_dword v%d, v238, s[8:11], s31 offen' % (192 + q), 'cs')
    NM4 = 212; RS4 = 220; NM1 = 228; RS1 = 230; PK = 144
    GV = 237; LT = 248; IM = 240; SO = 244
    k.e('s_lshl_b32 s46, s22, 8')
    k.e('s_mul_i32 s50, s45, %d' % (16 * 3072)); k.e('s_add_u32 s50, s50, 0x%x' % KVP(layer))
    k.e('s_mul_i32 s51, s44, 3072'); k.e('s_add_u32 s51, s51, s50')
    k.e('v_lshlrev_b32 v4, 2, v0'); k.e('v_add_u32 v4, s46, v4')
    k.e('v_lshlrev_b32 v5, 2, v4'); k.e('v_cmp_gt_u32 vcc, 684, v4'); k.e('v_mov_b32 v6, 0x%x' % OOB); k.e('v_cndmask_b32 v%d, v6, v5, vcc' % GV)
    k.e('v_min_u32 v4, 680, v4')
    k.e('s_mov_b32 s41, 3641')
    def elem(c):
        B0 = 48 + c * 16
        u, q, dd, hh, row, d, e, T, lp = [B0 + x for x in range(9)]
        sm = 's[%d:%d]' % (32 + 2 * c, 33 + 2 * c)
        k.e('v_add_u32 v%d, %d, v4' % (u, c))
        k.e('v_mul_u32_u24 v%d, s41, v%d' % (q, u)); k.e('v_lshrrev_b32 v%d, 16, v%d' % (q, q))
        k.e('v_mul_u32_u24 v%d, 18, v%d' % (dd, q)); k.e('v_sub_u32 v%d, v%d, v%d' % (dd, u, dd))
        k.e('v_cmp_le_u32 %s, 19, v%d' % (sm, q)); k.e('v_cndmask_b32 v%d, 0, 1, %s' % (hh, sm))
        k.e('v_mul_u32_u24 v%d, 19, v%d' % (row, hh)); k.e('v_sub_u32 v%d, v%d, v%d' % (row, q, row))
        k.e('v_mad_u32_u24 v%d, v%d, 18, v%d' % (d, hh, dd))
        k.e('v_mad_u32_u24 v%d, v%d, 18, v%d' % (e, hh, row))
        k.e('v_cmp_eq_u32 %s, 18, v%d' % (sm, row))
        k.e('v_lshrrev_b32 v%d, 4, v%d' % (T, d))
        k.e('v_lshrrev_b32 v%d, 4, v%d' % (lp, e))
        k.e('v_mad_u32_u24 v%d, v%d, 3, v%d' % (lp, T, lp))
        k.e('v_add_u32 v%d, 9, v%d' % (T, T))
        k.e('v_cndmask_b32 v%d, v%d, v%d, %s' % (T, lp, T, sm))
        k.e('v_and_b32 v%d, 15, v%d' % (lp, e))
        k.e('v_lshlrev_b32 v%d, 10, v%d' % (T, T)); k.e('v_lshl_add_u32 v%d, v%d, 4, v%d' % (T, lp, T))
        k.e('v_bfe_u32 v%d, v%d, 2, 2' % (q, d)); k.e('v_lshl_add_u32 v%d, v%d, 8, v%d' % (T, q, T))
        k.e('v_and_b32 v%d, 3, v%d' % (dd, d)); k.e('v_lshl_add_u32 v%d, v%d, 2, v%d' % (T, dd, T))
        k.e('v_add_u32 v%d, %d, v%d' % (LT + c, K1_PART, T))
        k.e('v_bfe_u32 v%d, v%d, 4, 1' % (row, d)); k.e('v_lshl_add_u32 v%d, v%d, 2, v%d' % (dd, row, dd)); k.e('v_lshlrev_b32 v%d, 1, v%d' % (dd, dd))
        k.e('v_lshrrev_b32 v%d, 5, v%d' % (row, d))
        k.e('v_lshrrev_b32 v%d, 4, v%d' % (e, e)); k.e('v_lshl_add_u32 v%d, v%d, 1, v%d' % (e, e, row)); k.e('v_lshlrev_b32 v%d, 10, v%d' % (e, e))
        k.e('v_lshl_add_u32 v%d, v%d, 8, v%d' % (e, q, e)); k.e('v_lshl_add_u32 v%d, v%d, 4, v%d' % (e, lp, e))
        k.e('v_lshl_add_u32 v%d, v%d, 1, v%d' % (hh, hh, row)); k.e('v_lshlrev_b32 v%d, 6, v%d' % (hh, hh)); k.e('v_lshl_add_u32 v%d, v%d, 4, v%d' % (hh, q, hh)); k.e('v_add_u32 v%d, 6144, v%d' % (hh, hh))
        k.e('v_cndmask_b32 v%d, v%d, v%d, %s' % (e, e, hh, sm)); k.e('v_add_u32 v%d, v%d, v%d' % (e, e, dd))
        k.e('v_mov_b32 v%d, 7168' % lp); k.e('v_cndmask_b32 v%d, v%d, v%d, vcc' % (e, lp, e))
        k.e('v_add_u32 v%d, %d, v%d' % (IM + c, K1_IMG, e))
    k.lines.extend(rr([capture(k, lambda c=c: elem(c)) for c in range(4)]))
    k.e('s_mul_i32 s46, s45, 36'); k.e('v_lshlrev_b32 v13, 2, v15'); k.e('v_add_u32 v13, s46, v13')
    for tt in range(3):
        if tt: k.e('v_add_u32 v13, 16, v13')
        fm_store_voff(k, SO + tt, 13, 14, 8)
    k.e('v_cmp_eq_u32 vcc, 0, v15'); k.e('v_mov_b32 v8, 0x%x' % OOB); k.e('v_cndmask_b32 v%d, v8, v%d, vcc' % (SO + 2, SO + 2))
    for q in range(4): k.e('v_mov_b32 v%d, 0x3f803f80' % (232 + q))
    k.e('s_mul_i32 s46, s22, 12288'); k.e('s_add_u32 s46, s46, %d' % K1_PART); k.e('v_add_u32 v236, s46, v1')
    k.e('s_lshl_b32 s46, s44, 3'); k.e('s_lshl_b32 s47, s22, 1'); k.e('s_add_u32 s46, s46, s47')
    k.e('s_mul_i32 s46, s46, 18432'); k.e('s_add_u32 s54, s46, 0x%x' % OB(layer)); k.e('s_add_u32 s55, s54, 18432')
    k.wait_vm('cs')
    for q in range(1, NCS): k.e('v_add_f32 v192, v192, v%d' % (192 + q))
    k.e('v_add_u32 v238, %d, v238' % CSL)
    k.lds('ds_write_b32 v238, v192')
    yield
    k.stamp(6)
    def setup():
        for _ in range(40): yield
        stats_finish(k, K1_STAT); yield
        k.e('v_lshlrev_b32 v12, 4, v15'); k.e('v_add_u32 v12, s30, v12')
        k.e('v_lshlrev_b32 v13, 2, v14'); k.e('v_add_u32 v13, s30, v13'); yield
        for i in range(2):
            k.lds('ds_read_b128 %s, v12 offset:%d' % (vr(NM4 + 4 * i), 64 * i)); yield
            k.lds('ds_read_b128 %s, v12 offset:%d' % (vr(RS4 + 4 * i), 128 + 64 * i)); yield
            k.lds('ds_read_b32 v%d, v13 offset:%d' % (NM1 + i, 64 * i)); yield
            k.lds('ds_read_b32 v%d, v13 offset:%d' % (RS1 + i, 128 + 64 * i)); yield
        k.e('v_lshlrev_b32 v12, 4, v15'); k.e('v_add_u32 v12, %d, v12' % CSL); k.e('v_lshlrev_b32 v13, 2, v14'); k.e('v_add_u32 v13, %d, v13' % CSL); yield
        for tt in range(6):
            k.lds('ds_read_b32 v%d, v13 offset:%d' % (192 + tt, (3 + tt) * 64)); yield
        for tt in range(3):
            k.lds('ds_read_b128 %s, v12 offset:%d' % (vr(200 + 4 * tt), tt * 64)); yield
    def loads():
        for p_ in range(16):
            k.e('s_add_u32 s52, s50, %d' % (p_ * 3072))
            k.vmem('buffer_load_dwordx4 %s, v%d, s[8:11], s52 offen sc0 sc1' % (vr(48 + 4 * p_), GV), 'kvp')
    def check():
        k.e('v_max_u32 v8, v48, v49')
        for p_ in range(1, 32): k.e('v_max3_u32 v8, v8, v%d, v%d' % (48 + 2 * p_, 49 + 2 * p_))
        k.e('v_cmp_eq_u32 vcc, -1, v8')
    def mid():
        for q in range(4): k.e('v_mov_b32 v%d, 0' % (8 + q))
        k.e('s_lshl_b32 s46, s22, 11'); k.e('s_add_u32 s46, s46, %d' % K1_IMG); k.e('v_add_u32 v12, s46, v1')
        k.lds('ds_write_b128 v12, v[8:11]'); k.lds('ds_write_b128 v12, v[8:11] offset:1024')
        k.e('s_nop 7')
        for tt in range(6):
            def two(i, r):
                b = A1 + (i * 6 + tt) * 4 + r
                k.e(pk('fma', b, NM4 + 4 * i + r, ('b', 192 + tt), b))
                k.e(pk('mul', b, b, RS4 + 4 * i + r))
                if tt < 3:
                    for q in range(2):
                        n = i * 4 + r + q
                        phi_ops(k, b + q, 168 + 2 * n, 169 + 2 * n, 's[%d:%d]' % (32 + (n % 4) * 2, 33 + (n % 4) * 2) if i == 0 else ('s[%d:%d]' % (56, 57) if False else 's[%d:%d]' % (32 + (n % 4) * 2, 33 + (n % 4) * 2)))
            for i in range(2):
                k.lines.extend(rr([capture(k, lambda r=r: two(i, r)) for r in (0, 2)]))
                b = A1 + (i * 6 + tt) * 4; f = PK + tt * 4 + 2 * i
                k.e('v_cvt_pk_bf16_f32 v%d, v%d, v%d' % (f, b, b + 1)); k.e('v_cvt_pk_bf16_f32 v%d, v%d, v%d' % (f + 1, b + 2, b + 3))
        for a in range(3):
            for b in range(4):
                T = (3 * a + b) if b < 3 else 9 + a
                k.e('v_mfma_f32_16x16x32_bf16 %s, %s, %s, 0' % (vr(A1 + 4 * T), vr(PK + 4 * a), vr(PK + 12 + 4 * b) if b < 3 else vr(232)))
        for T in (0, 1, 2, 9, 3, 4, 5, 10, 6, 7, 8, 11): k.lds('ds_write_b128 v236, %s offset:%d' % (vr(A1 + 4 * T), T * 1024))
        k.wait_lg_all()
        k.e('s_barrier')
        for c in range(4):
            for w in range(4): k.lds('ds_read_b32 v%d, v%d offset:%d' % (168 + c * 4 + w, LT + c, w * 12288))
        k.wait_lg_all()
        for c in range(4):
            B0 = 168 + c * 4
            k.e('v_add_f32 v%d, v%d, v%d' % (B0, B0, B0 + 1)); k.e('v_add_f32 v%d, v%d, v%d' % (B0 + 2, B0 + 2, B0 + 3)); k.e('v_add_f32 v%d, v%d, v%d' % (8 + c, B0, B0 + 2))
        k.vmem('buffer_store_dwordx4 v[8:11], v%d, s[8:11], s51 offen sc0 sc1' % GV)
        k.warm(WO, 8 * 18 * 4608); k.warm(WI, 4 * 324 * 1024, (1, 4 * 324 * 1024))
        k.stamp(2)
    stats_load(k, XS(xi))
    if SIDE and layer == 0: h.hook = lambda: side.loads(k, 168)
    h.run(fillers={0: (setup(), 1.0)}, mid=mid)
    k.stamp(3)
    loads()
    PQF = 144
    k.e('s_nop 7')
    for tt in range(3):
        for i in range(2):
            b = A2 + (i * 3 + tt) * 4
            for r in (0, 2):
                k.e(pk('fma', b + r, ('b', NM1 + i), 200 + 4 * tt + r, b + r)); k.e(pk('mul', b + r, b + r, ('b', RS1 + i)))
            k.lines.extend(rr([capture(k, lambda r=r: phi_ops(k, b + r, 16 + 2 * r, 17 + 2 * r, 's[%d:%d]' % (32 + 2 * r, 33 + 2 * r))) for r in range(4)]))
            f = PQF + i * 8 + tt * 2
            k.e('v_cvt_pk_bf16_f32 v%d, v%d, v%d' % (f, b, b + 1)); k.e('v_cvt_pk_bf16_f32 v%d, v%d, v%d' % (f + 1, b + 2, b + 3))
    for i in range(2):
        k.e('v_mov_b32 v%d, 0' % (PQF + i * 8 + 6)); k.e('v_mov_b32 v%d, 0' % (PQF + i * 8 + 7))
    soft_poll(k, 'P1', loads, check, 'kvp')
    k.stamp(4)
    for st in (32, 16, 8, 4):
        for p_ in range(0, st, 2): k.e(pk('add', 48 + p_, 48 + p_, 48 + p_ + st))
    for c in range(4):
        k.e('v_cvt_pk_bf16_f32 v%d, v%d, v%d' % (48 + c, 48 + c, 48 + c))
        k.lds('ds_write_b16 v%d, v%d' % (IM + c, 48 + c))
    k.e('v_add_u32 v12, %d, v1' % K1_IMG); k.e('v_lshlrev_b32 v13, 4, v15'); k.e('v_add_u32 v13, %d, v13' % (K1_IMG + 6144))
    k.e('s_mov_b32 s32, 0xffff'); k.e('s_mov_b32 s33, 0')
    k.wait_lg_all()
    k.e('s_barrier')
    for f in range(4): k.lds('ds_read_b128 %s, v13 offset:%d' % (vr(40 + 4 * f), f * 64))
    for f in range(6): k.lds('ds_read_b128 %s, v12 offset:%d' % (vr(16 + 4 * f), f * 1024))
    k.wait_lg_all()
    for kq in range(2):
        for i in range(2):
            for hh in range(2):
                d = 60 + (i * 2 + hh) * 4
                k.e('v_mfma_f32_16x16x32_bf16 %s, %s, %s, %s' % (vr(d), vr(40 + (hh * 2 + kq) * 4), vr(PQF + i * 8 + kq * 4), vr(d) if kq else '0'))
    for kq in range(2):
        for i in range(2):
            for b in range(3):
                d = 80 + (i * 3 + b) * 4
                k.e('v_mfma_f32_16x16x32_bf16 %s, %s, %s, %s' % (vr(d), vr(16 + (b * 2 + kq) * 4), vr(PQF + i * 8 + kq * 4), vr(d) if kq else '0'))
    for i in range(2):
        r0 = 60 + i * 8; r1 = r0 + 4
        for rr_ in (r0, r1):
            k.e('v_add_f32 v%d, %s, v%d' % (rr_, f32(1e-6), rr_)); k.e('v_rcp_f32 v%d, v%d' % (rr_, rr_))
        k.e('v_cndmask_b32 v%d, v%d, v%d, s[32:33]' % (r0 + 1, r1, r0))
    for i in range(2):
        r0 = 60 + i * 8; r1 = r0 + 4
        for b in range(3):
            d = 80 + (i * 3 + b) * 4
            for r in range(4):
                sel = r0 if b == 0 else (r1 if b == 2 or r >= 2 else r0 + 1)
                k.e('v_mul_f32 v%d, v%d, v%d' % (d + r, d + r, sel))
            k.e('v_cvt_pk_bf16_f32 v%d, v%d, v%d' % (d, d, d + 1)); k.e('v_cvt_pk_bf16_f32 v%d, v%d, v%d' % (d + 1, d + 2, d + 3))
            k.st('buffer_store_dwordx2 %s, v%d, s[8:11], s%d offen' % (vr(d, 2), SO + b, 54 + i))
    k.flag_addr(78, 5 * layer, 44, 45)
    k.dump(slot, 6)

K3_C = 156
K3_STAT = K1_STAT
def phase_k3(k, layer, slot=3):
    xi = 2 * layer + 1
    map_8x4(k)
    k.stamp(0)
    h = H4(k, XF(xi), WI, 324, [(9, 's', A1), (9, 'f', A2)], [12, 24] + [36] * 8, K3_C, burst=int(os.environ.get('B3', '16')), pace=int(os.environ.get('PC3', '2')))
    sw = SIDE and layer == 0
    if not sw: h.prefetch_weights(PRE1)
    yield
    if sw:
        side.process(k, 16, 2)
        side.wait(k, 16, 1); h.prefetch_weights(PRE1)
    h.prefetch_weights(PRE2)
    k.flag_addr(79, 5 * layer + 1, 44)
    k.e('s_mul_i32 s31, s45, 1152'); k.e('s_add_u32 s31, s31, 0x%x' % CSI)
    k.e('s_lshl_b32 s46, s22, 9'); k.e('v_lshlrev_b32 v12, 3, v0'); k.e('v_add_u32 v201, s46, v12'); k.e('v_min_u32 v201, 1144, v201')
    for q in range(NCI):
        if q: k.e('s_add_u32 s31, s31, 18432')
        k.vmem('buffer_load_dwordx2 %s, v201, s[8:11], s31 offen sc1' % vr(192 + 2 * q, 2), 'cs')
    NM4 = 202; RS4 = 210; NM1 = 218; RS1 = 220; SQ = 224; CC = 248; ZO = 222; PA = 223
    k.e('v_mov_b32 v%d, %s' % (CC, f32(GC1))); k.e('v_mov_b32 v%d, %s' % (CC + 1, f32(GC0))); k.e('v_mov_b32 v%d, 1.0' % (CC + 2))
    for q in range(16): k.e('v_mov_b32 v%d, 0' % (SQ + q))
    k.e('s_lshl_b32 s50, s44, 2'); k.e('s_add_u32 s50, s50, s22')
    k.e('s_lshl_b32 s51, s50, 12'); k.e('s_add_u32 s51, s51, 0x%x' % US(layer))
    k.e('s_lshl_b32 s52, s45, 8'); k.e('s_add_u32 s52, s52, s51')
    k.e('s_lshl_b32 s30, s22, 8'); k.e('s_add_u32 s30, s30, %d' % K3_STAT)
    k.e('v_lshlrev_b32 v252, 4, v15'); k.e('v_add_u32 v252, s30, v252')
    k.e('v_lshrrev_b32 v4, 1, v15'); k.e('v_lshl_add_u32 v4, v4, 4, v14'); k.e('v_lshlrev_b32 v4, 4, v4'); k.e('v_and_b32 v5, 1, v15'); k.e('v_lshl_add_u32 v%d, v5, 3, v4' % ZO)
    k.e('v_and_b32 v4, 1, v0'); k.e('v_lshlrev_b32 v4, 7, v4'); k.e('v_lshrrev_b32 v6, 1, v0'); k.e('v_lshl_add_u32 v4, v6, 2, v4'); k.e('v_add_u32 v%d, s30, v4' % PA)
    k.e('s_lshl_b32 s46, s45, 6'); k.e('s_add_u32 s46, s46, s50'); k.e('s_mul_i32 s46, s46, 9216'); k.e('s_add_u32 s34, s46, 0x%x' % Z2(layer)); k.e('s_add_u32 s35, s34, 4096'); k.e('s_add_u32 s36, s34, 8192')
    k.wait_vm('cs')
    for q in range(1, NCI): k.e(pk('add', 192, 192, 192 + 2 * q))
    k.e('v_add_u32 v201, %d, v201' % CSL)
    k.lds('ds_write_b64 v201, v[192:193]')
    yield
    k.stamp(6)
    k.flag_addr(78, 5 * layer + 2, 45, 44)
    def setup():
        for _ in range(40): yield
        stats_finish(k, K3_STAT); yield
        k.e('v_lshlrev_b32 v13, 2, v14'); k.e('v_add_u32 v13, s30, v13'); yield
        for i in range(2):
            k.lds('ds_read_b128 %s, v252 offset:%d' % (vr(NM4 + 4 * i), 64 * i)); yield
            k.lds('ds_read_b128 %s, v252 offset:%d' % (vr(RS4 + 4 * i), 128 + 64 * i)); yield
            k.lds('ds_read_b32 v%d, v13 offset:%d' % (NM1 + i, 64 * i)); yield
            k.lds('ds_read_b32 v%d, v13 offset:%d' % (RS1 + i, 128 + 64 * i)); yield
        k.e('v_lshlrev_b32 v13, 2, v14'); k.e('v_add_u32 v13, %d, v13' % CSL); yield
        for t in range(9):
            k.lds('ds_read_b32 v%d, v13 offset:%d' % (192 + t, t * 64)); yield
    def mid():
        k.e('s_nop 7')
        for t in range(9):
            def two(i, r):
                b = A1 + (i * 9 + t) * 4 + r
                k.e(pk('fma', b, NM4 + 4 * i + r, ('b', 192 + t), b))
                k.e(pk('mul', b, b, RS4 + 4 * i + r))
                gelu_pk(k, b, 240 + i * 4 + r, CC)
                k.e(pk('add', SQ + i * 4 + r, SQ + i * 4 + r, b)); k.e(pk('fma', SQ + 8 + i * 4 + r, b, b, SQ + 8 + i * 4 + r))
            k.lines.extend(rr([capture(k, lambda i=i, r=r: two(i, r)) for i in range(2) for r in (0, 2)]))
            h.pump(2)
        for sh in (8, 4, 2, 1):
            for q in range(16): k.e('v_add_f32_dpp v%d, v%d, v%d row_ror:%d row_mask:0xf bank_mask:0xf' % (SQ + q, SQ + q, SQ + q, sh))
        k.e('s_mov_b32 exec_lo, 0x00010001'); k.e('s_mov_b32 exec_hi, 0x00010001')
        for i in range(2):
            k.lds('ds_write_b128 v252, %s offset:%d' % (vr(SQ + 4 * i), 64 * i))
            k.lds('ds_write_b128 v252, %s offset:%d' % (vr(SQ + 8 + 4 * i), 128 + 64 * i))
        k.e('s_mov_b64 exec, -1')
        k.lds('ds_read_b32 v6, v%d' % PA, 'pub')
        k.e('v_lshlrev_b32 v5, 2, v0')
        k.wait_lg('pub')
        k.vmem('buffer_store_dword v6, v5, s[8:11], s52 offen sc0 sc1')
        k.warm_ws()
        k.stamp(2)
    def loads():
        for q in range(4): k.vmem('buffer_load_dwordx4 %s, v1, s[8:11], s51 offen offset:%d sc0 sc1' % (vr(SQ + 4 * q), q * 1024), 'us')
    def check():
        k.e('v_max_u32 v240, v%d, v%d' % (SQ, SQ + 1))
        for q in range(1, 8): k.e('v_max3_u32 v240, v240, v%d, v%d' % (SQ + 2 * q, SQ + 2 * q + 1))
        k.e('v_cmp_eq_u32 vcc, -1, v240')
    def z2_fin():
        for _ in range(W1): yield
        loads(); yield
        for _ in range(W2): yield
        soft_poll(k, 'P3', loads, check, 'us')
        k.stamp(3)
        L = []
        for q in range(1, 4):
            for c in range(4): L.append('    v_add_f32 v%d, v%d, v%d' % (SQ + c, SQ + c, SQ + 4 * q + c))
        L += rr([capture(k, lambda c=c: rowsum_g(k, SQ + c, SQ + 4 + c)) for c in range(4)])
        def fin(c):
            S = SQ + 2 * c; Q = S + 1
            k.e('v_mul_f32 v%d, %s, v%d' % (SQ + 8 + c, f32(-1.0 / 2304), S))
            k.e('v_mul_f32 v%d, %s, v%d' % (Q, f32(1.0 / 2304), Q))
            k.e('v_mul_f32 v%d, v%d, v%d' % (S, SQ + 8 + c, SQ + 8 + c)); k.e('v_sub_f32 v%d, v%d, v%d' % (Q, Q, S)); k.e('v_max_f32 v%d, 0, v%d' % (Q, Q))
            k.e('v_add_f32 v%d, %s, v%d' % (Q, f32(1e-5), Q)); k.e('v_rsq_f32 v%d, v%d' % (SQ + 10 + c, Q))
            k.e('v_mul_f32 v%d, v%d, v%d' % (SQ + 8 + c, SQ + 8 + c, SQ + 10 + c))
        L += rr([capture(k, lambda c=c: fin(c)) for c in range(2)])
        L += ['    v_lshlrev_b32 v4, 3, v14', '    v_add_u32 v4, s30, v4']
        yield from emit_gen(k, L)
        k.e('s_mov_b64 exec, 0xffff')
        k.lds('ds_write_b64 v4, %s' % vr(SQ + 8, 2)); k.lds('ds_write_b64 v4, %s offset:128' % vr(SQ + 10, 2))
        k.e('s_mov_b64 exec, -1'); yield
        for i in range(2):
            k.lds('ds_read_b128 %s, v252 offset:%d' % (vr(NM4 + 4 * i), 64 * i), 'st2'); yield
            k.lds('ds_read_b128 %s, v252 offset:%d' % (vr(RS4 + 4 * i), 128 + 64 * i), 'st2'); yield
        for _ in range(6): yield
        k.wait_lg('st2')
        for t in range(9):
            for i in range(2):
                b = A1 + (i * 9 + t) * 4
                for r in range(4):
                    k.e('v_fma_f32 v%d, v%d, v%d, v%d' % (b + r, b + r, RS4 + 4 * i + r, NM4 + 4 * i + r)); yield
                k.e('v_cvt_pk_bf16_f32 v%d, v%d, v%d' % (b, b, b + 1)); yield
                k.e('v_cvt_pk_bf16_f32 v%d, v%d, v%d' % (b + 1, b + 2, b + 3)); yield
                k.st('buffer_store_dwordx2 %s, v%d, s[8:11], s%d offen offset:%d' % (vr(b, 2), ZO, 34 + t // 4, (t % 4) * 1024 + i * 512)); yield
        k.e('v_lshlrev_b32 v13, 4, v15'); k.e('v_add_u32 v13, %d, v13' % (CSL + 576)); yield
        for t in range(9):
            k.lds('ds_read_b128 %s, v13 offset:%d' % (vr(A1 + 4 * t), t * 64)); yield
    W1 = int(os.environ.get('W1', '130')); W2 = int(os.environ.get('W2', '60'))
    CS1 = lambda t: A1 + 4 * t
    stats_load(k, XS(xi))
    h.run(fillers={0: (setup(), 1.0), 1: (z2_fin(), 1.5)}, mid=mid, skip=0)
    k.stamp(4)
    if FUSED: k.signal()
    if sw: side.signal(k, 12, 2)
    k.e('s_lshl_b32 s46, s44, 4'); k.e('s_add_u32 s46, s46, s45'); k.e('s_lshl_b32 s46, s46, 3'); k.e('s_lshl_b32 s47, s22, 1'); k.e('s_add_u32 s46, s46, s47')
    k.e('s_mul_i32 s46, s46, 4608'); k.e('s_add_u32 s34, s46, 0x%x' % Z1(layer)); k.e('s_add_u32 s35, s34, 4096'); k.e('s_add_u32 s36, s34, 8192')
    k.e('v_lshlrev_b32 v9, 3, v0')
    k.wait_lg_all()
    k.e('s_nop 7')
    for t in range(9):
        def two(i, r):
            b = A2 + (i * 9 + t) * 4 + r
            k.e(pk('fma', b, ('b', NM1 + i), CS1(t) + r, b))
            k.e(pk('mul', b, b, ('b', RS1 + i)))
            if not DEFER: gelu_pk(k, b, 240 + i * 4 + r, CC)
        k.lines.extend(rr([capture(k, lambda i=i, r=r: two(i, r)) for i in range(2) for r in (0, 2)]))
        for i in range(2):
            b = A2 + (i * 9 + t) * 4
            k.e('v_cvt_pk_bf16_f32 v%d, v%d, v%d' % (b, b, b + 1)); k.e('v_cvt_pk_bf16_f32 v%d, v%d, v%d' % (b + 1, b + 2, b + 3))
            tt = i * 9 + t
            if FUSED:
                k.e('v_accvgpr_write_b32 a%d, v%d' % (216 + 2 * tt, b)); k.e('v_accvgpr_write_b32 a%d, v%d' % (217 + 2 * tt, b + 1))
            else: k.st('buffer_store_dwordx2 %s, v9, s[8:11], s%d offen offset:%d' % (vr(b, 2), 34 + tt // 8, (tt % 8) * 512))
    k.dump(slot, 6)
```

```python
from lib import *
AW = 144; AO = 168; AS = 188
SJ = FLG + 10 * 32768
STG = 128 * 1024
def sdiv(k, sd, ss, d, maxv):
    for sh in range(8, 24):
        m = (1 << sh) // d + 1
        if all((x * m) >> sh == x // d for x in range(maxv + 1)):
            k.e('s_mul_i32 s%d, s%d, %d' % (sd, ss, m)); k.e('s_lshr_b32 s%d, s%d, %d' % (sd, sd, sh)); return
    raise ValueError
def ids(k):
    k.e('s_lshl_b32 s90, s2, 2'); k.e('s_add_u32 s90, s90, s22')
    sdiv(k, 91, 90, 18, 1023); k.e('s_mul_i32 s92, s91, 18'); k.e('s_sub_u32 s92, s90, s92')
    k.e('s_cmp_ge_u32 s90, 864'); k.e('s_cselect_b32 s93, 0x40000000, 0')
    k.e('s_sub_u32 s97, 1023, s90')
    sdiv(k, 94, 97, 72, 1023); k.e('s_mul_i32 s95, s94, 72'); k.e('s_sub_u32 s95, s97, s95')
    k.e('s_cmp_ge_u32 s97, 576'); k.e('s_cselect_b32 s96, 0x40000000, 0')
def loads(k, t0):
    ids(k)
    P, R, V = t0, t0 + 1, t0 + 2
    k.srd(4, 86, 576 * 4608 * 2)
    k.e('s_mul_i32 s46, s92, %d' % (32 * 9216)); k.e('s_mul_i32 s47, s91, 192'); k.e('s_add_u32 s46, s46, s47'); k.e('s_add_u32 s46, s46, s93')
    for i in range(6):
        k.e('v_add_u32 v%d, %d, v0' % (P, 64 * i)); div_const(k, R, P, 12, 383, 47)
        k.e('v_mul_u32_u24 v%d, 12, v%d' % (V, R)); k.e('v_sub_u32 v%d, v%d, v%d' % (V, P, V)); k.e('v_lshlrev_b32 v%d, 4, v%d' % (V, V))
        k.e('v_mul_u32_u24 v%d, 9216, v%d' % (R, R)); k.e('v_add_u32 v%d, v%d, v%d' % (V, V, R))
        k.vmem('buffer_load_dwordx4 %s, v%d, s[4:7], s46 offen' % (ar(AW + 4 * i), V), 'sj')
    k.srd(4, 98, 2304 * 576 * 2)
    k.e('s_mul_i32 s46, s95, %d' % (32 * 1152)); k.e('s_mul_i32 s47, s94, 144'); k.e('s_add_u32 s46, s46, s47'); k.e('s_add_u32 s46, s46, s96')
    for i in range(5):
        k.e('v_add_u32 v%d, %d, v0' % (P, 64 * i)); k.e('v_min_u32 v%d, 287, v%d' % (P, P)); div_const(k, R, P, 9, 319, 47)
        k.e('v_mul_u32_u24 v%d, 9, v%d' % (V, R)); k.e('v_sub_u32 v%d, v%d, v%d' % (V, P, V)); k.e('v_lshlrev_b32 v%d, 4, v%d' % (V, V))
        k.e('v_mul_u32_u24 v%d, 1152, v%d' % (R, R)); k.e('v_add_u32 v%d, v%d, v%d' % (V, V, R))
        k.vmem('buffer_load_dwordx4 %s, v%d, s[4:7], s46 offen' % (ar(AO + 4 * i), V), 'sj')
    k.srd(4, 88, 2048 * 2048 * 2)
    k.e('v_lshlrev_b32 v%d, 12, v14' % V); k.e('v_lshl_add_u32 v%d, v15, 4, v%d' % (V, V))
    k.e('s_lshr_b32 s46, s2, 1'); k.e('s_lshl_b32 s46, s46, 16'); k.e('s_and_b32 s47, s90, 7'); k.e('s_lshl_b32 s47, s47, 9'); k.e('s_add_u32 s46, s46, s47')
    for i in range(8): k.vmem('buffer_load_dwordx4 %s, v%d, s[4:7], s46 offen offset:%d' % (ar(AS + 4 * i), V, i * 64), 'sj')
def process(k, T, part):
    WA, RA, ON, V2, CV = T, T + 1, T + 2, T + 3, T + 4
    F = lambda n: T + 8 + (n % 6) * 4
    k.wait_vm('sj')
    if part == 2: process_ws(k)
    k.e('s_mul_i32 s46, s22, 6144'); k.e('s_add_u32 s46, s46, %d' % STG); k.e('v_add_u32 v%d, s46, v1' % WA)
    def traddr(pitch):
        k.e('v_lshrrev_b32 v%d, 2, v14' % RA); k.e('v_lshl_add_u32 v%d, v15, 3, v%d' % (RA, RA)); k.e('v_mul_u32_u24 v%d, %d, v%d' % (RA, pitch, RA))
        k.e('v_and_b32 v%d, 3, v14' % CV); k.e('v_lshl_add_u32 v%d, v%d, 3, v%d' % (RA, CV, RA)); k.e('v_add_u32 v%d, s46, v%d' % (RA, RA))
    if part == 1: process_wi(k, T, WA, RA, ON, V2, CV, F, traddr)
    else: process_wout(k, T, WA, RA, ON, V2, CV, F, traddr)
def process_ws(k):
    k.e('s_lshl_b32 s46, s90, 13'); k.e('s_add_u32 s46, s46, 0x%x' % WS); k.e('s_add_u32 s47, s46, 4096')
    for i in range(8): k.st('buffer_store_dwordx4 %s, v1, s[8:11], s%d offen offset:%d' % (ar(AS + 4 * i), 46 + i // 4, (i % 4) * 1024), 'sjo')
def process_wi(k, T, WA, RA, ON, V2, CV, F, traddr):
    for i in range(6): k.lds('ds_write_b128 v%d, %s offset:%d' % (WA, ar(AW + 4 * i), i * 1024))
    traddr(192)
    k.e('v_mov_b32 v%d, 0x3f803f80' % ON)
    k.e('v_lshlrev_b32 v%d, 2, v0' % V2); k.e('v_cmp_gt_u32 vcc, 16, v0'); k.e('v_mov_b32 v%d, 0x%x' % (CV, OOB)); k.e('v_cndmask_b32 v%d, v%d, v%d, vcc' % (V2, CV, V2))
    k.wait_lg_all()
    for j in range(6):
        for h in range(2): k.lds('ds_read_b64_tr_b16 %s, v%d offset:%d' % (vr(F(j) + 2 * h, 2), RA, h * 768 + j * 32), ('t', j))
    for j in range(6):
        k.e('s_mul_i32 s32, s91, 6'); k.e('s_add_u32 s32, s32, %d' % j)
        k.e('s_cmp_lt_u32 s32, 144'); k.e('s_cselect_b32 s33, 1, 0'); k.e('s_cselect_b32 s34, 0, 144'); k.e('s_sub_u32 s32, s32, s34')
        sdiv(k, 34, 32, 9, 300); k.e('s_mul_i32 s35, s34, 9'); k.e('s_sub_u32 s35, s32, s35')
        k.e('s_lshl_b32 s34, s34, 1'); k.e('s_add_u32 s34, s34, s33')
        k.e('s_mul_i32 s36, s34, 18'); k.e('s_add_u32 s36, s36, s92'); k.e('s_mul_i32 s36, s36, 9'); k.e('s_add_u32 s36, s36, s35'); k.e('s_lshl_b32 s36, s36, 10')
        k.e('s_add_u32 s36, s36, 0x%x' % WI); k.e('s_add_u32 s36, s36, s93')
        k.e('s_mul_i32 s37, s34, 9'); k.e('s_add_u32 s37, s37, s35'); k.e('s_lshl_b32 s37, s37, 6'); k.e('s_add_u32 s37, s37, 0x%x' % CSI); k.e('s_add_u32 s37, s37, s93')
        k.wait_lg(('t', j))
        k.st('buffer_store_dwordx4 %s, v1, s[8:11], s36 offen' % vr(F(j)), 'sjo')
        c = T + 32 + j
        k.e('v_mov_b32 v%d, 0' % c)
        for q in range(4): k.e('v_dot2_f32_bf16 v%d, v%d, v%d, v%d' % (c, F(j) + q, ON, c))
        rowsum_g(k, c, CV)
        k.vmem('buffer_atomic_add_f32 v%d, v%d, s[8:11], s37 offen' % (c, V2), 'sjo')
def process_wout(k, T, WA, RA, ON, V2, CV, F, traddr):
    for i in range(5): k.lds('ds_write_b128 v%d, %s offset:%d' % (WA, ar(AO + 4 * i), i * 1024))
    traddr(144)
    k.e('v_lshl_add_u32 v%d, v15, 3, v14' % V2); k.e('v_lshlrev_b32 v%d, 4, v%d' % (V2, V2)); k.e('v_add_u32 v%d, 4096, v%d' % (V2, V2))
    k.e('v_cmp_gt_u32 vcc, 8, v14'); k.e('v_mov_b32 v%d, 0x%x' % (CV, OOB)); k.e('v_cndmask_b32 v%d, v%d, v%d, vcc' % (V2, CV, V2))
    k.e('s_mul_i32 s36, s94, 72'); k.e('s_add_u32 s36, s36, s95'); k.e('s_mul_i32 s36, s36, 4608'); k.e('s_add_u32 s36, s36, 0x%x' % WOUT); k.e('s_add_u32 s36, s36, s96')
    k.wait_lg_all()
    for j in range(5):
        for h in range(2): k.lds('ds_read_b64_tr_b16 %s, v%d offset:%d' % (vr(F(j) + 2 * h, 2), RA, h * 576 + j * 32), ('t', j))
    for j in range(5):
        k.wait_lg(('t', j))
        if j < 4: k.st('buffer_store_dwordx4 %s, v1, s[8:11], s36 offen offset:%d' % (vr(F(j)), j * 1024), 'sjo')
        else: k.st('buffer_store_dwordx4 %s, v%d, s[8:11], s36 offen' % (vr(F(j)), V2), 'sjo')
def signal(k, T, part):
    k.wait_vm('sjo')
    k.e('s_lshl_b32 s46, s90, 2'); k.e('s_add_u32 s46, s46, 0x%x' % (SJ + 4096 * part))
    k.e('v_mov_b32 v%d, 1' % T); k.e('v_mov_b32 v%d, 0' % (T + 1))
    k.setexec(1)
    k.vmem('buffer_store_dword v%d, v%d, s[8:11], s46 offen sc0 sc1' % (T, T + 1))
    k.e('s_mov_b64 exec, -1')
def wait(k, T, part):
    name = k.newlabel('SW')
    k.e('s_mov_b32 s53, 0'); k.e('s_mov_b32 s46, 0x%x' % (SJ + 4096 * part))
    k.label(name)
    for q in range(4): k.e('buffer_load_dwordx4 %s, v1, s[8:11], s46 offen offset:%d sc0 sc1' % (vr(T + 4 * q), q * 1024))
    k.e('s_add_u32 s53, s53, 1')
    k.wait_vm_all()
    k.e('v_min_u32 v%d, v%d, v%d' % (T, T, T + 1))
    for q in range(1, 8): k.e('v_min3_u32 v%d, v%d, v%d, v%d' % (T, T, T + 2 * q, T + 2 * q + 1))
    k.e('v_cmp_eq_u32 vcc, 0, v%d' % T)
    k.e('s_cbranch_vccz %sG' % name)
    k.e('s_cmp_lt_u32 s53, 100000')
    k.e('s_cbranch_scc1 %s' % name)
    k.label(name + 'G')
```

```python
from lib import *
from phases import FUSED, DEFER, SIDE, gelu_ops, GC1, pk
import side

K4_LDS = 2 * 73728
def phase_k4(k, layer, slot=4):
    map_8x4(k)
    NS = 16; T = 3
    for q in range(1, 4): k.e('v_add_u32 v%d, %d, v1' % (1 + q, 4096 * q))
    for i in range(8):
        k.e('s_lshl_b32 s46, s22, 1'); k.e('s_add_u32 s46, s46, %d' % i); k.e('s_and_b32 s46, s46, 7')
        k.e('s_lshl_b32 s47, s44, 3'); k.e('s_add_u32 s46, s46, s47'); k.e('s_lshl_b32 s46, s46, 16')
        k.e('s_lshl_b32 s47, s22, 14'); k.e('s_add_u32 s46, s46, s47'); k.e('s_add_u32 s%d, s46, 0x%x' % (24 + i, WS))
    k.e('s_lshl_b32 s46, s45, 6'); k.e('s_lshl_b32 s47, s22, 4'); k.e('s_add_u32 s46, s46, s47'); k.e('s_mul_i32 s32, s46, 9216'); k.e('s_add_u32 s32, s32, 0x%x' % Z2(layer))
    k.stamp(0)
    ACC0 = 184
    AF = 16
    BF = 64
    TMP = 172
    def acc(i, j):
        if i < 2: return vr(ACC0 + (i * 9 + j) * 4)
        return ar(((i - 2) * 9 + j) * 4)
    B = lambda n, j: vr(BF + (n % 3) * 36 + 4 * j)
    aslot = {}
    def ldA(i, n, slot):
        aslot[(i, n)] = slot
        k.vmem('buffer_load_dwordx4 %s, v%d, s[8:11], s%d offen offset:%d%s' % (vr(AF + 4 * slot), 1 + n // 4, 24 + i, (n % 4) * 1024, os.environ.get('K4A', ' sc1')), ('A', i, n))
    A = lambda i, n: vr(AF + 4 * aslot[(i, n)])
    def ldB(j, n):
        if j % 4 == 0: k.e('s_add_u32 s33, s32, %d' % (n * 9216 + j * 1024))
        k.vmem('buffer_load_dwordx4 %s, v1, s[8:11], s33 offen offset:%d%s' % (B(n, j), (j % 4) * 1024, os.environ.get('K4B', ' sc1')), ('B', j, n))
    def mfma(i, j, n):
        k.wait_vm(('A', i, n)); k.wait_vm(('B', j, n))
        k.e('v_mfma_f32_16x16x32_bf16 %s, %s, %s, %s' % (acc(i, j), B(n, j), A(i, n), acc(i, j) if n else '0'))
    if SIDE and layer == 0: side.wait(k, 64, 2)
    k.dep_addr(5 * layer + 2, 45)
    yield
    for i in range(0, 8): ldA(i, 0, i)
    k.e('v_lshlrev_b32 v12, 1, v14'); k.e('s_lshl_b32 s46, s44, 8'); k.e('s_lshl_b32 s47, s22, 6'); k.e('s_add_u32 s46, s46, s47')
    for i in range(2): k.vmem('buffer_load_ushort v%d, v12, s[12:15], s46 offen offset:%d' % (10 + i, 32 * i), 'bias')
    for b in range(1, 4):
        k.e('s_add_u32 s46, s22, %d' % b); k.e('s_and_b32 s46, s46, 3'); k.e('s_mul_i32 s46, s46, 18432')
        k.e('s_add_u32 s46, s46, %d' % (73728 if b == 2 else 0))
        k.e('v_add_u32 v%d, s46, v1' % (4 + b))
    k.e('s_mul_i32 s46, s22, 18432'); k.e('v_add_u32 v8, s46, v1'); k.e('v_add_u32 v9, 73728, v8')
    yield
    k.stamp(6)
    for j in range(9): ldB(j, 0)
    NM = NS - T
    def z1_gelu():
        k.e('v_mov_b32 v13, %s' % f32(GC1)); yield
        for q0 in range(0, 36, 2):
            def one(c):
                a = 216 + q0 + c; t = TMP + 6 * c
                k.e('v_accvgpr_read_b32 v%d, a%d' % (t + 4, a))
                k.e('v_lshlrev_b32 v%d, 16, v%d' % (t, t + 4)); k.e('v_and_b32 v%d, 0xffff0000, v%d' % (t + 1, t + 4))
                L = rr([capture(k, lambda e=e: gelu_ops(k, t + e, t + 2 + e, 13)) for e in range(2)])
                k.lines.extend(L)
                k.e('v_cvt_pk_bf16_f32 v%d, v%d, v%d' % (t + 4, t, t + 1))
                k.e('v_accvgpr_write_b32 a%d, v%d' % (a, t + 4))
            for l in rr([capture(k, lambda c=c: one(c)) for c in range(2)]):
                k.lines.append(l); yield
    zg = z1_gelu() if DEFER else iter(())
    forder = [(i, n) for b in (1, 2, 3, 0) for i in (2 * b, 2 * b + 1) for n in range(NM, NS)]
    for n in range(NM - 1):
        for i in range(8):
            for j in range(9):
                mfma(i, j, n)
                next(zg, None)
                if i < 3 and j % 3 == 1: ldB(i * 3 + j // 3, n + 1)
                if n == NM - 2 and 3 <= i < 6 and j % 3 == 1: ldB((i - 3) * 3 + j // 3, n + 2)
            ldA(i, n + 1, i)
            if n == NM - 2 and i >= 4: ldA(*forder[i - 4], 4 + i)
    n = NM - 1
    c = 0
    for i in (2, 3):
        for j in range(9):
            mfma(i, j, n); next(zg, None)
            if c % 2 == 0: ldB(c // 2, n + 2)
            c += 1
        ldA(*forder[4 + i - 2], i)
    for q in range(4): ldA(*forder[q], 8 + q) if False else None
    rest = (4, 5, 6, 7, 0, 1)
    for j in range(9):
        for i in rest:
            mfma(i, j, n); next(zg, None)
        ldB(j, NS - 1)
    for q, i in enumerate(rest): ldA(*forder[6 + q], i)
    for _ in zg: pass
    nextA = 12
    k.stamp(1)
    k.e('s_lshl_b32 s46, s44, 4'); k.e('s_add_u32 s46, s46, s45'); k.e('s_lshl_b32 s46, s46, 3'); k.e('s_lshl_b32 s47, s22, 1'); k.e('s_add_u32 s46, s46, s47')
    k.e('s_mul_i32 s34, s46, 4608'); k.e('s_add_u32 s34, s34, 0x%x' % Z1(layer))
    k.e('v_lshlrev_b32 v13, 3, v0')
    def phase(b, side, pre_tile=None):
        nonlocal nextA
        ms = [(i, n, j) for i in (2 * b, 2 * b + 1) for n in range(NM, NS) for j in range(9)]
        if pre_tile: ms = [(i, n, j) for i in (2 * b, 2 * b + 1) for j in range(9) for n in range(NM, NS)]
        tot = len(ms); si = 0
        done = {}
        for c, (i, n, j) in enumerate(ms):
            if pre_tile and n == NM: pre_tile(i, j)
            mfma(i, j, n)
            done[(i, n)] = done.get((i, n), 0) + 1
            if done[(i, n)] == 9 and nextA < len(forder):
                ldA(*forder[nextA], aslot[(i, n)]); nextA += 1
            while si < len(side) and si * tot <= c * len(side):
                side[si](); si += 1
        while si < len(side): side[si](); si += 1
    def writes(b):
        return [(lambda t=t: k.lds('ds_write_b128 v%d, %s offset:%d' % (4 + b, acc(2 * b + t // 9, t % 9), t * 1024))) for t in range(18)]
    def readadd(vaddr):
        ops = []
        for t in range(18):
            tm = TMP + (t % 3) * 4
            ops.append(lambda t=t, tm=tm: k.lds('ds_read_b128 %s, v%d offset:%d' % (vr(tm), vaddr, t * 1024), ('R', t)))
            if t >= 2:
                def add(t=t - 2):
                    tm = TMP + (t % 3) * 4
                    k.wait_lg(('R', t))
                    for q in range(4): k.e('v_add_f32 v%d, v%d, v%d' % (ACC0 + 4 * t + q, ACC0 + 4 * t + q, tm + q))
                ops.append(add)
        for t in (16, 17):
            def add(t=t):
                tm = TMP + (t % 3) * 4
                k.wait_lg(('R', t))
                for q in range(4): k.e('v_add_f32 v%d, v%d, v%d' % (ACC0 + 4 * t + q, ACC0 + 4 * t + q, tm + q))
            ops.append(add)
        return ops
    def merge(a, b):
        out = []; n = max(len(a), len(b))
        ia = ib = 0
        for c in range(len(a) + len(b)):
            if ib >= len(b) or (ia < len(a) and ia * len(b) <= ib * len(a)): out.append(a[ia]); ia += 1
            else: out.append(b[ib]); ib += 1
        return out
    k.e('v_lshlrev_b32 v10, 16, v10'); k.e('v_lshlrev_b32 v11, 16, v11')
    phase(1, [(lambda r=r: k.e('v_add_f32 v%d, v%d, v%d' % (ACC0 + r, ACC0 + r, 10 + r // 36))) for r in range(72)])
    k.warm(WOUT, 8 * 72 * 4608, vt=12)
    phase(2, writes(1))
    k.wait_lg_all(); k.e('s_barrier')
    phase(3, merge(writes(2), readadd(8)))
    k.wait_lg_all(); k.e('s_barrier')
    z1ld = [(lambda t=t: (k.e('s_add_u32 s35, s34, %d' % ((t // 8) * 4096)), k.vmem('buffer_load_dwordx2 a[%d:%d], v13, s[8:11], s35 offen offset:%d sc1' % (2 * t, 2 * t + 1, (t % 8) * 512), 'z1'))) for t in range(18)]
    for t in range(2): k.lds('ds_read_b128 %s, v9 offset:%d' % (vr(TMP + (t % 3) * 4), t * 1024), ('R', t))
    def pre(i, j):
        t = i * 9 + j
        if t + 2 < 18: k.lds('ds_read_b128 %s, v9 offset:%d' % (vr(TMP + ((t + 2) % 3) * 4), (t + 2) * 1024), ('R', t + 2))
        k.wait_lg(('R', t))
        tm = TMP + (t % 3) * 4
        for q in range(4): k.e('v_add_f32 v%d, v%d, v%d' % (ACC0 + 4 * t + q, ACC0 + 4 * t + q, tm + q))
    phase(0, writes(3) if FUSED else merge(writes(3), z1ld), pre_tile=pre)
    k.wait_lg_all(); k.e('s_barrier')
    k.stamp(2)
    for t in range(18): k.lds('ds_read_b128 %s, v8 offset:%d' % (vr(16 + 4 * t), t * 1024), ('R', t))
    k.e('s_mul_i32 s46, s45, 144'); k.e('v_lshlrev_b32 v13, 2, v15'); k.e('v_add_u32 v13, s46, v13')
    fm_store_voff(k, 12, 13, 14, 9)
    k.e('s_lshl_b32 s46, s44, 3'); k.e('s_lshl_b32 s47, s22, 1'); k.e('s_add_u32 s46, s46, s47'); k.e('s_mul_i32 s46, s46, %d' % (72 * 1024)); k.e('s_add_u32 s36, s46, 0x%x' % Y(layer))
    k.e('s_add_u32 s37, s36, 4096'); k.e('s_add_u32 s38, s36, %d' % (72 * 1024)); k.e('s_add_u32 s39, s38, 4096')
    k.wait_vm_all()
    for t in range(18):
        i, j = divmod(t, 9)
        b = ACC0 + 4 * t; tm = 16 + 4 * t; z = 100 + (t % 2) * 6
        zo = 216 if FUSED else 0
        k.e('v_accvgpr_read_b32 v%d, a%d' % (z + 4, zo + 2 * t)); k.e('v_accvgpr_read_b32 v%d, a%d' % (z + 5, zo + 2 * t + 1))
        for r in range(4):
            if r % 2 == 0: k.e('v_lshlrev_b32 v%d, 16, v%d' % (z + r, z + 4 + r // 2))
            else: k.e('v_and_b32 v%d, 0xffff0000, v%d' % (z + r, z + 4 + r // 2))
        k.wait_lg(('R', t))
        for r in (0, 2): k.e(pk('add', b + r, b + r, tm + r))
        for r in (0, 2): k.e(pk('mul', b + r, b + r, z + r))
        k.e('v_cvt_pk_bf16_f32 v%d, v%d, v%d' % (b, b, b + 1)); k.e('v_cvt_pk_bf16_f32 v%d, v%d, v%d' % (b + 1, b + 2, b + 3))
        k.st('buffer_store_dwordx2 %s, v12, s[8:11], s%d offen offset:%d' % (vr(b, 2), 36 + 2 * i + j // 8, (j % 8) * 512))
    k.stamp(3)
    k.sig_addr(5 * layer + 3, 44, 16, 1, 45)
    k.dump(slot, 5)
```

```python
from lib import *
import side
from phases import SIDE, pk
K5_LDS = 4 * 15360
RB = 96 * 1024
def phase_k5(k, inst, YB, KB, WB, xin, xout, slot=5):
    final = xout is None
    NST = (KB + 3) // 4
    map_4x8(k)
    k.e('v_and_b32 v2, 7, v0'); k.e('v_lshl_add_u32 v2, v15, 3, v2'); k.e('v_lshlrev_b32 v2, 4, v2'); k.e('v_add_u32 v2, 4096, v2')
    RD = 5; FR = 16
    k.e('s_mul_i32 s55, s22, %d' % NST); k.e('s_mov_b32 s56, 0')
    if KB % 4:
        k.e('s_cmp_eq_u32 s22, 3'); k.e('s_cselect_b32 s46, 1, 0'); k.e('s_sub_u32 s55, s55, s46')
        k.e('s_cmp_ge_u32 s22, 2'); k.e('s_cselect_b32 s56, 0x40000000, 0')
    for i in range(4):
        k.e('s_add_u32 s46, s22, %d' % i); k.e('s_and_b32 s46, s46, 3'); k.e('s_lshl_b32 s47, s44, 2'); k.e('s_add_u32 s46, s46, s47')
        k.e('s_mul_i32 s46, s46, %d' % KB); k.e('s_add_u32 s46, s46, s55'); k.e('s_lshl_b32 s46, s46, 10'); k.e('s_add_u32 s%d, s46, 0x%x' % (24 + i, YB))
    k.e('s_mul_i32 s46, s45, %d' % KB); k.e('s_add_u32 s46, s46, s55'); k.e('s_mul_i32 s28, s46, 4608'); k.e('s_add_u32 s28, s28, 0x%x' % WB)
    F = lambda n, f: vr(FR + ((n % RD) * 9 + f) * 4)
    def ldw_g(n):
        if n: k.e('s_add_u32 s28, s28, 4608')
        if KB % 4 and n == NST - 1: k.e('s_add_u32 s28, s28, s56')
        for j in range(5):
            if j < 4: k.vmem('buffer_load_dwordx4 %s, v1, s[8:11], s28 offen offset:%d sc1' % (F(n, 4 + j), j * 1024), ('f', n, 4 + j))
            else: k.vmem('buffer_load_dwordx4 %s, v2, s[8:11], s28 offen sc1' % F(n, 8), ('f', n, 8))
            yield
    def ldy_g(n):
        if n % 4 == 0 and n:
            for i in range(4): k.e('s_add_u32 s%d, s%d, 4096' % (24 + i, 24 + i))
        if KB % 4 and n == NST - 1:
            for i in range(4): k.e('s_add_u32 s%d, s%d, s56' % (24 + i, 24 + i))
        for j in range(4):
            k.vmem('buffer_load_dwordx4 %s, v1, s[8:11], s%d offen offset:%d sc1' % (F(n, j), 24 + j, (n % 4) * 1024), ('f', n, j))
            yield
    def ldw(n):
        for _ in ldw_g(n): pass
    def ldy(n):
        for _ in ldy_g(n): pass
    def ld_g(n):
        yield from ldw_g(n); yield from ldy_g(n)
    k.stamp(0)
    k.e('s_lshr_b32 s51, s44, 1')
    k.dep_addr(inst - 1, 51)
    ldw(0)
    yield
    k.e('s_mul_i32 s46, s45, 72'); k.e('v_lshlrev_b32 v4, 2, v15'); k.e('v_add_u32 v4, s46, v4')
    for j in range(5):
        if j: k.e('v_add_u32 v4, 16, v4')
        fm_store_voff(k, 5 + j, 4, 14, 10)
        if final:
            k.e('v_mul_u32_u24 v%d, 1152, v14' % (200 + j)); k.e('v_lshl_add_u32 v%d, v4, 1, v%d' % (200 + j, 200 + j))
    k.e('v_cmp_gt_u32 vcc, 2, v15'); k.e('v_mov_b32 v10, 0x%x' % OOB); k.e('v_cndmask_b32 v9, v10, v9, vcc')
    if final: k.e('v_cndmask_b32 v204, v10, v204, vcc')
    k.e('s_lshl_b32 s50, s44, 2'); k.e('s_add_u32 s50, s50, s22')
    k.e('s_mul_i32 s52, s50, 18432'); k.e('s_add_u32 s54, s52, 0x%x' % XF(xin)); k.e('s_add_u32 s57, s52, 0x%x' % XF(xout or 0))
    for j in range(5): k.vmem('buffer_load_dwordx2 %s, v%d, s[8:11], s54 offen sc1' % (vr(206 + 2 * j, 2), 5 + j), 'res')
    if SIDE and inst == 1:
        side.process(k, 216, 1)
    O0 = 216
    NPW = int(os.environ.get('NPW', '5'))
    for n in range(1, NPW): ldw(n)
    for i in range(1, 4):
        k.e('s_add_u32 s46, s22, %d' % i); k.e('s_and_b32 s46, s46, 3'); k.e('s_mul_i32 s46, s46, 3'); k.e('s_add_u32 s46, s46, %d' % (i - 1)); k.e('s_mul_i32 s46, s46, 5120'); k.e('s_add_u32 s46, s46, %d' % RB)
        k.e('v_add_u32 v%d, s46, v1' % (240 + i))
    k.e('s_mul_i32 s46, s22, 15360'); k.e('s_add_u32 s46, s46, %d' % RB); k.e('v_add_u32 v240, s46, v1')
    for q in range(4): k.e('v_mov_b32 v%d, 0' % (244 + q))
    if not final:
        k.e('s_lshl_b32 s46, s50, 7'); k.e('s_lshl_b32 s47, s45, 14'); k.e('s_add_u32 s46, s46, s47'); k.e('s_add_u32 s29, s46, 0x%x' % XS(xout))
        k.e('v_lshlrev_b32 v248, 3, v14')
    k.wait_vm('res')
    for j in range(5):
        for r in range(4):
            if r % 2 == 0: k.e('v_lshlrev_b32 v%d, 16, v%d' % (O0 + 4 * j + r, 206 + 2 * j + r // 2))
            else: k.e('v_and_b32 v%d, 0xffff0000, v%d' % (O0 + 4 * j + r, 206 + 2 * j + r // 2))
    yield
    k.stamp(6)
    for n in range(RD):
        ldy(n)
        if n >= NPW: ldw(n)
    AC = lambda i, j: ar((i * 5 + j) * 4) if i else vr(O0 + 4 * j)
    for n in range(NST):
        last = n == NST - 1
        lg = ld_g(n - 1 + RD) if (n >= 1 and n - 1 + RD < NST) else iter(())
        c = 0
        for i in ((1, 2, 3, 0) if last else range(4)):
            for j in range(5):
                k.wait_vm(('f', n, i)); k.wait_vm(('f', n, 4 + j))
                k.e('v_mfma_f32_16x16x32_bf16 %s, %s, %s, %s' % (AC(i, j), F(n, 4 + j), F(n, i), AC(i, j) if (n or i == 0) else '0'))
                if c % 2 == 0: next(lg, None)
                if last and c >= 7 and c - 7 < 15:
                    pi, pj = 1 + (c - 7) // 5, (c - 7) % 5
                    k.lds('ds_write_b128 v%d, %s offset:%d' % (240 + pi, AC(pi, pj), pj * 1024))
                c += 1
        for _ in lg: pass
    for c in range(13, 15):
        pi, pj = 1 + c // 5, c % 5
        k.lds('ds_write_b128 v%d, %s offset:%d' % (240 + pi, AC(pi, pj), pj * 1024))
    k.stamp(2)
    if SIDE and inst == 1: side.signal(k, 250, 1)
    k.wait_lg_all()
    k.e('s_barrier')
    for j in range(5):
        for s_ in range(3): k.lds('ds_read_b128 %s, v240 offset:%d' % (vr(16 + (j * 3 + s_) * 4), (s_ * 5 + j) * 1024), ('r', j))
    for j in range(5):
        b = O0 + 4 * j; t = 16 + 12 * j
        k.wait_lg(('r', j))
        if j == 4: k.setexec(32)
        for r in (0, 2):
            k.e(pk('add', t + r, t + r, t + 4 + r)); k.e(pk('add', b + r, b + r, t + 8 + r))
        for r in (0, 2): k.e(pk('add', b + r, b + r, t + r))
        k.e('v_cvt_pk_bf16_f32 v%d, v%d, v%d' % (t, b, b + 1)); k.e('v_cvt_pk_bf16_f32 v%d, v%d, v%d' % (t + 1, b + 2, b + 3))
        if final: k.vmem('buffer_store_dwordx2 %s, v%d, s[16:19], s52 offen' % (vr(t, 2), 200 + j))
        else:
            k.st('buffer_store_dwordx2 %s, v%d, s[8:11], s57 offen' % (vr(t, 2), 5 + j))
            for r in (0, 2):
                k.e(pk('add', 244, 244, b + r)); k.e(pk('fma', 246, b + r, b + r, 246))
    k.e('s_mov_b64 exec, -1')
    if not final:
        k.e('v_add_f32 v12, v244, v245'); k.e('v_add_f32 v13, v246, v247')
        k.lines.extend(rr([capture(k, lambda: rowsum_g(k, 12, 10)), capture(k, lambda: rowsum_g(k, 13, 11))]))
        k.e('s_mov_b64 exec, 0xffff')
        k.st('buffer_store_dwordx2 v[12:13], v248, s[8:11], s29 offen')
        k.e('s_mov_b64 exec, -1')
    k.e('s_barrier')
    k.stamp(3)
    k.e('s_mov_b64 exec, -1')
    k.e('s_and_b32 s46, s44, 1'); k.e('s_lshl_b32 s46, s46, 3'); k.e('s_add_u32 s46, s46, s45')
    k.sig_addr(inst, 51, 16, 1, 46)
    k.dump(slot, 5)
    k.e('s_mov_b64 exec, -1')
```

```python
from lib import *
NT = 576
def unit(k, srd, pitch, vsrc, vdst, sdst, colsum):
    for e in range(8):
        k.e('s_mov_b32 s40, %d' % (e * pitch))
        k.vmem('buffer_load_dwordx2 %s, v%d, s[%d:%d], s40 offen' % (vr(16 + 2 * e, 2), vsrc, srd, srd + 3))
    k.e('s_mov_b32 s41, 0x05040100'); k.e('s_mov_b32 s42, 0x07060302')
    k.wait_vm_all()
    for c in range(4):
        for q in range(4):
            k.e('v_perm_b32 v%d, v%d, v%d, s%d' % (32 + 4 * c + q, 16 + 2 * (2 * q + 1) + c // 2, 16 + 2 * (2 * q) + c // 2, 41 + c % 2))
        k.vmem('buffer_store_dwordx4 %s, v%d, s[8:11], s%d offen offset:%d' % (vr(32 + 4 * c), vdst, sdst, 16 * c))
    if colsum:
        k.e('v_mov_b32 v52, 0x3f803f80')
        for c in range(4):
            k.e('v_mov_b32 v%d, 0' % (48 + c))
            for q in range(4): k.e('v_dot2_f32_bf16 v%d, v%d, v52, v%d' % (48 + c, 32 + 4 * c + q, 48 + c))

def colsum_finish(k, dst):
    k.e('v_lshlrev_b32 v8, 4, v3')
    k.lds('ds_write_b128 v8, v[48:51]')
    k.wait_lg_all()
    k.e('s_barrier')
    k.e('s_cmp_ge_u32 s22, 2'); k.e('s_cbranch_scc1 %s' % k.end)
    k.e('v_lshlrev_b32 v8, 2, v3')
    for c in range(18): k.lds('ds_read_b32 v%d, v8 offset:%d' % (16 + c, c * 512))
    k.wait_lg_all()
    for c in range(1, 18): k.e('v_add_f32 v16, v16, v%d' % (16 + c))
    k.e('s_add_u32 s43, s43, 0x%x' % dst)
    k.vmem('buffer_store_dword v16, v8, s[8:11], s43 offen')
    k.e('s_endpgm')

class KP(K):
    def vmem(self, s, tag=None):
        if os.environ.get('P0SC') and s.startswith('buffer_store_dwordx4') and ', v1, ' in s: s += ' ' + os.environ['P0SC']
        if os.environ.get('P0NT', '') and s.startswith('buffer_load'): s += ' ' + os.environ.get('P0NT', '')
        K.vmem(self, s, tag)
def gen_p0(with_ws=False):
    k = KP('p0_kernel')
    cnt = [('XF', 128), ('WQ', 72), ('WO', 18), ('KZ', 42), ('WI', 144), ('WOUT', 72), ('WS', 128)]
    if with_ws: cnt = [('XF', 128), ('WS', 128), ('WI', 144), ('WQ', 72), ('WOUT', 72), ('WO', 18), ('KZ', 42)]
    R = {}; o = 0
    for n, c in cnt: R[n] = (o, o + c); o += c
    NWG = o if with_ws else R['WI'][0]
    with_ws = True
    k.start(NWG, [(0, 12, 2048 * 576 * 2), (1, 16, 576 * 1728 * 2), (2, 24, 576 * 576 * 2), (4, 28, 576 * 4608 * 2), (5, 32, 2048 * 2048 * 2), (7, 36, 2304 * 576 * 2)])
    k.e('s_lshl_b32 s40, s22, 6'); k.e('v_add_u32 v3, s40, v0')
    names = [n for n, _ in cnt]
    for n in names[1:][::-1]:
        k.e('s_cmp_ge_u32 s2, %d' % R[n][0])
        k.e('s_cbranch_scc1 P0_%s' % n)
    k.e('v_mul_u32_u24 v2, 1152, v14'); k.e('v_lshl_add_u32 v2, v15, 4, v2')
    k.e('s_mul_i32 s40, s2, 18432'); k.e('s_lshl_b32 s41, s22, 7'); k.e('s_add_u32 s41, s41, s40')
    k.e('s_lshl_b32 s42, s22, 11'); k.e('s_add_u32 s42, s42, s40'); k.e('s_add_u32 s42, s42, 0x%x' % XF(0))
    for i in range(2): k.vmem('buffer_load_dwordx4 %s, v2, s[12:15], s41 offen offset:%d' % (vr(16 + 4 * i), i * 64), i)
    k.e('v_mov_b32 v8, 0'); k.e('v_mov_b32 v9, 0'); k.e('v_mov_b32 v31, 0x3f803f80')
    for i in range(2):
        k.wait_vm(i)
        k.vmem('buffer_store_dwordx4 %s, v1, s[8:11], s42 offen offset:%d' % (vr(16 + 4 * i), i * 1024))
        for q in range(4):
            k.e('v_dot2_f32_bf16 v8, v%d, v31, v8' % (16 + 4 * i + q))
            k.e('v_dot2_f32_bf16 v9, v%d, v%d, v9' % (16 + 4 * i + q, 16 + 4 * i + q))
    rowsum_g(k, 8, 10); rowsum_g(k, 9, 10)
    k.e('s_lshl_b32 s41, s22, 7'); k.e('v_lshlrev_b32 v4, 3, v14'); k.e('v_add_u32 v5, s41, v4')
    k.lds('ds_write_b64 v5, v[8:9]')
    k.wait_lg_all()
    k.e('s_barrier')
    k.e('s_cmp_ge_u32 s22, 1'); k.e('s_cbranch_scc1 %s' % k.end)
    for w in range(9): k.lds('ds_read_b64 %s, v4 offset:%d' % (vr(16 + 2 * w, 2), w * 128))
    k.wait_lg_all()
    for w in range(1, 9):
        k.e('v_add_f32 v16, v16, v%d' % (16 + 2 * w)); k.e('v_add_f32 v17, v17, v%d' % (17 + 2 * w))
    k.e('v_cmp_eq_u32 vcc, 0, v15')
    k.e('v_cndmask_b32 v8, 0, v16, vcc'); k.e('v_cndmask_b32 v9, 0, v17, vcc'); k.e('v_mov_b32 v10, 0'); k.e('v_mov_b32 v11, 0')
    k.e('v_lshl_add_u32 v2, v15, 14, v4')
    k.e('s_lshl_b32 s40, s2, 7'); k.e('s_add_u32 s40, s40, 0x%x' % XS(0)); k.e('s_add_u32 s41, s40, 65536')
    k.vmem('buffer_store_dwordx2 v[8:9], v2, s[8:11], s40 offen')
    k.vmem('buffer_store_dwordx2 v[10:11], v2, s[8:11], s41 offen')
    k.e('s_endpgm')
    def quarter_setup(base):
        k.e('s_sub_u32 s45, s2, %d' % base); k.e('s_and_b32 s44, s45, 3'); k.e('s_lshr_b32 s45, s45, 2')
        k.e('v_lshrrev_b32 v6, 5, v3'); k.e('s_mul_i32 s40, s44, 18'); k.e('v_add_u32 v6, s40, v6')
        k.e('v_and_b32 v7, 31, v3'); k.e('v_lshlrev_b32 v7, 2, v7'); k.e('s_lshl_b32 s40, s45, 7'); k.e('v_add_u32 v7, s40, v7')
        k.e('v_lshrrev_b32 v4, 2, v6'); k.e('v_and_b32 v5, 3, v6')
    k.label('P0_WQ'); k.vm = []; k.lg = []
    quarter_setup(R['WQ'][0])
    div_const(k, 8, 7, 144, 2303)
    k.e('v_mul_u32_u24 v9, 144, v8'); k.e('v_sub_u32 v9, v7, v9')
    k.e('v_and_b32 v10, 15, v9'); k.e('v_lshrrev_b32 v9, 4, v9')
    div_const(k, 11, 9, 3, 8)
    k.e('v_mul_u32_u24 v12, 3, v11'); k.e('v_sub_u32 v12, v9, v12'); k.e('v_lshl_add_u32 v12, v12, 4, v10')
    k.e('v_cmp_gt_u32 vcc, 36, v12')
    k.e('v_mul_u32_u24 v11, 576, v11'); k.e('v_mul_u32_u24 v13, 36, v8'); k.e('v_add3_u32 v12, v12, v11, v13'); k.e('v_lshlrev_b32 v12, 1, v12')
    k.e('s_mov_b32 s40, %d' % (8 * 3456)); k.e('v_mad_u32_u24 v12, v6, s40, v12')
    k.e('v_mov_b32 v11, 0x%x' % OOB); k.e('v_cndmask_b32 v12, v11, v12, vcc')
    k.e('v_cmp_le_u32 vcc, 3, v9'); k.e('v_add_u32 v11, 108, v9'); k.e('v_subrev_u32 v9, 3, v9'); k.e('v_cndmask_b32 v9, v11, v9, vcc')
    k.e('v_mov_b32 v13, 3'); k.e('v_mov_b32 v11, 6'); k.e('v_cndmask_b32 v13, v13, v11, vcc')
    k.e('v_mad_u32_u24 v9, v4, v13, v9'); k.e('v_mul_u32_u24 v11, 162, v8'); k.e('v_add_u32 v9, v9, v11'); k.e('v_lshlrev_b32 v9, 10, v9')
    k.e('v_lshl_add_u32 v9, v5, 8, v9'); k.e('v_lshl_add_u32 v9, v10, 4, v9')
    k.e('s_mov_b32 s46, 0x%x' % WQ)
    unit(k, 16, 3456, 12, 9, 46, True)
    k.e('s_mul_i32 s43, s44, 9216'); k.e('s_lshl_b32 s40, s45, 9'); k.e('s_add_u32 s43, s43, s40')
    colsum_finish(k, CSQ)
    k.label('P0_WI'); k.vm = []; k.lg = []
    quarter_setup(R['WI'][0])
    div_const(k, 8, 7, 288, 4607)
    k.e('v_mul_u32_u24 v9, 288, v8'); k.e('v_sub_u32 v9, v7, v9')
    k.e('v_cmp_le_u32 vcc, 144, v9')
    k.e('v_add_u32 v12, 2304, v9'); k.e('v_subrev_u32 v11, 144, v9'); k.e('v_cndmask_b32 v12, v12, v11, vcc')
    k.e('v_mul_u32_u24 v11, 144, v8'); k.e('v_add_u32 v12, v12, v11'); k.e('v_lshlrev_b32 v12, 1, v12')
    k.e('s_mov_b32 s40, %d' % (8 * 9216)); k.e('v_mad_u32_u24 v12, v6, s40, v12')
    k.e('v_and_b32 v10, 15, v9'); k.e('v_lshrrev_b32 v9, 4, v9')
    k.e('v_add_u32 v11, 153, v9'); k.e('v_cndmask_b32 v9, v9, v11, vcc')
    k.e('v_mad_u32_u24 v9, v4, 9, v9'); k.e('v_mul_u32_u24 v11, 324, v8'); k.e('v_add_u32 v9, v9, v11'); k.e('v_lshlrev_b32 v9, 10, v9')
    k.e('v_lshl_add_u32 v9, v5, 8, v9'); k.e('v_lshl_add_u32 v9, v10, 4, v9')
    k.e('s_mov_b32 s46, 0x%x' % WI)
    unit(k, 28, 9216, 12, 9, 46, True)
    k.e('s_mul_i32 s43, s44, 18432'); k.e('s_lshl_b32 s40, s45, 9'); k.e('s_add_u32 s43, s43, s40')
    colsum_finish(k, CSI)
    for nm, srd, KB, dst in (('WOUT', 36, 72, WOUT), ('WO', 24, 18, WO)):
        k.label('P0_%s' % nm); k.vm = []; k.lg = []
        k.e('s_sub_u32 s45, s2, %d' % R[nm][0]); k.e('s_mul_i32 s44, s45, 57'); k.e('s_lshr_b32 s44, s44, 9')
        k.e('s_mul_i32 s40, s44, 9'); k.e('s_sub_u32 s45, s45, s40')
        k.e('v_lshrrev_b32 v6, 4, v3'); k.e('s_mul_i32 s40, s44, 36'); k.e('v_add_u32 v6, s40, v6')
        k.e('v_lshlrev_b32 v7, 2, v14'); k.e('s_lshl_b32 s40, s45, 6'); k.e('v_add_u32 v7, s40, v7')
        k.e('v_lshrrev_b32 v4, 2, v6'); k.e('v_and_b32 v5, 3, v6')
        div_const(k, 8, 7, 72, 575)
        k.e('v_mul_u32_u24 v9, 72, v8'); k.e('v_sub_u32 v9, v7, v9')
        k.e('v_lshlrev_b32 v12, 1, v7'); k.e('s_mov_b32 s40, %d' % (8 * 1152)); k.e('v_mad_u32_u24 v12, v6, s40, v12')
        k.e('v_and_b32 v10, 15, v9'); k.e('v_lshrrev_b32 v9, 4, v9')
        k.e('v_cmp_gt_u32 vcc, 4, v9'); k.e('v_mov_b32 v13, 128'); k.e('v_mov_b32 v11, 256'); k.e('v_cndmask_b32 v13, v13, v11, vcc')
        k.e('v_mul_u32_u24 v8, %d, v8' % KB); k.e('v_add_u32 v8, v8, v4'); k.e('s_mov_b32 s40, 4608'); k.e('v_mul_lo_u32 v8, v8, s40')
        k.e('v_lshl_add_u32 v9, v9, 10, v8'); k.e('v_mad_u32_u24 v9, v5, v13, v9'); k.e('v_lshl_add_u32 v9, v10, 4, v9')
        k.e('s_mov_b32 s46, 0x%x' % dst)
        unit(k, srd, 1152, 12, 9, 46, False)
        k.e('s_endpgm')
    if with_ws:
        k.label('P0_WS'); k.vm = []
        k.e('s_cmp_ge_u32 s22, 8'); k.e('s_cbranch_scc1 %s' % k.end)
        k.e('s_sub_u32 s45, s2, %d' % R['WS'][0])
        k.e('v_lshlrev_b32 v2, 12, v14'); k.e('v_lshl_add_u32 v2, v15, 4, v2')
        k.e('s_lshl_b32 s40, s45, 16'); k.e('s_lshl_b32 s41, s22, 9'); k.e('s_add_u32 s40, s40, s41')
        k.e('s_lshl_b32 s42, s45, 16'); k.e('s_lshl_b32 s41, s22, 13'); k.e('s_add_u32 s42, s42, s41'); k.e('s_add_u32 s42, s42, 0x%x' % WS)
        for i in range(8): k.vmem('buffer_load_dwordx4 %s, v2, s[32:35], s40 offen offset:%d' % (vr(16 + 4 * i), i * 64), i)
        for i in range(8):
            k.wait_vm(i)
            if i == 4: k.e('s_add_u32 s42, s42, 4096')
            k.vmem('buffer_store_dwordx4 %s, v1, s[8:11], s42 offen offset:%d' % (vr(16 + 4 * i), (i % 4) * 1024))
        k.e('s_endpgm')
    k.label('P0_KZ'); k.vm = []
    k.e('s_cmp_ge_u32 s22, 8'); k.e('s_cbranch_scc1 %s' % k.end)
    k.e('s_getpc_b64 s[58:59]')
    k.lines.append('P0_PC:;nohz')
    k.e('s_sub_u32 s45, s2, %d' % R['KZ'][0]); k.e('s_lshl_b32 s46, s45, 3'); k.e('s_add_u32 s46, s46, s22'); k.e('s_lshl_b32 s46, s46, 10')
    k.e('v_add_u32 v4, s46, v1'); k.e('v_min_u32 v4, CODE_END-P0_PC-16, v4'); k.e('v_and_b32 v4, -4, v4')
    k.vmem('global_load_dwordx4 v[16:19], v4, s[58:59]')
    k.e('s_lshr_b32 s43, s45, 4'); k.e('s_and_b32 s42, s45, 15')
    k.e('s_mov_b32 s44, -1')
    k.e('s_lshl_b32 s42, s42, 16'); k.e('s_lshl_b32 s40, s22, 13'); k.e('s_add_u32 s42, s42, s40')
    k.e('s_mul_i32 s47, s43, 0x%x' % LSZ); k.e('s_add_u32 s47, s47, 0x%x' % KVP(0))
    k.e('s_cmp_ge_u32 s43, 2'); k.e('s_cselect_b32 s47, 0x%x, s47' % FLG); k.e('s_cselect_b32 s44, 0, s44')
    k.e('s_add_u32 s42, s42, s47')
    k.e('s_add_u32 s47, s40, 0x%x' % CSI); k.e('s_cmp_eq_u32 s45, %d' % (41 if NWG < 400 else 999)); k.e('s_cselect_b32 s42, s47, s42')
    for q in range(4): k.e('v_mov_b32 v%d, s44' % (8 + q))
    for i in range(8):
        if i == 4: k.e('s_add_u32 s42, s42, 4096')
        k.vmem('buffer_store_dwordx4 v[8:11], v1, s[8:11], s42 offen offset:%d' % ((i % 4) * 1024))
    k.finish()
    return k.text(56), ('p0_kernel', (NWG, 1, 1), (NT, 1, 1), 9216)
```

```python
import os, struct
from asmlib import K as K0, assemble_file
import hz
from layout import *
PROF = int(os.environ.get('PROF', '0'))
WARM = int(os.environ.get('WARM', '0'))
ATOM = int(os.environ.get('ATOM', '3')); PDELAY = int(os.environ.get('PDELAY', '0'))
DPA = 198; DPD = 199
FLSH = int(os.environ.get('FLSH', '4'))
POLL1 = int(os.environ.get('POLL1', '1'))
PSLEEP = int(os.environ.get('PSLEEP', '0'))

class K(K0):
    pfx = ''
    def L(self, s): return '%s_%s' % (self.pfx, s)
    def st(self, s, tag='out'):
        K0.vmem(self, s + ' sc1', tag)
    def stamp(self, n):
        if not PROF: return
        self.e('%s s[%d:%d]' % ('s_memtime' if PROF == 2 else 's_memrealtime', 60 + 2 * n, 61 + 2 * n))
        self.wait_lg_all()
    def dump(self, slot, nst):
        if not PROF: return
        self.e('s_mov_b64 exec, -1')
        self.wait_vm_all()
        self.stamp(nst - 1)
        self.e('s_lshl_b32 s46, s2, 3'); self.e('s_add_u32 s46, s46, s22'); self.e('s_lshl_b32 s46, s46, 6')
        self.e('s_add_u32 s46, s46, 0x%x' % (PROF_BASE + slot * 0x40000))
        self.e('v_mov_b32 v4, 0')
        for q in range(nst):
            self.e('v_mov_b32 v5, s%d' % (60 + 2 * q))
            self.e('buffer_store_dword v5, v4, s[8:11], s46 offen offset:%d' % (4 * q))
        self.e('v_mov_b32 v5, s72')
        self.e('buffer_store_dword v5, v4, s[8:11], s46 offen offset:48')
        self.e('v_mov_b32 v5, s74')
        self.e('buffer_store_dword v5, v4, s[8:11], s46 offen offset:52')
        self.e('v_mov_b32 v5, s76')
        self.e('buffer_store_dword v5, v4, s[8:11], s46 offen offset:56')
        self.wait_vm_all()
    def text(self, vgprs, agprs=0, sgprs=102, wgy=False):
        self.lines = hz.fix(self.lines)
        return K0.text(self, vgprs, agprs, sgprs, wgy)
    def srd(self, d, lo, size):
        self.e('s_mov_b32 s%d, s%d' % (d, lo))
        self.e('s_and_b32 s%d, s%d, 0xffff' % (d + 1, lo + 1))
        self.e('s_mov_b32 s%d, 0x%x' % (d + 2, size))
        self.e('s_mov_b32 s%d, 0x00020000' % (d + 3))
    def start(self, nwg, ptrs):
        self.end = 'END_' + self.name
        if PROF: self.e('s_memrealtime s[76:77]')
        self.e('s_cmp_ge_u32 s2, %d' % nwg)
        self.e('s_cbranch_scc0 GO_%s' % self.name)
        self.e('s_endpgm')
        self.lines.append('GO_%s:;nohz' % self.name)
        allp = [(10, 8, WS_BYTES)] + list(ptrs)
        for i, (slot, d, size) in enumerate(allp):
            self.e('s_load_dwordx2 s[%d:%d], s[0:1], %d' % (80 + 2 * i, 81 + 2 * i, slot * 8))
        self.e('v_lshrrev_b32 v1, 6, v0')
        self.e('v_readfirstlane_b32 s22, v1')
        self.e('v_and_b32 v0, 63, v0')
        self.e('v_lshlrev_b32 v1, 4, v0'); self.e('v_and_b32 v14, 15, v0'); self.e('v_lshrrev_b32 v15, 4, v0')
        self.e('s_and_b32 s3, s2, 7'); self.e('s_lshr_b32 s23, s2, 3')
        self.e('s_waitcnt lgkmcnt(0)')
        for i, (slot, d, size) in enumerate(allp):
            self.srd(d, 80 + 2 * i, size)
    def code_prefetch(self, endlabel, nw=4, startlabel=None):
        here = self.newlabel('PC')
        self.e('s_getpc_b64 s[58:59]')
        self.lines.append(here + ':;nohz')
        self.e('s_mul_i32 s46, s23, %d' % nw); self.e('s_add_u32 s46, s46, s22'); self.e('s_lshl_b32 s46, s46, 10')
        self.e('v_add_u32 v13, s46, v1')
        if startlabel: self.e('v_add_u32 v13, %s-%s, v13' % (startlabel, here))
        self.e('v_min_u32 v13, %s-%s-16, v13' % (endlabel, here))
        self.e('v_and_b32 v13, -4, v13')
        self.vmem('global_load_dwordx4 a[252:255], v13, s[58:59]')
    def warm(self, base, per_xcd_bytes, sel=None, vt=13):
        if not WARM: return
        lines = per_xcd_bytes // 128
        per = (lines + 127) // 128
        self.e('s_lshl_b32 s46, s23, 2'); self.e('s_add_u32 s46, s46, s22'); self.e('s_mul_i32 s46, s46, %d' % (per * 128))
        self.e('v_lshlrev_b32 v%d, 7, v0' % vt); self.e('v_add_u32 v%d, s46, v%d' % (vt, vt))
        if sel:
            self.e('s_lshr_b32 s47, s3, %d' % sel[0]); self.e('s_mul_i32 s47, s47, %d' % sel[1]); self.e('s_add_u32 s47, s47, 0x%x' % base)
        else: self.e('s_mov_b32 s47, 0x%x' % base)
        for i in range(0, per, 64):
            n = min(64, per - i)
            if i: self.e('s_add_u32 s47, s47, 8192')
            if n < 64: self.setexec(n)
            self.vmem('buffer_load_dword a252, v%d, s[8:11], s47 offen' % vt)
            if n < 64: self.e('s_mov_b64 exec, -1')
    def warm_ws(self, vt=13):
        if not WARM: return
        self.e('v_lshlrev_b32 v%d, 7, v0' % vt)
        self.e('s_and_b32 s47, s3, 1'); self.e('s_lshl_b32 s47, s47, 22'); self.e('s_lshl_b32 s46, s23, 17'); self.e('s_add_u32 s47, s47, s46')
        self.e('s_lshl_b32 s46, s22, 14'); self.e('s_add_u32 s47, s47, s46'); self.e('s_add_u32 s47, s47, 0x%x' % WS)
        self.vmem('buffer_load_dword a252, v%d, s[8:11], s47 offen' % vt)
        self.e('s_add_u32 s47, s47, 65536')
        self.vmem('buffer_load_dword a252, v%d, s[8:11], s47 offen' % vt)
    def sig_addr(self, inst, sbase, mul_base, lane_stride, sslot):
        self.e('s_lshl_b32 s78, s%d, 11' % sbase); self.e('s_lshl_b32 s47, s%d, 4' % sslot); self.e('s_add_u32 s78, s78, s47')
        self.e('s_lshl_b32 s47, s22, 2'); self.e('s_add_u32 s78, s78, s47'); self.e('s_add_u32 s78, s78, 0x%x' % (FLG + inst * 32768))
    def dep_addr(self, inst, sgrp):
        self.e('s_lshl_b32 s79, s%d, 11' % sgrp); self.e('s_add_u32 s79, s79, 0x%x' % (FLG + max(inst, 0) * 32768))
    def signal(self):
        self.e('v_mov_b32 v13, 1'); self.e('v_mov_b32 v12, 0')
        self.wait_vm('out')
        self.setexec(1)
        if ATOM & 2: self.vmem('buffer_atomic_or v13, v12, s[8:11], s78 offen sc1')
        else: self.vmem('buffer_store_dword v13, v12, s[8:11], s78 offen sc0 sc1')
        self.e('s_mov_b64 exec, -1')
    def poll_ins(self):
        if ATOM & 1:
            self.e('v_mov_b32 v%d, 0' % DPD)
            return 'buffer_atomic_or v%d, v%d, s[8:11], s79 offen sc0 sc1' % (DPD, DPA)
        return 'buffer_load_dword v%d, v%d, s[8:11], s79 offen sc0 sc1' % (DPD, DPA)
    def dep_issue(self):
        self.e('v_lshlrev_b32 v%d, 2, v0' % DPA)
        self.e('s_cmp_eq_u32 s22, 0'); self.e('s_cselect_b32 s79, s79, 0x40000000')
        if os.environ.get('EARLY', '1') == '1': self.vmem(self.poll_ins(), 'dep')
        else: self.e('v_mov_b32 v%d, 0' % DPD)
    def depwait(self):
        name = self.newlabel('DW')
        self.wait_vm('dep')
        sv = list(self.vm)
        self.e('v_cmp_eq_u32 vcc, 0, v%d' % DPD)
        self.e('s_cbranch_vccz %sG' % name)
        self.e('s_mov_b32 s53, 0')
        self.e('s_cmp_lg_u32 s22, 0'); self.e('s_cbranch_scc1 %sG' % name)
        if PDELAY:
            self.e('s_waitcnt vmcnt(0)'); self.e('s_sleep %d' % PDELAY)
        self.label(name)
        self.e(self.poll_ins())
        self.e('s_add_u32 s53, s53, 1')
        self.wait_vm_all()
        self.e('v_cmp_eq_u32 vcc, 0, v%d' % DPD)
        self.e('s_cbranch_vccz %sG' % name)
        if PSLEEP: self.e('s_sleep %d' % PSLEEP)
        self.e('s_cmp_lt_u32 s53, 100000')
        self.e('s_cbranch_scc1 %s' % name)
        self.label(name + 'G')
        self.vm = sv
        self.e('s_barrier')
    def setexec(self, lanes):
        m = (1 << lanes) - 1
        self.e('s_mov_b32 exec_lo, 0x%x' % (m & 0xffffffff)); self.e('s_mov_b32 exec_hi, 0x%x' % (m >> 32))
    def finish(self):
        self.label(self.end)

def vr(b, n=4): return 'v[%d:%d]' % (b, b + n - 1)
def ar(b, n=4): return 'a[%d:%d]' % (b, b + n - 1)
def f32(x): return '0x%08x' % struct.unpack('<I', struct.pack('<f', x))[0]

def div_const(k, vq, vx, d, maxv, stmp=41):
    for sh in range(16, 24):
        m = (1 << sh) // d + 1
        if m * maxv < (1 << 32) and m < (1 << 24) and all((x * m) >> sh == x // d for x in range(maxv + 1)):
            k.e('s_mov_b32 s%d, %d' % (stmp, m))
            k.e('v_mul_u32_u24 v%d, s%d, v%d' % (vq, stmp, vx))
            k.e('v_lshrrev_b32 v%d, %d, v%d' % (vq, sh, vq))
            return
    raise ValueError('no magic')

def map_8x4(k):
    k.e('s_and_b32 s44, s3, 1'); k.e('s_lshl_b32 s44, s44, 3'); k.e('s_and_b32 s45, s23, 7'); k.e('s_add_u32 s44, s44, s45')
    k.e('s_lshr_b32 s45, s3, 1'); k.e('s_lshl_b32 s45, s45, 2'); k.e('s_lshr_b32 s46, s23, 3'); k.e('s_add_u32 s45, s45, s46')
def map_4x8(k):
    k.e('s_lshl_b32 s44, s3, 2'); k.e('s_and_b32 s45, s23, 3'); k.e('s_add_u32 s44, s44, s45'); k.e('s_lshr_b32 s45, s23, 2')

def fm_store_voff(k, vdst, vk, vr16, tmp):
    k.e('v_lshrrev_b32 v%d, 3, v%d' % (vdst, vk))
    k.e('v_lshlrev_b32 v%d, 8, v%d' % (vdst, vdst))
    k.e('v_lshl_add_u32 v%d, v%d, 4, v%d' % (vdst, vr16, vdst))
    k.e('v_and_b32 v%d, 4, v%d' % (tmp, vk))
    k.e('v_lshl_add_u32 v%d, v%d, 1, v%d' % (vdst, tmp, vdst))

def rowsum_g(k, vv, tmp):
    k.e('v_mov_b32 v%d, v%d' % (tmp, vv)); k.e('v_permlane32_swap_b32 v%d, v%d' % (vv, tmp)); k.e('v_add_f32 v%d, v%d, v%d' % (vv, vv, tmp))
    k.e('v_mov_b32 v%d, v%d' % (tmp, vv)); k.e('v_permlane16_swap_b32 v%d, v%d' % (vv, tmp)); k.e('v_add_f32 v%d, v%d, v%d' % (vv, vv, tmp))

def capture(k, fn):
    n0 = len(k.lines); fn(); c = k.lines[n0:]; del k.lines[n0:]; return c
def rr(chunks):
    out = []
    for i in range(max(len(c) for c in chunks)):
        for c in chunks:
            if i < len(c): out.append(c[i])
    return out
```

```python
import math
from lib import *
from h4 import *
LOG2E = 1.4426950408889634
GC0 = -2.0 * math.sqrt(2.0 / math.pi) * LOG2E
GC1 = GC0 * 0.044715
A1 = 48; A2 = 120
FUSED = int(os.environ.get('FUSED', '1'))
DEFER = FUSED and int(os.environ.get('DEFER', '1'))
NCS = 4; NCI = 1 if (FUSED and int(os.environ.get('SIDE', '1'))) else 4
PRE1 = int(os.environ.get('PRE1', '6')) if FUSED else 0
PRE2 = int(os.environ.get('PRE2', '18')) if FUSED else 0
SIDE = FUSED and int(os.environ.get('SIDE', '1'))
import side

def phi_ops(k, v, t1, t2, sm):
    k.e('v_mul_f32 v%d, %s, v%d' % (t1, f32(LOG2E), v))
    k.e('v_exp_f32 v%d, v%d' % (t1, t1))
    k.e('v_add_f32 v%d, %s, v%d' % (t2, f32(1.000001), v))
    k.e('v_cmp_lt_f32 %s, 0, v%d' % (sm, v))
    k.e('v_add_f32 v%d, %s, v%d' % (t1, f32(1e-6), t1))
    k.e('v_cndmask_b32 v%d, v%d, v%d, %s' % (v, t1, t2, sm))

def gelu_ops(k, v, t, vC1):
    k.e('v_mul_f32 v%d, v%d, v%d' % (t, v, v))
    k.e('v_fmaak_f32 v%d, v%d, v%d, %s' % (t, t, vC1, f32(GC0)))
    k.e('v_mul_f32 v%d, v%d, v%d' % (t, t, v))
    k.e('v_exp_f32 v%d, v%d' % (t, t))
    k.e('v_add_f32 v%d, 1.0, v%d' % (t, t))
    k.e('v_rcp_f32 v%d, v%d' % (t, t))
    k.e('v_mul_f32 v%d, v%d, v%d' % (v, v, t))

def pk(op, d, *src, sel=None):
    ops = []; lo = []; hi = []
    for s_ in src:
        if isinstance(s_, tuple):
            r = s_[1]; ops.append(vr(r & ~1, 2)); lo.append(r & 1); hi.append(r & 1)
        elif isinstance(s_, str):
            ops.append(s_); lo.append(0); hi.append(1)
        else:
            ops.append(vr(s_, 2)); lo.append(0); hi.append(1)
    m = ''
    if any(lo): m += ' op_sel:[%s]' % ','.join(map(str, lo))
    if not all(hi): m += ' op_sel_hi:[%s]' % ','.join(map(str, hi))
    return 'v_pk_%s_f32 %s, %s%s' % (op, vr(d, 2), ', '.join(ops), m)

def gelu_pk(k, v, t, CC):
    k.e(pk('mul', t, v, v))
    k.e(pk('fma', t, t, ('b', CC), ('b', CC + 1)))
    k.e(pk('mul', t, t, v))
    k.e('v_exp_f32 v%d, v%d' % (t, t)); k.e('v_exp_f32 v%d, v%d' % (t + 1, t + 1))
    k.e(pk('add', t, t, ('b', CC + 2)))
    k.e('v_rcp_f32 v%d, v%d' % (t, t)); k.e('v_rcp_f32 v%d, v%d' % (t + 1, t + 1))
    k.e(pk('mul', v, v, t))

def emit_gen(k, lines):
    for l in lines:
        k.lines.append(l); yield

def poll_loop(k, name, loads, check):
    k.e('s_mov_b32 s53, 0')
    k.wait_vm_all()
    k.label(k.L(name))
    loads()
    k.e('s_add_u32 s53, s53, 1')
    k.wait_vm_all()
    check()
    k.e('s_cbranch_vccz %s' % k.L(name + 'G'))
    k.e('s_cmp_lt_u32 s53, 50000')
    k.e('s_cbranch_scc1 %s' % k.L(name))
    k.label(k.L(name + 'G'))

K1_C = 156
K1_PART = 8192; K1_IMG = K1_PART + 49152; K1_STAT = 156 * 1024
CSL = K1_STAT + 1024
LDS_ALL = CSL + 1152

def gen_of(k, fn):
    fn(); yield

def soft_poll(k, name, loads, check, tag):
    k.wait_vm(tag)
    check()
    k.e('s_cbranch_vccz %s' % k.L(name + 'G'))
    sv = list(k.vm)
    k.e('s_mov_b32 s53, 0')
    k.label(k.L(name))
    loads()
    k.e('s_add_u32 s53, s53, 1')
    k.wait_vm_all()
    check()
    k.e('s_cbranch_vccz %s' % k.L(name + 'G'))
    k.e('s_cmp_lt_u32 s53, 100000')
    k.e('s_cbranch_scc1 %s' % k.L(name))
    k.label(k.L(name + 'G'))
    k.vm = sv

def phase_k1(k, layer, slot=1):
    xi = 2 * layer
    map_8x4(k)
    k.stamp(0)
    h = H4(k, XF(xi), WQ, 162, [(6, 's', A1), (3, 'f', A2)], [12, 24, 36, 36, 36, 20], K1_C, burst=int(os.environ.get('B1', '8')), pace=1 if layer == 0 else int(os.environ.get('PC1', '2')))
    k.dep_addr(5 * layer - 1, 44)
    h.prefetch_weights(PRE1 if layer else 3)
    yield
    if layer: h.prefetch_weights(PRE2)
    k.e('s_mul_i32 s31, s45, 576'); k.e('s_add_u32 s31, s31, 0x%x' % CSQ)
    k.e('s_lshl_b32 s46, s22, 8'); k.e('v_lshlrev_b32 v12, 2, v0'); k.e('v_add_u32 v238, s46, v12'); k.e('v_min_u32 v238, 572, v238')
    for q in range(NCS):
        if q: k.e('s_add_u32 s31, s31, 9216')
        k.vmem('buffer_load_dword v%d, v238, s[8:11], s31 offen' % (192 + q), 'cs')
    NM4 = 212; RS4 = 220; NM1 = 228; RS1 = 230; PK = 144
    GV = 237; LT = 248; IM = 240; SO = 244
    k.e('s_lshl_b32 s46, s22, 8')
    k.e('s_mul_i32 s50, s45, %d' % (16 * 3072)); k.e('s_add_u32 s50, s50, 0x%x' % KVP(layer))
    k.e('s_mul_i32 s51, s44, 3072'); k.e('s_add_u32 s51, s51, s50')
    k.e('v_lshlrev_b32 v4, 2, v0'); k.e('v_add_u32 v4, s46, v4')
    k.e('v_lshlrev_b32 v5, 2, v4'); k.e('v_cmp_gt_u32 vcc, 684, v4'); k.e('v_mov_b32 v6, 0x%x' % OOB); k.e('v_cndmask_b32 v%d, v6, v5, vcc' % GV)
    k.e('v_min_u32 v4, 680, v4')
    k.e('s_mov_b32 s41, 3641')
    def elem(c):
        B0 = 48 + c * 16
        u, q, dd, hh, row, d, e, T, lp = [B0 + x for x in range(9)]
        sm = 's[%d:%d]' % (32 + 2 * c, 33 + 2 * c)
        k.e('v_add_u32 v%d, %d, v4' % (u, c))
        k.e('v_mul_u32_u24 v%d, s41, v%d' % (q, u)); k.e('v_lshrrev_b32 v%d, 16, v%d' % (q, q))
        k.e('v_mul_u32_u24 v%d, 18, v%d' % (dd, q)); k.e('v_sub_u32 v%d, v%d, v%d' % (dd, u, dd))
        k.e('v_cmp_le_u32 %s, 19, v%d' % (sm, q)); k.e('v_cndmask_b32 v%d, 0, 1, %s' % (hh, sm))
        k.e('v_mul_u32_u24 v%d, 19, v%d' % (row, hh)); k.e('v_sub_u32 v%d, v%d, v%d' % (row, q, row))
        k.e('v_mad_u32_u24 v%d, v%d, 18, v%d' % (d, hh, dd))
        k.e('v_mad_u32_u24 v%d, v%d, 18, v%d' % (e, hh, row))
        k.e('v_cmp_eq_u32 %s, 18, v%d' % (sm, row))
        k.e('v_lshrrev_b32 v%d, 4, v%d' % (T, d))
        k.e('v_lshrrev_b32 v%d, 4, v%d' % (lp, e))
        k.e('v_mad_u32_u24 v%d, v%d, 3, v%d' % (lp, T, lp))
        k.e('v_add_u32 v%d, 9, v%d' % (T, T))
        k.e('v_cndmask_b32 v%d, v%d, v%d, %s' % (T, lp, T, sm))
        k.e('v_and_b32 v%d, 15, v%d' % (lp, e))
        k.e('v_lshlrev_b32 v%d, 10, v%d' % (T, T)); k.e('v_lshl_add_u32 v%d, v%d, 4, v%d' % (T, lp, T))
        k.e('v_bfe_u32 v%d, v%d, 2, 2' % (q, d)); k.e('v_lshl_add_u32 v%d, v%d, 8, v%d' % (T, q, T))
        k.e('v_and_b32 v%d, 3, v%d' % (dd, d)); k.e('v_lshl_add_u32 v%d, v%d, 2, v%d' % (T, dd, T))
        k.e('v_add_u32 v%d, %d, v%d' % (LT + c, K1_PART, T))
        k.e('v_bfe_u32 v%d, v%d, 4, 1' % (row, d)); k.e('v_lshl_add_u32 v%d, v%d, 2, v%d' % (dd, row, dd)); k.e('v_lshlrev_b32 v%d, 1, v%d' % (dd, dd))
        k.e('v_lshrrev_b32 v%d, 5, v%d' % (row, d))
        k.e('v_lshrrev_b32 v%d, 4, v%d' % (e, e)); k.e('v_lshl_add_u32 v%d, v%d, 1, v%d' % (e, e, row)); k.e('v_lshlrev_b32 v%d, 10, v%d' % (e, e))
        k.e('v_lshl_add_u32 v%d, v%d, 8, v%d' % (e, q, e)); k.e('v_lshl_add_u32 v%d, v%d, 4, v%d' % (e, lp, e))
        k.e('v_lshl_add_u32 v%d, v%d, 1, v%d' % (hh, hh, row)); k.e('v_lshlrev_b32 v%d, 6, v%d' % (hh, hh)); k.e('v_lshl_add_u32 v%d, v%d, 4, v%d' % (hh, q, hh)); k.e('v_add_u32 v%d, 6144, v%d' % (hh, hh))
        k.e('v_cndmask_b32 v%d, v%d, v%d, %s' % (e, e, hh, sm)); k.e('v_add_u32 v%d, v%d, v%d' % (e, e, dd))
        k.e('v_mov_b32 v%d, 7168' % lp); k.e('v_cndmask_b32 v%d, v%d, v%d, vcc' % (e, lp, e))
        k.e('v_add_u32 v%d, %d, v%d' % (IM + c, K1_IMG, e))
    k.lines.extend(rr([capture(k, lambda c=c: elem(c)) for c in range(4)]))
    k.e('s_mul_i32 s46, s45, 36'); k.e('v_lshlrev_b32 v13, 2, v15'); k.e('v_add_u32 v13, s46, v13')
    for tt in range(3):
        if tt: k.e('v_add_u32 v13, 16, v13')
        fm_store_voff(k, SO + tt, 13, 14, 8)
    k.e('v_cmp_eq_u32 vcc, 0, v15'); k.e('v_mov_b32 v8, 0x%x' % OOB); k.e('v_cndmask_b32 v%d, v8, v%d, vcc' % (SO + 2, SO + 2))
    for q in range(4): k.e('v_mov_b32 v%d, 0x3f803f80' % (232 + q))
    k.e('s_mul_i32 s46, s22, 12288'); k.e('s_add_u32 s46, s46, %d' % K1_PART); k.e('v_add_u32 v236, s46, v1')
    k.e('s_lshl_b32 s46, s44, 3'); k.e('s_lshl_b32 s47, s22, 1'); k.e('s_add_u32 s46, s46, s47')
    k.e('s_mul_i32 s46, s46, 18432'); k.e('s_add_u32 s54, s46, 0x%x' % OB(layer)); k.e('s_add_u32 s55, s54, 18432')
    yield
    k.stamp(6)
    def setup():
        for _ in range(10): yield
        k.wait_vm('cs')
        for q in range(1, NCS): k.e('v_add_f32 v192, v192, v%d' % (192 + q))
        k.e('v_add_u32 v238, %d, v238' % CSL)
        k.lds('ds_write_b32 v238, v192'); yield
        for _ in range(60): yield
        stats_finish(k, K1_STAT); yield
        k.e('v_lshlrev_b32 v12, 4, v15'); k.e('v_add_u32 v12, s30, v12')
        k.e('v_lshlrev_b32 v13, 2, v14'); k.e('v_add_u32 v13, s30, v13'); yield
        for i in range(2):
            k.lds('ds_read_b128 %s, v12 offset:%d' % (vr(NM4 + 4 * i), 64 * i)); yield
            k.lds('ds_read_b128 %s, v12 offset:%d' % (vr(RS4 + 4 * i), 128 + 64 * i)); yield
            k.lds('ds_read_b32 v%d, v13 offset:%d' % (NM1 + i, 64 * i)); yield
            k.lds('ds_read_b32 v%d, v13 offset:%d' % (RS1 + i, 128 + 64 * i)); yield
        k.e('v_lshlrev_b32 v12, 4, v15'); k.e('v_add_u32 v12, %d, v12' % CSL); k.e('v_lshlrev_b32 v13, 2, v14'); k.e('v_add_u32 v13, %d, v13' % CSL); yield
        for tt in range(6):
            k.lds('ds_read_b32 v%d, v13 offset:%d' % (192 + tt, (3 + tt) * 64)); yield
        for tt in range(3):
            k.lds('ds_read_b128 %s, v12 offset:%d' % (vr(200 + 4 * tt), tt * 64)); yield
    def loads():
        for p_ in range(16):
            k.e('s_add_u32 s52, s50, %d' % (p_ * 3072))
            k.vmem('buffer_load_dwordx4 %s, v%d, s[8:11], s52 offen sc0 sc1' % (vr(48 + 4 * p_), GV), 'kvp')
    def check():
        k.e('v_max_u32 v8, v48, v49')
        for p_ in range(1, 32): k.e('v_max3_u32 v8, v8, v%d, v%d' % (48 + 2 * p_, 49 + 2 * p_))
        k.e('v_cmp_eq_u32 vcc, -1, v8')
    def mid():
        for q in range(4): k.e('v_mov_b32 v%d, 0' % (8 + q))
        k.e('s_lshl_b32 s46, s22, 11'); k.e('s_add_u32 s46, s46, %d' % K1_IMG); k.e('v_add_u32 v12, s46, v1')
        k.lds('ds_write_b128 v12, v[8:11]'); k.lds('ds_write_b128 v12, v[8:11] offset:1024')
        k.e('s_nop 7')
        for tt in range(6):
            def two(i, r):
                b = A1 + (i * 6 + tt) * 4 + r
                k.e(pk('fma', b, NM4 + 4 * i + r, ('b', 192 + tt), b))
                k.e(pk('mul', b, b, RS4 + 4 * i + r))
                if tt < 3:
                    for q in range(2):
                        n = i * 4 + r + q
                        phi_ops(k, b + q, 168 + 2 * n, 169 + 2 * n, 's[%d:%d]' % (32 + (n % 4) * 2, 33 + (n % 4) * 2) if i == 0 else ('s[%d:%d]' % (56, 57) if False else 's[%d:%d]' % (32 + (n % 4) * 2, 33 + (n % 4) * 2)))
            for i in range(2):
                k.lines.extend(rr([capture(k, lambda r=r: two(i, r)) for r in (0, 2)]))
                b = A1 + (i * 6 + tt) * 4; f = PK + tt * 4 + 2 * i
                k.e('v_cvt_pk_bf16_f32 v%d, v%d, v%d' % (f, b, b + 1)); k.e('v_cvt_pk_bf16_f32 v%d, v%d, v%d' % (f + 1, b + 2, b + 3))
        for a in range(3):
            for b in range(4):
                T = (3 * a + b) if b < 3 else 9 + a
                k.e('v_mfma_f32_16x16x32_bf16 %s, %s, %s, 0' % (vr(A1 + 4 * T), vr(PK + 4 * a), vr(PK + 12 + 4 * b) if b < 3 else vr(232)))
        for T in (0, 1, 2, 9, 3, 4, 5, 10, 6, 7, 8, 11): k.lds('ds_write_b128 v236, %s offset:%d' % (vr(A1 + 4 * T), T * 1024))
        k.wait_lg_all()
        k.e('s_barrier')
        for c in range(4):
            for w in range(4): k.lds('ds_read_b32 v%d, v%d offset:%d' % (168 + c * 4 + w, LT + c, w * 12288))
        k.wait_lg_all()
        for c in range(4):
            B0 = 168 + c * 4
            k.e('v_add_f32 v%d, v%d, v%d' % (B0, B0, B0 + 1)); k.e('v_add_f32 v%d, v%d, v%d' % (B0 + 2, B0 + 2, B0 + 3)); k.e('v_add_f32 v%d, v%d, v%d' % (8 + c, B0, B0 + 2))
        k.vmem('buffer_store_dwordx4 v[8:11], v%d, s[8:11], s51 offen sc0 sc1' % GV)
        if SIDE and layer == 0: side.loads(k, 168, 2)
        k.warm(WO, 8 * 18 * 4608); k.warm(WI, 4 * 324 * 1024, (1, 4 * 324 * 1024))
        k.stamp(2)
    stats_load(k, XS(xi))
    if SIDE and layer == 0: h.hook = lambda: side.loads(k, 168, 1)
    h.run(fillers={0: (setup(), 1.0)}, mid=mid)
    k.stamp(3)
    loads()
    PQF = 144
    k.e('s_nop 7')
    for tt in range(3):
        for i in range(2):
            b = A2 + (i * 3 + tt) * 4
            for r in (0, 2):
                k.e(pk('fma', b + r, ('b', NM1 + i), 200 + 4 * tt + r, b + r)); k.e(pk('mul', b + r, b + r, ('b', RS1 + i)))
            k.lines.extend(rr([capture(k, lambda r=r: phi_ops(k, b + r, 16 + 2 * r, 17 + 2 * r, 's[%d:%d]' % (32 + 2 * r, 33 + 2 * r))) for r in range(4)]))
            f = PQF + i * 8 + tt * 2
            k.e('v_cvt_pk_bf16_f32 v%d, v%d, v%d' % (f, b, b + 1)); k.e('v_cvt_pk_bf16_f32 v%d, v%d, v%d' % (f + 1, b + 2, b + 3))
    for i in range(2):
        k.e('v_mov_b32 v%d, 0' % (PQF + i * 8 + 6)); k.e('v_mov_b32 v%d, 0' % (PQF + i * 8 + 7))
    soft_poll(k, 'P1', loads, check, 'kvp')
    k.stamp(4)
    for st in (32, 16, 8, 4):
        for p_ in range(0, st, 2): k.e(pk('add', 48 + p_, 48 + p_, 48 + p_ + st))
    for c in range(4):
        k.e('v_cvt_pk_bf16_f32 v%d, v%d, v%d' % (48 + c, 48 + c, 48 + c))
        k.lds('ds_write_b16 v%d, v%d' % (IM + c, 48 + c))
    k.e('v_add_u32 v12, %d, v1' % K1_IMG); k.e('v_lshlrev_b32 v13, 4, v15'); k.e('v_add_u32 v13, %d, v13' % (K1_IMG + 6144))
    k.e('s_mov_b32 s32, 0xffff'); k.e('s_mov_b32 s33, 0')
    k.wait_lg_all()
    k.e('s_barrier')
    for f in range(4): k.lds('ds_read_b128 %s, v13 offset:%d' % (vr(40 + 4 * f), f * 64))
    for f in range(6): k.lds('ds_read_b128 %s, v12 offset:%d' % (vr(16 + 4 * f), f * 1024))
    k.wait_lg_all()
    for kq in range(2):
        for i in range(2):
            for hh in range(2):
                d = 60 + (i * 2 + hh) * 4
                k.e('v_mfma_f32_16x16x32_bf16 %s, %s, %s, %s' % (vr(d), vr(40 + (hh * 2 + kq) * 4), vr(PQF + i * 8 + kq * 4), vr(d) if kq else '0'))
    for kq in range(2):
        for i in range(2):
            for b in range(3):
                d = 80 + (i * 3 + b) * 4
                k.e('v_mfma_f32_16x16x32_bf16 %s, %s, %s, %s' % (vr(d), vr(16 + (b * 2 + kq) * 4), vr(PQF + i * 8 + kq * 4), vr(d) if kq else '0'))
    for i in range(2):
        r0 = 60 + i * 8; r1 = r0 + 4
        for rr_ in (r0, r1):
            k.e('v_add_f32 v%d, %s, v%d' % (rr_, f32(1e-6), rr_)); k.e('v_rcp_f32 v%d, v%d' % (rr_, rr_))
        k.e('v_cndmask_b32 v%d, v%d, v%d, s[32:33]' % (r0 + 1, r1, r0))
    for i in range(2):
        r0 = 60 + i * 8; r1 = r0 + 4
        for b in range(3):
            d = 80 + (i * 3 + b) * 4
            for r in range(4):
                sel = r0 if b == 0 else (r1 if b == 2 or r >= 2 else r0 + 1)
                k.e('v_mul_f32 v%d, v%d, v%d' % (d + r, d + r, sel))
            k.e('v_cvt_pk_bf16_f32 v%d, v%d, v%d' % (d, d, d + 1)); k.e('v_cvt_pk_bf16_f32 v%d, v%d, v%d' % (d + 1, d + 2, d + 3))
            k.st('buffer_store_dwordx2 %s, v%d, s[8:11], s%d offen' % (vr(d, 2), SO + b, 54 + i))
    k.sig_addr(5 * layer, 44, 16, 1, 45)
    k.dump(slot, 6)

K3_C = 156
K3_STAT = K1_STAT
def phase_k3(k, layer, slot=3):
    xi = 2 * layer + 1
    map_8x4(k)
    k.stamp(0)
    h = H4(k, XF(xi), WI, 324, [(9, 's', A1), (9, 'f', A2)], [12, 24] + [36] * 8, K3_C, burst=int(os.environ.get('B3', '8')), pace=int(os.environ.get('PC3', '3')))
    sw = SIDE and layer == 0
    k.dep_addr(5 * layer + 1, 44)
    if not sw: h.prefetch_weights(PRE1)
    yield
    if sw:
        side.process(k, 16, 2)
        side.wait(k, 16, 1); h.prefetch_weights(PRE1)
    h.prefetch_weights(PRE2)
    k.e('s_mul_i32 s31, s45, 1152'); k.e('s_add_u32 s31, s31, 0x%x' % CSI)
    k.e('s_lshl_b32 s46, s22, 9'); k.e('v_lshlrev_b32 v12, 3, v0'); k.e('v_add_u32 v201, s46, v12'); k.e('v_min_u32 v201, 1144, v201')
    for q in range(NCI):
        if q: k.e('s_add_u32 s31, s31, 18432')
        k.vmem('buffer_load_dwordx2 %s, v201, s[8:11], s31 offen sc1' % vr(192 + 2 * q, 2), 'cs')
    NM4 = 202; RS4 = 210; NM1 = 218; RS1 = 220; SQ = 224; CC = 248; ZO = 222; PA = 223
    k.e('v_mov_b32 v%d, %s' % (CC, f32(GC1))); k.e('v_mov_b32 v%d, %s' % (CC + 1, f32(GC0))); k.e('v_mov_b32 v%d, 1.0' % (CC + 2))
    for q in range(16): k.e('v_mov_b32 v%d, 0' % (SQ + q))
    k.e('s_lshl_b32 s50, s44, 2'); k.e('s_add_u32 s50, s50, s22')
    k.e('s_lshl_b32 s51, s50, 12'); k.e('s_add_u32 s51, s51, 0x%x' % US(layer))
    k.e('s_lshl_b32 s52, s45, 8'); k.e('s_add_u32 s52, s52, s51')
    k.e('s_lshl_b32 s30, s22, 8'); k.e('s_add_u32 s30, s30, %d' % K3_STAT)
    k.e('v_lshlrev_b32 v252, 4, v15'); k.e('v_add_u32 v252, s30, v252')
    k.e('v_lshrrev_b32 v4, 1, v15'); k.e('v_lshl_add_u32 v4, v4, 4, v14'); k.e('v_lshlrev_b32 v4, 4, v4'); k.e('v_and_b32 v5, 1, v15'); k.e('v_lshl_add_u32 v%d, v5, 3, v4' % ZO)
    k.e('v_and_b32 v4, 1, v0'); k.e('v_lshlrev_b32 v4, 7, v4'); k.e('v_lshrrev_b32 v6, 1, v0'); k.e('v_lshl_add_u32 v4, v6, 2, v4'); k.e('v_add_u32 v%d, s30, v4' % PA)
    k.e('s_lshl_b32 s46, s45, 6'); k.e('s_add_u32 s46, s46, s50'); k.e('s_mul_i32 s46, s46, 9216'); k.e('s_add_u32 s34, s46, 0x%x' % Z2(layer)); k.e('s_add_u32 s35, s34, 4096'); k.e('s_add_u32 s36, s34, 8192')
    yield
    k.stamp(6)
    k.sig_addr(5 * layer + 2, 45, 1, 16, 44)
    def setup():
        for _ in range(10): yield
        k.wait_vm('cs')
        for q in range(1, NCI):
            k.e('v_add_f32 v192, v192, v%d' % (192 + 2 * q)); k.e('v_add_f32 v193, v193, v%d' % (193 + 2 * q))
        k.e('v_add_u32 v201, %d, v201' % CSL)
        k.lds('ds_write_b64 v201, v[192:193]'); yield
        for _ in range(60): yield
        stats_finish(k, K3_STAT); yield
        k.e('v_lshlrev_b32 v13, 2, v14'); k.e('v_add_u32 v13, s30, v13'); yield
        for i in range(2):
            k.lds('ds_read_b128 %s, v252 offset:%d' % (vr(NM4 + 4 * i), 64 * i)); yield
            k.lds('ds_read_b128 %s, v252 offset:%d' % (vr(RS4 + 4 * i), 128 + 64 * i)); yield
            k.lds('ds_read_b32 v%d, v13 offset:%d' % (NM1 + i, 64 * i)); yield
            k.lds('ds_read_b32 v%d, v13 offset:%d' % (RS1 + i, 128 + 64 * i)); yield
        k.e('v_lshlrev_b32 v13, 2, v14'); k.e('v_add_u32 v13, %d, v13' % CSL); yield
        for t in range(9):
            k.lds('ds_read_b32 v%d, v13 offset:%d' % (192 + t, t * 64)); yield
    def mid():
        k.e('s_nop 7')
        for t in range(9):
            def two(i, r):
                b = A1 + (i * 9 + t) * 4 + r
                k.e(pk('fma', b, NM4 + 4 * i + r, ('b', 192 + t), b))
                k.e(pk('mul', b, b, RS4 + 4 * i + r))
                gelu_pk(k, b, 240 + i * 4 + r, CC)
                k.e(pk('add', SQ + i * 4 + r, SQ + i * 4 + r, b)); k.e(pk('fma', SQ + 8 + i * 4 + r, b, b, SQ + 8 + i * 4 + r))
            k.lines.extend(rr([capture(k, lambda i=i, r=r: two(i, r)) for i in range(2) for r in (0, 2)]))
            h.pump(2)
        for sh in (8, 4, 2, 1):
            for q in range(16): k.e('v_add_f32_dpp v%d, v%d, v%d row_ror:%d row_mask:0xf bank_mask:0xf' % (SQ + q, SQ + q, SQ + q, sh))
        k.e('s_mov_b32 exec_lo, 0x00010001'); k.e('s_mov_b32 exec_hi, 0x00010001')
        for i in range(2):
            k.lds('ds_write_b128 v252, %s offset:%d' % (vr(SQ + 4 * i), 64 * i))
            k.lds('ds_write_b128 v252, %s offset:%d' % (vr(SQ + 8 + 4 * i), 128 + 64 * i))
        k.e('s_mov_b64 exec, -1')
        k.lds('ds_read_b32 v6, v%d' % PA, 'pub')
        k.e('v_lshlrev_b32 v5, 2, v0')
        k.wait_lg('pub')
        k.vmem('buffer_store_dword v6, v5, s[8:11], s52 offen sc0 sc1')
        if sw: side.signal(k, 12, 2)
        k.warm_ws()
        k.stamp(2)
    def loads():
        for q in range(4): k.vmem('buffer_load_dwordx4 %s, v1, s[8:11], s51 offen offset:%d sc0 sc1' % (vr(SQ + 4 * q), q * 1024), 'us')
    def check():
        k.e('v_max_u32 v240, v%d, v%d' % (SQ, SQ + 1))
        for q in range(1, 8): k.e('v_max3_u32 v240, v240, v%d, v%d' % (SQ + 2 * q, SQ + 2 * q + 1))
        k.e('v_cmp_eq_u32 vcc, -1, v240')
    def z2_fin():
        for _ in range(W1): yield
        loads(); yield
        for _ in range(W2): yield
        soft_poll(k, 'P3', loads, check, 'us')
        k.stamp(3)
        L = []
        for q in range(1, 4):
            for c in range(4): L.append('    v_add_f32 v%d, v%d, v%d' % (SQ + c, SQ + c, SQ + 4 * q + c))
        L += rr([capture(k, lambda c=c: rowsum_g(k, SQ + c, SQ + 4 + c)) for c in range(4)])
        def fin(c):
            S = SQ + 2 * c; Q = S + 1
            k.e('v_mul_f32 v%d, %s, v%d' % (SQ + 8 + c, f32(-1.0 / 2304), S))
            k.e('v_mul_f32 v%d, %s, v%d' % (Q, f32(1.0 / 2304), Q))
            k.e('v_mul_f32 v%d, v%d, v%d' % (S, SQ + 8 + c, SQ + 8 + c)); k.e('v_sub_f32 v%d, v%d, v%d' % (Q, Q, S)); k.e('v_max_f32 v%d, 0, v%d' % (Q, Q))
            k.e('v_add_f32 v%d, %s, v%d' % (Q, f32(1e-5), Q)); k.e('v_rsq_f32 v%d, v%d' % (SQ + 10 + c, Q))
            k.e('v_mul_f32 v%d, v%d, v%d' % (SQ + 8 + c, SQ + 8 + c, SQ + 10 + c))
        L += rr([capture(k, lambda c=c: fin(c)) for c in range(2)])
        L += ['    v_lshlrev_b32 v4, 3, v14', '    v_add_u32 v4, s30, v4']
        yield from emit_gen(k, L)
        k.e('s_mov_b64 exec, 0xffff')
        k.lds('ds_write_b64 v4, %s' % vr(SQ + 8, 2)); k.lds('ds_write_b64 v4, %s offset:128' % vr(SQ + 10, 2))
        k.e('s_mov_b64 exec, -1'); yield
        for i in range(2):
            k.lds('ds_read_b128 %s, v252 offset:%d' % (vr(NM4 + 4 * i), 64 * i), 'st2'); yield
            k.lds('ds_read_b128 %s, v252 offset:%d' % (vr(RS4 + 4 * i), 128 + 64 * i), 'st2'); yield
        for _ in range(6): yield
        k.wait_lg('st2')
        for t in range(9):
            for i in range(2):
                b = A1 + (i * 9 + t) * 4
                for r in range(4):
                    k.e('v_fma_f32 v%d, v%d, v%d, v%d' % (b + r, b + r, RS4 + 4 * i + r, NM4 + 4 * i + r)); yield
                k.e('v_cvt_pk_bf16_f32 v%d, v%d, v%d' % (b, b, b + 1)); yield
                k.e('v_cvt_pk_bf16_f32 v%d, v%d, v%d' % (b + 1, b + 2, b + 3)); yield
                k.st('buffer_store_dwordx2 %s, v%d, s[8:11], s%d offen offset:%d' % (vr(b, 2), ZO, 34 + t // 4, (t % 4) * 1024 + i * 512)); yield
        k.e('v_lshlrev_b32 v13, 4, v15'); k.e('v_add_u32 v13, %d, v13' % (CSL + 576)); yield
        for t in range(9):
            k.lds('ds_read_b128 %s, v13 offset:%d' % (vr(A1 + 4 * t), t * 64)); yield
    W1 = int(os.environ.get('W1', '130')); W2 = int(os.environ.get('W2', '60'))
    CS1 = lambda t: A1 + 4 * t
    stats_load(k, XS(xi))
    h.run(fillers={0: (setup(), 1.0), 1: (z2_fin(), 1.5)}, mid=mid, skip=0)
    k.stamp(4)
    if FUSED: k.signal()
    k.e('s_lshl_b32 s46, s44, 4'); k.e('s_add_u32 s46, s46, s45'); k.e('s_lshl_b32 s46, s46, 3'); k.e('s_lshl_b32 s47, s22, 1'); k.e('s_add_u32 s46, s46, s47')
    k.e('s_mul_i32 s46, s46, 4608'); k.e('s_add_u32 s34, s46, 0x%x' % Z1(layer)); k.e('s_add_u32 s35, s34, 4096'); k.e('s_add_u32 s36, s34, 8192')
    k.e('v_lshlrev_b32 v9, 3, v0')
    k.wait_lg_all()
    k.e('s_nop 7')
    for t in range(9):
        def two(i, r):
            b = A2 + (i * 9 + t) * 4 + r
            k.e(pk('fma', b, ('b', NM1 + i), CS1(t) + r, b))
            k.e(pk('mul', b, b, ('b', RS1 + i)))
            if not DEFER: gelu_pk(k, b, 240 + i * 4 + r, CC)
        k.lines.extend(rr([capture(k, lambda i=i, r=r: two(i, r)) for i in range(2) for r in (0, 2)]))
        for i in range(2):
            b = A2 + (i * 9 + t) * 4
            k.e('v_cvt_pk_bf16_f32 v%d, v%d, v%d' % (b, b, b + 1)); k.e('v_cvt_pk_bf16_f32 v%d, v%d, v%d' % (b + 1, b + 2, b + 3))
            tt = i * 9 + t
            if FUSED:
                k.e('v_accvgpr_write_b32 a%d, v%d' % (216 + 2 * tt, b)); k.e('v_accvgpr_write_b32 a%d, v%d' % (217 + 2 * tt, b + 1))
            else: k.st('buffer_store_dwordx2 %s, v9, s[8:11], s%d offen offset:%d' % (vr(b, 2), 34 + tt // 8, (tt % 8) * 512))
    k.dump(slot, 6)
```

```python
from lib import *
AW = 144; AO = 168; AS = 188
SJ = FLG + 0x80000
STG = 131 * 1024
STG2 = 96 * 1024
def sdiv(k, sd, ss, d, maxv):
    for sh in range(8, 24):
        m = (1 << sh) // d + 1
        if all((x * m) >> sh == x // d for x in range(maxv + 1)):
            k.e('s_mul_i32 s%d, s%d, %d' % (sd, ss, m)); k.e('s_lshr_b32 s%d, s%d, %d' % (sd, sd, sh)); return
    raise ValueError
def ids(k):
    k.e('s_lshl_b32 s90, s2, 2'); k.e('s_add_u32 s90, s90, s22')
    sdiv(k, 91, 90, 18, 1023); k.e('s_mul_i32 s92, s91, 18'); k.e('s_sub_u32 s92, s90, s92')
    k.e('s_cmp_ge_u32 s90, 864'); k.e('s_cselect_b32 s93, 0x40000000, 0')
    k.e('s_sub_u32 s97, 1023, s90')
    sdiv(k, 94, 97, 72, 1023); k.e('s_mul_i32 s95, s94, 72'); k.e('s_sub_u32 s95, s97, s95')
    k.e('s_cmp_ge_u32 s97, 576'); k.e('s_cselect_b32 s96, 0x40000000, 0')
def loads(k, t0, part):
    P, R, V = t0, t0 + 1, t0 + 2
    if part == 2: return loads2(k, P, R, V)
    ids(k)
    k.srd(4, 86, 576 * 4608 * 2)
    k.e('s_mul_i32 s46, s92, %d' % (32 * 9216)); k.e('s_mul_i32 s47, s91, 192'); k.e('s_add_u32 s46, s46, s47'); k.e('s_add_u32 s46, s46, s93')
    for i in range(6):
        k.e('v_add_u32 v%d, %d, v0' % (P, 64 * i)); div_const(k, R, P, 12, 383, 47)
        k.e('v_mul_u32_u24 v%d, 12, v%d' % (V, R)); k.e('v_sub_u32 v%d, v%d, v%d' % (V, P, V)); k.e('v_lshlrev_b32 v%d, 4, v%d' % (V, V))
        k.e('v_mul_u32_u24 v%d, 9216, v%d' % (R, R)); k.e('v_add_u32 v%d, v%d, v%d' % (V, V, R))
        k.vmem('buffer_load_dwordx4 %s, v%d, s[4:7], s46 offen' % (ar(AW + 4 * i), V), 'sj')
def loads2(k, P, R, V):
    k.srd(4, 98, 2304 * 576 * 2)
    k.e('s_mul_i32 s46, s95, %d' % (32 * 1152)); k.e('s_mul_i32 s47, s94, 144'); k.e('s_add_u32 s46, s46, s47'); k.e('s_add_u32 s46, s46, s96')
    for i in range(5):
        k.e('v_add_u32 v%d, %d, v0' % (P, 64 * i)); k.e('v_min_u32 v%d, 287, v%d' % (P, P)); div_const(k, R, P, 9, 319, 47)
        k.e('v_mul_u32_u24 v%d, 9, v%d' % (V, R)); k.e('v_sub_u32 v%d, v%d, v%d' % (V, P, V)); k.e('v_lshlrev_b32 v%d, 4, v%d' % (V, V))
        k.e('v_mul_u32_u24 v%d, 1152, v%d' % (R, R)); k.e('v_add_u32 v%d, v%d, v%d' % (V, V, R))
        k.vmem('buffer_load_dwordx4 %s, v%d, s[4:7], s46 offen' % (ar(AO + 4 * i), V), 'sj')
    k.srd(4, 88, 2048 * 2048 * 2)
    k.e('v_lshrrev_b32 v%d, 5, v0' % V); k.e('v_lshlrev_b32 v%d, 12, v%d' % (V, V)); k.e('v_and_b32 v%d, 31, v0' % R); k.e('v_lshl_add_u32 v%d, v%d, 4, v%d' % (V, R, V))
    k.e('s_lshr_b32 s46, s2, 1'); k.e('s_lshl_b32 s46, s46, 16'); k.e('s_and_b32 s47, s90, 7'); k.e('s_lshl_b32 s47, s47, 9'); k.e('s_add_u32 s46, s46, s47')
    for i in range(8):
        if i: k.e('s_add_u32 s46, s46, 8192')
        k.vmem('buffer_load_dwordx4 %s, v%d, s[4:7], s46 offen' % (ar(AS + 4 * i), V), 'sj')
def process(k, T, part):
    WA, RA, ON, V2, CV = T, T + 1, T + 2, T + 3, T + 4
    F = lambda n: T + 8 + (n % 6) * 4
    k.wait_vm('sj')
    k.e('s_mul_i32 s46, s22, 6144'); k.e('s_add_u32 s46, s46, %d' % STG); k.e('v_add_u32 v%d, s46, v1' % WA)
    def traddr(pitch):
        k.e('v_lshrrev_b32 v%d, 2, v14' % RA); k.e('v_lshl_add_u32 v%d, v15, 3, v%d' % (RA, RA)); k.e('v_mul_u32_u24 v%d, %d, v%d' % (RA, pitch, RA))
        k.e('v_and_b32 v%d, 3, v14' % CV); k.e('v_lshl_add_u32 v%d, v%d, 3, v%d' % (RA, CV, RA)); k.e('v_add_u32 v%d, s46, v%d' % (RA, RA))
    if part == 1: process_wi(k, T, WA, RA, ON, V2, CV, F, traddr)
    else:
        process_ws(k, T)
        process_wout(k, T, WA, RA, ON, V2, CV, F, traddr)
def process_ws(k, T):
    W2, R2 = T + 5, T + 6
    k.e('s_mul_i32 s47, s22, 8448'); k.e('s_add_u32 s47, s47, %d' % STG2)
    k.e('v_lshrrev_b32 v%d, 5, v0' % W2); k.e('v_mul_u32_u24 v%d, 528, v%d' % (W2, W2)); k.e('v_and_b32 v%d, 31, v0' % R2); k.e('v_lshl_add_u32 v%d, v%d, 4, v%d' % (W2, R2, W2)); k.e('v_add_u32 v%d, s47, v%d' % (W2, W2))
    for i in range(8): k.lds('ds_write_b128 v%d, %s offset:%d' % (W2, ar(AS + 4 * i), i * 1056))
    k.e('v_mul_u32_u24 v%d, 528, v14' % R2); k.e('v_lshl_add_u32 v%d, v15, 4, v%d' % (R2, R2)); k.e('v_add_u32 v%d, s47, v%d' % (R2, R2))
    k.wait_lg_all()
    for i in range(8): k.lds('ds_read_b128 %s, v%d offset:%d' % (ar(AS + 4 * i), R2, i * 64), ('w', i))
    k.e('s_lshl_b32 s36, s90, 13'); k.e('s_add_u32 s36, s36, 0x%x' % WS); k.e('s_add_u32 s37, s36, 4096')
    for i in range(8):
        k.wait_lg(('w', i))
        k.st('buffer_store_dwordx4 %s, v1, s[8:11], s%d offen offset:%d' % (ar(AS + 4 * i), 36 + i // 4, (i % 4) * 1024), 'sjo')
def process_wi(k, T, WA, RA, ON, V2, CV, F, traddr):
    for i in range(6): k.lds('ds_write_b128 v%d, %s offset:%d' % (WA, ar(AW + 4 * i), i * 1024))
    traddr(192)
    k.e('v_mov_b32 v%d, 0x3f803f80' % ON)
    k.e('v_lshlrev_b32 v%d, 2, v0' % V2); k.e('v_cmp_gt_u32 vcc, 16, v0'); k.e('v_mov_b32 v%d, 0x%x' % (CV, OOB)); k.e('v_cndmask_b32 v%d, v%d, v%d, vcc' % (V2, CV, V2))
    k.wait_lg_all()
    for j in range(6):
        for h in range(2): k.lds('ds_read_b64_tr_b16 %s, v%d offset:%d' % (vr(F(j) + 2 * h, 2), RA, h * 768 + j * 32), ('t', j))
    for j in range(6):
        k.e('s_mul_i32 s32, s91, 6'); k.e('s_add_u32 s32, s32, %d' % j)
        k.e('s_cmp_lt_u32 s32, 144'); k.e('s_cselect_b32 s33, 1, 0'); k.e('s_cselect_b32 s34, 0, 144'); k.e('s_sub_u32 s32, s32, s34')
        sdiv(k, 34, 32, 9, 300); k.e('s_mul_i32 s35, s34, 9'); k.e('s_sub_u32 s35, s32, s35')
        k.e('s_lshl_b32 s34, s34, 1'); k.e('s_add_u32 s34, s34, s33')
        k.e('s_mul_i32 s36, s34, 18'); k.e('s_add_u32 s36, s36, s92'); k.e('s_mul_i32 s36, s36, 9'); k.e('s_add_u32 s36, s36, s35'); k.e('s_lshl_b32 s36, s36, 10')
        k.e('s_add_u32 s36, s36, 0x%x' % WI); k.e('s_add_u32 s36, s36, s93')
        k.e('s_mul_i32 s37, s34, 9'); k.e('s_add_u32 s37, s37, s35'); k.e('s_lshl_b32 s37, s37, 6'); k.e('s_add_u32 s37, s37, 0x%x' % CSI); k.e('s_add_u32 s37, s37, s93')
        k.wait_lg(('t', j))
        k.st('buffer_store_dwordx4 %s, v1, s[8:11], s36 offen' % vr(F(j)), 'sjo')
        c = T + 32 + j
        k.e('v_mov_b32 v%d, 0' % c)
        for q in range(4): k.e('v_dot2_f32_bf16 v%d, v%d, v%d, v%d' % (c, F(j) + q, ON, c))
        rowsum_g(k, c, CV)
        k.vmem('buffer_atomic_add_f32 v%d, v%d, s[8:11], s37 offen' % (c, V2), 'sjo')
def process_wout(k, T, WA, RA, ON, V2, CV, F, traddr):
    for i in range(5): k.lds('ds_write_b128 v%d, %s offset:%d' % (WA, ar(AO + 4 * i), i * 1024))
    traddr(144)
    k.e('v_lshl_add_u32 v%d, v15, 3, v14' % V2); k.e('v_lshlrev_b32 v%d, 4, v%d' % (V2, V2)); k.e('v_add_u32 v%d, 4096, v%d' % (V2, V2))
    k.e('v_cmp_gt_u32 vcc, 8, v14'); k.e('v_mov_b32 v%d, 0x%x' % (CV, OOB)); k.e('v_cndmask_b32 v%d, v%d, v%d, vcc' % (V2, CV, V2))
    k.e('s_mul_i32 s36, s94, 72'); k.e('s_add_u32 s36, s36, s95'); k.e('s_mul_i32 s36, s36, 4608'); k.e('s_add_u32 s36, s36, 0x%x' % WOUT); k.e('s_add_u32 s36, s36, s96')
    k.wait_lg_all()
    for j in range(5):
        for h in range(2): k.lds('ds_read_b64_tr_b16 %s, v%d offset:%d' % (vr(F(j) + 2 * h, 2), RA, h * 576 + j * 32), ('t', j))
    for j in range(5):
        k.wait_lg(('t', j))
        if j < 4: k.st('buffer_store_dwordx4 %s, v1, s[8:11], s36 offen offset:%d' % (vr(F(j)), j * 1024), 'sjo')
        else: k.st('buffer_store_dwordx4 %s, v%d, s[8:11], s36 offen' % (vr(F(j)), V2), 'sjo')
def signal(k, T, part):
    k.wait_vm('sjo')
    k.e('s_lshl_b32 s46, s90, 2'); k.e('s_add_u32 s46, s46, 0x%x' % (SJ + 4096 * part))
    k.e('v_mov_b32 v%d, 1' % T); k.e('v_mov_b32 v%d, 0' % (T + 1))
    k.setexec(1)
    k.vmem('buffer_store_dword v%d, v%d, s[8:11], s46 offen sc0 sc1' % (T, T + 1))
    k.e('s_mov_b64 exec, -1')
def wait(k, T, part):
    name = k.newlabel('SW')
    k.e('s_mov_b32 s53, 0'); k.e('s_mov_b32 s46, 0x%x' % (SJ + 4096 * part))
    k.label(name)
    for q in range(4): k.e('buffer_load_dwordx4 %s, v1, s[8:11], s46 offen offset:%d sc0 sc1' % (vr(T + 4 * q), q * 1024))
    k.e('s_add_u32 s53, s53, 1')
    k.wait_vm_all()
    k.e('v_min_u32 v%d, v%d, v%d' % (T, T, T + 1))
    for q in range(1, 8): k.e('v_min3_u32 v%d, v%d, v%d, v%d' % (T, T, T + 2 * q, T + 2 * q + 1))
    k.e('v_cmp_eq_u32 vcc, 0, v%d' % T)
    k.e('s_cbranch_vccz %sG' % name)
    k.e('s_cmp_lt_u32 s53, 100000')
    k.e('s_cbranch_scc1 %s' % name)
    k.label(name + 'G')
```

```python
from lib import *
SKEW = int(os.environ.get('SKEW', '0'))
BR = 16; NR = 8; D = 6

def stats_load(k, xs):
    k.e('v_and_b32 v12, 31, v0'); k.e('v_lshlrev_b32 v12, 3, v12'); k.e('v_lshrrev_b32 v13, 5, v0'); k.e('v_lshl_add_u32 v12, v13, 16, v12')
    k.e('s_lshl_b32 s46, s44, 10'); k.e('s_lshl_b32 s47, s22, 8'); k.e('s_add_u32 s46, s46, s47'); k.e('s_add_u32 s46, s46, 0x%x' % xs)
    for q in range(4):
        if q: k.e('s_add_u32 s46, s46, 16384')
        k.vmem('buffer_load_dwordx2 v[%d:%d], v12, s[8:11], s46 offen sc1' % (4 + 2 * q, 5 + 2 * q), 'xs')

def stats_finish(k, stat_base, n=576.0):
    k.wait_vm('xs')
    k.e('v_add_f32 v4, v4, v6'); k.e('v_add_f32 v8, v8, v10'); k.e('v_add_f32 v4, v4, v8')
    k.e('v_add_f32 v5, v5, v7'); k.e('v_add_f32 v9, v9, v11'); k.e('v_add_f32 v5, v5, v9')
    for vv in (4, 5):
        k.e('v_mov_b32 v6, v%d' % vv); k.e('v_permlane32_swap_b32 v%d, v6' % vv); k.e('v_add_f32 v%d, v%d, v6' % (vv, vv))
    k.e('v_mul_f32 v4, %s, v4' % f32(-1.0 / n))
    k.e('v_mul_f32 v5, %s, v5' % f32(1.0 / n))
    k.e('v_mul_f32 v6, v4, v4'); k.e('v_sub_f32 v5, v5, v6'); k.e('v_max_f32 v5, 0, v5')
    k.e('v_add_f32 v5, %s, v5' % f32(1e-5)); k.e('v_rsq_f32 v5, v5')
    k.e('v_cmp_gt_u32 vcc, 32, v0'); k.e('v_cndmask_b32 v4, v5, v4, vcc')
    k.e('s_lshl_b32 s30, s22, 8'); k.e('s_add_u32 s30, s30, %d' % stat_base)
    k.e('v_lshlrev_b32 v6, 2, v0'); k.e('v_add_u32 v6, s30, v6')
    k.lds('ds_write_b32 v6, v4')

class H4:
    def __init__(self, k, xf, wbase, panel_frags, passes, macros, C, burst=14, pace=2):
        self.k = k; self.passes = passes; self.C = C; self.burst = burst; self.pace = pace
        self.groups = [(p, ks, t) for p, (nt, o, a) in enumerate(passes) for ks in range(18) for t in range(nt)]
        self.NG = len(self.groups)
        self.mstart = []; s = 0
        for g in macros: self.mstart.append(s); s += g
        assert s >= self.NG and all(g % 4 == 0 for g in macros)
        self.tot = s
        self.macro_of = {}
        for m, st in enumerate(self.mstart):
            for f in range(st, st + macros[m]): self.macro_of[f] = m
        self.xf = xf; self.wbase = wbase; self.pf = panel_frags; self.dset = False
        self.dbase = -1
        ops = []
        for q in range(0, self.tot, 4): ops.append((max(self.mstart[self.macro_of[q]] - D, 0), 0, ('d', q)))
        nt0 = passes[0][0]
        for ks in range(18):
            for i in range(2): ops.append((ks * nt0, 1, ('a', ks, i)))
        ops.sort(key=lambda x: (x[0], x[1]))
        self.dops = [o for o in ops if o[2][0] == 'd']
        self.ops = ops
        self.limit = C
        self.hook = None
        self.npre = 0
    def dma_setup(self):
        if self.dset: return
        self.dset = True
        k = self.k
        k.e('s_lshl_b32 s49, s22, 10')
        k.e('s_lshr_b32 s48, s3, 1'); k.e('s_lshl_b32 s48, s48, 2'); k.e('s_lshr_b32 s20, s23, 3'); k.e('s_add_u32 s48, s48, s20')
        k.e('s_mul_i32 s48, s48, %d' % (self.pf * 1024)); k.e('s_add_u32 s48, s48, 0x%x' % self.wbase); k.e('s_add_u32 s48, s48, s49')
        k.e('v_add_u32 v253, 4096, v1'); k.e('v_add_u32 v254, 8192, v1'); k.e('v_add_u32 v255, 12288, v1')
    def setup(self):
        k = self.k
        self.dma_setup()
        k.e('v_add_u32 v2, 65536, v1'); k.e('v_add_u32 v3, 131072, v1')
        k.e('s_lshl_b32 s46, s44, 3'); k.e('s_lshl_b32 s47, s22, 1'); k.e('s_add_u32 s46, s46, s47')
        k.e('s_mul_i32 s24, s46, 18432'); k.e('s_add_u32 s24, s24, 0x%x' % self.xf)
        k.e('s_add_u32 s27, s24, 18432'); k.e('s_add_u32 s29, s24, 16384'); k.e('s_add_u32 s21, s27, 16384')
    def early(self, n):
        self.dma_setup()
        for _ in range(n):
            self.prefetch_weights(1); self.npre += 1; yield
    def issue(self, op):
        k = self.k
        if os.environ.get('H4NOD') and op[0] == 'd' and op[1] >= 96: return
        if os.environ.get('H4NOA') and op[0] == 'a': return
        if op[0] == 'd':
            q = op[1]
            k.e('s_add_u32 m0, s49, %d' % ((q % self.C) * 1024))
            if self.dbase != q // 16:
                self.dbase = q // 16; k.e('s_add_u32 s20, s48, %d' % (q // 16 * 16384))
            k.vmem('buffer_load_dwordx4 v%d, s[8:11], s20 offen sc1 lds' % [1, 253, 254, 255][(q % 16) // 4], ('D', self.macro_of[q]))
        else:
            _, ks, i = op
            sreg = [[24, 27], [29, 21]][ks // 16][i]
            k.vmem('buffer_load_dwordx4 %s, v%d, s[8:11], s%d offen offset:%d sc1' % (ar((ks * 2 + i) * 4), [1, 253, 254, 255][(ks % 16) // 4], sreg, (ks % 4) * 1024), ('A', ks))
    def pump(self, n=1, weights_only=False, upto=None):
        done = 0; i = 0
        while done < n and i < len(self.ops):
            need, _, op = self.ops[i]
            if upto is not None and need > upto: break
            if (op[0] == 'd' and op[1] + 4 > self.limit) or (weights_only and op[0] == 'a'): i += 1; continue
            self.issue(op); self.ops.pop(i); done += 1
    def prefetch_weights(self, n): self.pump(n, weights_only=True)
    def run(self, fillers=None, after_burst=None, mid=None, skip=2):
        k = self.k
        self.limit = self.C
        self.pump(self.burst)
        if after_burst: after_burst()
        k.wait_lg_all()
        Bq = lambda g: vr(BR + (g % NR) * 4)
        def rd(g):
            if g in self.mstart:
                m = self.mstart.index(g)
                self.pump(100, upto=g)
                assert not any(o[2][0] == 'd' and self.macro_of[o[2][1]] <= m for o in self.ops)
                k.wait_vm(('D', m))
                if not (os.environ.get('H4NOB') and m): k.e('s_barrier')
                if m == 0: k.stamp(1)
                if SKEW:
                    lb = k.newlabel('SK')
                    k.e('s_mul_i32 s43, s22, %d' % SKEW)
                    k.lines.append(lb + ':;nohz')
                    k.e('s_sub_u32 s43, s43, 1'); k.e('s_cbranch_scc0 %s' % lb)
                self.limit = max(self.limit, ((g - D - 4) // 4) * 4 + self.C)
            off = (g % self.C) * 1024
            qq, o = divmod(off, 65536)
            k.lds('ds_read_b128 %s, v%d offset:%d' % (Bq(g), 1 + qq, o), ('B', g))
        for g in range(D): rd(g)
        credit = 0.0
        for g, (p, ks, t) in enumerate(self.groups):
            nt, orient, ab = self.passes[p]
            if p == 1 and ks == 0 and t == 0:
                k.stamp(7)
                if fillers and 0 in fillers:
                    for _ in fillers[0][0]: pass
                if mid: mid()
            if g + D < self.NG: rd(g + D)
            if g % self.pace == 0: self.pump(1)
            if self.hook and all(o[2][0] == 'd' and o[0] >= 130 for o in self.ops):
                self.hook(); self.hook = None
            if p == 0 and t == 0:
                self.pump(100, upto=g)
                k.wait_vm(('A', ks))
            if g % 2 == 0: k.wait_lg(('B', min(g + 1, self.NG - 1)))
            k.wait_lg(('B', g))
            for i in range(2):
                acc = vr(ab + (i * nt + t) * 4)
                c = acc if ks else '0'
                A = ar((ks * 2 + i) * 4)
                if orient == 's': k.e('v_mfma_f32_16x16x32_bf16 %s, %s, %s, %s' % (acc, A, Bq(g), c))
                else: k.e('v_mfma_f32_16x16x32_bf16 %s, %s, %s, %s' % (acc, Bq(g), A, c))
                if fillers and p in fillers and not (ks == 0 and t < skip):
                    gen, per = fillers[p]
                    credit += per
                    while credit >= 1:
                        credit -= 1
                        next(gen, None)
        if fillers:
            for gen, per in fillers.values():
                for _ in gen: pass
        assert not self.ops, self.ops
```

```python
from lib import *
from phases import FUSED, DEFER, SIDE, gelu_ops, GC1, pk
import side, k_k5

K4_LDS = 2 * 73728
def phase_k4(k, layer, slot=4):
    map_8x4(k)
    NS = 16; T = 3
    for q in range(1, 4): k.e('v_add_u32 v%d, %d, v1' % (1 + q, 4096 * q))
    for i in range(8):
        k.e('s_lshl_b32 s46, s22, 1'); k.e('s_add_u32 s46, s46, %d' % i); k.e('s_and_b32 s46, s46, 7')
        k.e('s_lshl_b32 s47, s44, 3'); k.e('s_add_u32 s46, s46, s47'); k.e('s_lshl_b32 s46, s46, 16')
        k.e('s_lshl_b32 s47, s22, 14'); k.e('s_add_u32 s46, s46, s47'); k.e('s_add_u32 s%d, s46, 0x%x' % (24 + i, WS))
    k.e('s_lshl_b32 s46, s45, 6'); k.e('s_lshl_b32 s47, s22, 4'); k.e('s_add_u32 s46, s46, s47'); k.e('s_mul_i32 s32, s46, 9216'); k.e('s_add_u32 s32, s32, 0x%x' % Z2(layer))
    k.stamp(0)
    ACC0 = 184
    AF = 16
    BF = 64
    TMP = 172
    def acc(i, j):
        if i < 2: return vr(ACC0 + (i * 9 + j) * 4)
        return ar(((i - 2) * 9 + j) * 4)
    B = lambda n, j: vr(BF + (n % 3) * 36 + 4 * j)
    aslot = {}
    def ldA(i, n, slot):
        aslot[(i, n)] = slot
        k.vmem('buffer_load_dwordx4 %s, v%d, s[8:11], s%d offen offset:%d%s' % (vr(AF + 4 * slot), 1 + n // 4, 24 + i, (n % 4) * 1024, os.environ.get('K4A', ' sc1')), ('A', i, n))
    A = lambda i, n: vr(AF + 4 * aslot[(i, n)])
    def ldB(j, n):
        if j % 4 == 0: k.e('s_add_u32 s33, s32, %d' % (n * 9216 + j * 1024))
        k.vmem('buffer_load_dwordx4 %s, v1, s[8:11], s33 offen offset:%d%s' % (B(n, j), (j % 4) * 1024, os.environ.get('K4B', ' sc1')), ('B', j, n))
    def mfma(i, j, n):
        k.wait_vm(('A', i, n)); k.wait_vm(('B', j, n))
        k.e('v_mfma_f32_16x16x32_bf16 %s, %s, %s, %s' % (acc(i, j), B(n, j), A(i, n), acc(i, j) if n else '0'))
    if SIDE and layer == 0: side.wait(k, 64, 2)
    k.dep_addr(5 * layer + 2, 45)
    yield
    for i in range(0, 8): ldA(i, 0, i)
    k.e('v_lshlrev_b32 v12, 1, v14'); k.e('s_lshl_b32 s46, s44, 8'); k.e('s_lshl_b32 s47, s22, 6'); k.e('s_add_u32 s46, s46, s47')
    for i in range(2): k.vmem('buffer_load_ushort v%d, v12, s[12:15], s46 offen offset:%d' % (10 + i, 32 * i), 'bias')
    for b in range(1, 4):
        k.e('s_add_u32 s46, s22, %d' % b); k.e('s_and_b32 s46, s46, 3'); k.e('s_mul_i32 s46, s46, 18432')
        k.e('s_add_u32 s46, s46, %d' % (73728 if b == 2 else 0))
        k.e('v_add_u32 v%d, s46, v1' % (4 + b))
    k.e('s_mul_i32 s46, s22, 18432'); k.e('v_add_u32 v8, s46, v1'); k.e('v_add_u32 v9, 73728, v8')
    yield
    k.stamp(6)
    for j in range(9): ldB(j, 0)
    NM = NS - T
    def z1_gelu():
        k.e('v_mov_b32 v13, %s' % f32(GC1)); yield
        for q0 in range(0, 36, 2):
            def one(c):
                a = 216 + q0 + c; t = TMP + 6 * c
                k.e('v_accvgpr_read_b32 v%d, a%d' % (t + 4, a))
                k.e('v_lshlrev_b32 v%d, 16, v%d' % (t, t + 4)); k.e('v_and_b32 v%d, 0xffff0000, v%d' % (t + 1, t + 4))
                L = rr([capture(k, lambda e=e: gelu_ops(k, t + e, t + 2 + e, 13)) for e in range(2)])
                k.lines.extend(L)
                k.e('v_cvt_pk_bf16_f32 v%d, v%d, v%d' % (t + 4, t, t + 1))
                k.e('v_accvgpr_write_b32 a%d, v%d' % (a, t + 4))
            for l in rr([capture(k, lambda c=c: one(c)) for c in range(2)]):
                k.lines.append(l); yield
    zg = z1_gelu() if DEFER else iter(())
    forder = [(i, n) for b in (1, 2, 3, 0) for i in (2 * b, 2 * b + 1) for n in range(NM, NS)]
    for n in range(NM - 1):
        for i in range(8):
            for j in range(9):
                mfma(i, j, n)
                next(zg, None)
                if i < 3 and j % 3 == 1: ldB(i * 3 + j // 3, n + 1)
                if n == NM - 2 and 3 <= i < 6 and j % 3 == 1: ldB((i - 3) * 3 + j // 3, n + 2)
            ldA(i, n + 1, i)
            if n == NM - 2 and i >= 4: ldA(*forder[i - 4], 4 + i)
    n = NM - 1
    c = 0
    for i in (2, 3):
        for j in range(9):
            mfma(i, j, n); next(zg, None)
            if c % 2 == 0: ldB(c // 2, n + 2)
            c += 1
        ldA(*forder[4 + i - 2], i)
    for q in range(4): ldA(*forder[q], 8 + q) if False else None
    rest = (4, 5, 6, 7, 0, 1)
    for j in range(9):
        for i in rest:
            mfma(i, j, n); next(zg, None)
        ldB(j, NS - 1)
    for q, i in enumerate(rest): ldA(*forder[6 + q], i)
    for _ in zg: pass
    nextA = 12
    k.stamp(1)
    k.e('s_lshl_b32 s46, s44, 4'); k.e('s_add_u32 s46, s46, s45'); k.e('s_lshl_b32 s46, s46, 3'); k.e('s_lshl_b32 s47, s22, 1'); k.e('s_add_u32 s46, s46, s47')
    k.e('s_mul_i32 s34, s46, 4608'); k.e('s_add_u32 s34, s34, 0x%x' % Z1(layer))
    k.e('v_lshlrev_b32 v13, 3, v0')
    def phase(b, side, pre_tile=None):
        nonlocal nextA
        ms = [(i, n, j) for i in (2 * b, 2 * b + 1) for n in range(NM, NS) for j in range(9)]
        if pre_tile: ms = [(i, n, j) for i in (2 * b, 2 * b + 1) for j in range(9) for n in range(NM, NS)]
        tot = len(ms); si = 0
        done = {}
        for c, (i, n, j) in enumerate(ms):
            if pre_tile and n == NM: pre_tile(i, j)
            mfma(i, j, n)
            done[(i, n)] = done.get((i, n), 0) + 1
            if done[(i, n)] == 9 and nextA < len(forder):
                ldA(*forder[nextA], aslot[(i, n)]); nextA += 1
            while si < len(side) and si * tot <= c * len(side):
                side[si](); si += 1
        while si < len(side): side[si](); si += 1
    def writes(b):
        return [(lambda t=t: k.lds('ds_write_b128 v%d, %s offset:%d' % (4 + b, acc(2 * b + t // 9, t % 9), t * 1024))) for t in range(18)]
    def readadd(vaddr):
        ops = []
        for t in range(18):
            tm = TMP + (t % 3) * 4
            ops.append(lambda t=t, tm=tm: k.lds('ds_read_b128 %s, v%d offset:%d' % (vr(tm), vaddr, t * 1024), ('R', t)))
            if t >= 2:
                def add(t=t - 2):
                    tm = TMP + (t % 3) * 4
                    k.wait_lg(('R', t))
                    for q in range(4): k.e('v_add_f32 v%d, v%d, v%d' % (ACC0 + 4 * t + q, ACC0 + 4 * t + q, tm + q))
                ops.append(add)
        for t in (16, 17):
            def add(t=t):
                tm = TMP + (t % 3) * 4
                k.wait_lg(('R', t))
                for q in range(4): k.e('v_add_f32 v%d, v%d, v%d' % (ACC0 + 4 * t + q, ACC0 + 4 * t + q, tm + q))
            ops.append(add)
        return ops
    def merge(a, b):
        out = []; n = max(len(a), len(b))
        ia = ib = 0
        for c in range(len(a) + len(b)):
            if ib >= len(b) or (ia < len(a) and ia * len(b) <= ib * len(a)): out.append(a[ia]); ia += 1
            else: out.append(b[ib]); ib += 1
        return out
    k.e('v_lshlrev_b32 v10, 16, v10'); k.e('v_lshlrev_b32 v11, 16, v11')
    phase(1, [(lambda r=r: k.e('v_add_f32 v%d, v%d, v%d' % (ACC0 + r, ACC0 + r, 10 + r // 36))) for r in range(72)])
    phase(2, writes(1))
    k.wait_lg_all(); k.e('s_barrier')
    if WARM & 8: k.warm(WOUT, 8 * 72 * 4608, vt=12)
    ew = k_k5.early(k, 72, WOUT)
    ewf = lambda cnt: [(lambda: next(ew, None)) for _ in range(cnt)]
    phase(3, merge(merge(writes(2), readadd(8)), ewf(18)))
    k.wait_lg_all(); k.e('s_barrier')
    z1ld = [(lambda t=t: (k.e('s_add_u32 s35, s34, %d' % ((t // 8) * 4096)), k.vmem('buffer_load_dwordx2 a[%d:%d], v13, s[8:11], s35 offen offset:%d sc1' % (2 * t, 2 * t + 1, (t % 8) * 512), 'z1'))) for t in range(18)]
    assert FUSED
    k.e('s_mul_i32 s46, s45, 144'); k.e('v_lshlrev_b32 v13, 2, v15'); k.e('v_add_u32 v13, s46, v13')
    fm_store_voff(k, 12, 13, 14, 10)
    k.e('s_lshl_b32 s46, s44, 3'); k.e('s_lshl_b32 s47, s22, 1'); k.e('s_add_u32 s46, s46, s47'); k.e('s_mul_i32 s46, s46, %d' % (72 * 1024)); k.e('s_add_u32 s36, s46, 0x%x' % Y(layer))
    k.e('s_add_u32 s37, s36, 4096'); k.e('s_add_u32 s38, s36, %d' % (72 * 1024)); k.e('s_add_u32 s39, s38, 4096')
    own = {aslot[(i, n)] for i in (0, 1) for n in range(NM, NS)}
    free = [AF + 4 * q for q in range(12) if q not in own]
    def rd1(t): k.lds('ds_read_b128 %s, v9 offset:%d' % (vr(TMP + (t % 3) * 4), t * 1024), ('R', t))
    def add1(t):
        k.wait_lg(('R', t)); tm = TMP + (t % 3) * 4
        for q in range(4): k.e('v_add_f32 v%d, v%d, v%d' % (ACC0 + 4 * t + q, ACC0 + 4 * t + q, tm + q))
    def store(t, b):
        i, j = divmod(t, 9)
        k.st('buffer_store_dwordx2 %s, v12, s[8:11], s%d offen offset:%d' % (vr(b, 2), 36 + 2 * i + j // 8, (j % 8) * 512))
    rd1(0); rd1(1)
    w3 = writes(3)
    for j in range(9):
        t = j
        rd1(t + 2); add1(t)
        for n in range(NM, NS):
            mfma(0, j, n)
            if n > NM: w3.pop(0)(); next(ew, None)
    k.wait_lg_all(); k.e('s_barrier')
    k.stamp(2)
    def epi_gen():
        R3 = lambda t: free[t % 2]
        Z = free[2]
        k.lds('ds_read_b128 %s, v8 offset:0' % vr(R3(0)), ('Q', 0)); yield
        for t in range(9):
            b = ACC0 + 4 * t
            if t + 1 < 9:
                k.lds('ds_read_b128 %s, v8 offset:%d' % (vr(R3(t + 1)), (t + 1) * 1024), ('Q', t + 1)); yield
            k.e('v_accvgpr_read_b32 v10, a%d' % (216 + 2 * t)); yield
            k.e('v_accvgpr_read_b32 v11, a%d' % (217 + 2 * t)); yield
            for r in range(4):
                if r % 2 == 0: k.e('v_lshlrev_b32 v%d, 16, v%d' % (Z + r, 10 + r // 2))
                else: k.e('v_and_b32 v%d, 0xffff0000, v%d' % (Z + r, 10 + r // 2))
                yield
            k.wait_lg(('Q', t))
            for r in range(4):
                k.e('v_add_f32 v%d, v%d, v%d' % (b + r, b + r, R3(t) + r)); yield
            for r in range(4):
                k.e('v_mul_f32 v%d, v%d, v%d' % (b + r, b + r, Z + r)); yield
            k.e('v_cvt_pk_bf16_f32 v%d, v%d, v%d' % (b, b, b + 1)); yield
            k.e('v_cvt_pk_bf16_f32 v%d, v%d, v%d' % (b + 1, b + 2, b + 3)); yield
            store(t, b); yield
    eg = epi_gen()
    S3 = lambda t: free[3 + t % 3]
    def rd3(t): k.lds('ds_read_b128 %s, v8 offset:%d' % (vr(S3(t)), t * 1024), ('S', t))
    rd3(9); rd3(10)
    for j in range(9):
        t = 9 + j
        if t + 2 < 18: rd1(t + 2); rd3(t + 2)
        add1(t)
        k.wait_lg(('S', t))
        for q in range(4): k.e('v_add_f32 v%d, v%d, v%d' % (ACC0 + 4 * t + q, ACC0 + 4 * t + q, S3(t) + q))
        for n in range(NM, NS):
            mfma(1, j, n)
            if n == NM: next(ew, None)
            for _ in range(6): next(eg, None)
    for _ in eg: pass
    for _ in ew: pass
    k.e('s_nop 7')
    for t in range(9, 18):
        b = ACC0 + 4 * t; z = 100 + (t % 2) * 6
        k.e('v_accvgpr_read_b32 v%d, a%d' % (z + 4, 216 + 2 * t)); k.e('v_accvgpr_read_b32 v%d, a%d' % (z + 5, 217 + 2 * t))
        for r in range(4):
            if r % 2 == 0: k.e('v_lshlrev_b32 v%d, 16, v%d' % (z + r, z + 4 + r // 2))
            else: k.e('v_and_b32 v%d, 0xffff0000, v%d' % (z + r, z + 4 + r // 2))
        for r in (0, 2): k.e(pk('mul', b + r, b + r, z + r))
        k.e('v_cvt_pk_bf16_f32 v%d, v%d, v%d' % (b, b, b + 1)); k.e('v_cvt_pk_bf16_f32 v%d, v%d, v%d' % (b + 1, b + 2, b + 3))
        store(t, b)
    k.stamp(3)
    k.sig_addr(5 * layer + 3, 44, 16, 1, 45)
    k.dump(slot, 5)
```

```python
from lib import *
import side
from phases import SIDE, pk
K5_LDS = 4 * 15360
RB = 96 * 1024
EARLYW = int(os.environ.get('EARLYW', '1'))
def ne_of(KB): return (5 if KB == 18 else 9) if EARLYW else 0
def early(k, KB, WB):
    NST = (KB + 3) // 4
    k.e('v_and_b32 v2, 7, v0'); k.e('v_lshl_add_u32 v2, v15, 3, v2'); k.e('v_lshlrev_b32 v2, 4, v2'); k.e('v_add_u32 v2, 4096, v2')
    k.e('s_mul_i32 s48, s22, %d' % NST); k.e('s_mov_b32 s49, 0')
    if KB % 4:
        k.e('s_cmp_eq_u32 s22, 3'); k.e('s_cselect_b32 s20, 1, 0'); k.e('s_sub_u32 s48, s48, s20')
        k.e('s_cmp_ge_u32 s22, 2'); k.e('s_cselect_b32 s49, 0x40000000, 0')
    k.e('s_lshr_b32 s20, s23, 2'); k.e('s_mul_i32 s20, s20, %d' % KB); k.e('s_add_u32 s48, s48, s20'); k.e('s_mul_i32 s48, s48, 4608'); k.e('s_add_u32 s48, s48, 0x%x' % WB)
    for n in range(ne_of(KB)):
        if n: k.e('s_add_u32 s48, s48, 4608')
        if KB % 4 and n == NST - 1: k.e('s_add_u32 s48, s48, s49')
        for j in range(5):
            d = ar((n * 5 + j) * 4)
            if j < 4: k.vmem('buffer_load_dwordx4 %s, v1, s[8:11], s48 offen offset:%d sc1' % (d, j * 1024), ('f', n, 4 + j))
            else: k.vmem('buffer_load_dwordx4 %s, v2, s[8:11], s48 offen sc1' % d, ('f', n, 8))
            yield

def phase_k5(k, inst, YB, KB, WB, xin, xout, slot=5, nh=None):
    final = xout is None
    NST = (KB + 3) // 4
    map_4x8(k)
    k.e('v_and_b32 v2, 7, v0'); k.e('v_lshl_add_u32 v2, v15, 3, v2'); k.e('v_lshlrev_b32 v2, 4, v2'); k.e('v_add_u32 v2, 4096, v2')
    RD = 5; FR = 16
    k.e('s_mul_i32 s55, s22, %d' % NST); k.e('s_mov_b32 s56, 0')
    if KB % 4:
        k.e('s_cmp_eq_u32 s22, 3'); k.e('s_cselect_b32 s46, 1, 0'); k.e('s_sub_u32 s55, s55, s46')
        k.e('s_cmp_ge_u32 s22, 2'); k.e('s_cselect_b32 s56, 0x40000000, 0')
    for i in range(4):
        k.e('s_add_u32 s46, s22, %d' % i); k.e('s_and_b32 s46, s46, 3'); k.e('s_lshl_b32 s47, s44, 2'); k.e('s_add_u32 s46, s46, s47')
        k.e('s_mul_i32 s46, s46, %d' % KB); k.e('s_add_u32 s46, s46, s55'); k.e('s_lshl_b32 s46, s46, 10'); k.e('s_add_u32 s%d, s46, 0x%x' % (24 + i, YB))
    k.e('s_mul_i32 s46, s45, %d' % KB); k.e('s_add_u32 s46, s46, s55'); k.e('s_mul_i32 s28, s46, 4608'); k.e('s_add_u32 s28, s28, 0x%x' % WB)
    NE = ne_of(KB)
    AB = (100 if KB == 18 else 192) - 20
    if NE: k.e('s_add_u32 s28, s28, %d' % ((NE - 1) * 4608))
    F = lambda n, f: ar((n * 5 + f - 4) * 4) if (f >= 4 and n < NE) else vr(FR + ((n % RD) * 9 + f) * 4)
    def ldw_g(n):
        if n: k.e('s_add_u32 s28, s28, 4608')
        if KB % 4 and n == NST - 1: k.e('s_add_u32 s28, s28, s56')
        for j in range(5):
            if j < 4: k.vmem('buffer_load_dwordx4 %s, v1, s[8:11], s28 offen offset:%d sc1' % (F(n, 4 + j), j * 1024), ('f', n, 4 + j))
            else: k.vmem('buffer_load_dwordx4 %s, v2, s[8:11], s28 offen sc1' % F(n, 8), ('f', n, 8))
            yield
    def ldy_g(n):
        if n % 4 == 0 and n:
            for i in range(4): k.e('s_add_u32 s%d, s%d, 4096' % (24 + i, 24 + i))
        if KB % 4 and n == NST - 1:
            for i in range(4): k.e('s_add_u32 s%d, s%d, s56' % (24 + i, 24 + i))
        for j in range(4):
            k.vmem('buffer_load_dwordx4 %s, v1, s[8:11], s%d offen offset:%d sc1' % (F(n, j), 24 + j, (n % 4) * 1024), ('f', n, j))
            yield
    def ldw(n):
        for _ in ldw_g(n): pass
    def ldy(n):
        for _ in ldy_g(n): pass
    def ld_g(n):
        yield from ldw_g(n); yield from ldy_g(n)
    k.stamp(0)
    k.e('s_lshr_b32 s51, s44, 1')
    k.dep_addr(inst - 1, 51)
    wn = [NE]
    def ldw_next():
        if wn[0] < NST:
            wn[0] += 1; yield from ldw_g(wn[0] - 1)
    for _ in ldw_next(): pass
    yield
    k.e('s_mul_i32 s46, s45, 72'); k.e('v_lshlrev_b32 v4, 2, v15'); k.e('v_add_u32 v4, s46, v4')
    for j in range(5):
        if j: k.e('v_add_u32 v4, 16, v4')
        fm_store_voff(k, 5 + j, 4, 14, 10)
        if final:
            k.e('v_mul_u32_u24 v%d, 1152, v14' % (200 + j)); k.e('v_lshl_add_u32 v%d, v4, 1, v%d' % (200 + j, 200 + j))
    k.e('v_cmp_gt_u32 vcc, 2, v15'); k.e('v_mov_b32 v10, 0x%x' % OOB); k.e('v_cndmask_b32 v9, v10, v9, vcc')
    if final: k.e('v_cndmask_b32 v204, v10, v204, vcc')
    k.e('s_lshl_b32 s50, s44, 2'); k.e('s_add_u32 s50, s50, s22')
    k.e('s_mul_i32 s52, s50, 18432'); k.e('s_add_u32 s54, s52, 0x%x' % XF(xin)); k.e('s_add_u32 s57, s52, 0x%x' % XF(xout or 0))
    for j in range(5): k.vmem('buffer_load_dwordx2 %s, v%d, s[8:11], s54 offen sc1' % (vr(206 + 2 * j, 2), 5 + j), 'res')
    if SIDE and inst == 1:
        side.process(k, 216, 1)
    O0 = 216
    NPW = int(os.environ.get('NPW', '2' if NE else '5'))
    for n in range(1, NPW):
        for _ in ldw_next(): pass
    for i in range(1, 4):
        k.e('s_add_u32 s46, s22, %d' % i); k.e('s_and_b32 s46, s46, 3'); k.e('s_mul_i32 s46, s46, 3'); k.e('s_add_u32 s46, s46, %d' % (i - 1)); k.e('s_mul_i32 s46, s46, 5120'); k.e('s_add_u32 s46, s46, %d' % RB)
        k.e('v_add_u32 v%d, s46, v1' % (240 + i))
    k.e('s_mul_i32 s46, s22, 15360'); k.e('s_add_u32 s46, s46, %d' % RB); k.e('v_add_u32 v240, s46, v1')
    for q in range(4): k.e('v_mov_b32 v%d, 0' % (244 + q))
    if not final:
        k.e('s_lshl_b32 s46, s50, 7'); k.e('s_lshl_b32 s47, s45, 14'); k.e('s_add_u32 s46, s46, s47'); k.e('s_add_u32 s29, s46, 0x%x' % XS(xout))
        k.e('v_lshlrev_b32 v248, 3, v14')
    k.wait_vm('res')
    for j in range(5):
        for r in range(4):
            if r % 2 == 0: k.e('v_lshlrev_b32 v%d, 16, v%d' % (O0 + 4 * j + r, 206 + 2 * j + r // 2))
            else: k.e('v_and_b32 v%d, 0xffff0000, v%d' % (O0 + 4 * j + r, 206 + 2 * j + r // 2))
    yield
    k.stamp(6)
    for n in range(RD):
        ldy(n)
        while wn[0] <= n:
            for _ in ldw_next(): pass
    eh = nh.early(24) if nh else iter(())
    AC = lambda i, j: ar(AB + (i * 5 + j) * 4) if i else vr(O0 + 4 * j)
    for n in range(NST):
        last = n == NST - 1
        def lgf(n=n):
            if n >= 1 and n - 1 + RD < NST: yield from ldy_g(n - 1 + RD)
            if wn[0] < NE + RD or wn[0] - RD <= n - 1: yield from ldw_next()
            if n - 1 + RD >= NST and wn[0] >= NST:
                for _ in range(8):
                    if next(eh, 1) is None: yield
        lg = lgf()
        c = 0
        for i in ((1, 2, 3, 0) if last else range(4)):
            for j in range(5):
                k.wait_vm(('f', n, i)); k.wait_vm(('f', n, 4 + j))
                k.e('v_mfma_f32_16x16x32_bf16 %s, %s, %s, %s' % (AC(i, j), F(n, 4 + j), F(n, i), AC(i, j) if (n or i == 0) else '0'))
                if c % 2 == 0: next(lg, None)
                if last and c >= 7 and c - 7 < 15:
                    pi, pj = 1 + (c - 7) // 5, (c - 7) % 5
                    k.lds('ds_write_b128 v%d, %s offset:%d' % (240 + pi, AC(pi, pj), pj * 1024))
                c += 1
        for _ in lg: pass
    for c in range(13, 15):
        pi, pj = 1 + c // 5, c % 5
        k.lds('ds_write_b128 v%d, %s offset:%d' % (240 + pi, AC(pi, pj), pj * 1024))
    k.stamp(2)
    if SIDE and inst == 1: side.signal(k, 250, 1)
    k.wait_lg_all()
    k.e('s_barrier')
    for j in range(5):
        for s_ in range(3): k.lds('ds_read_b128 %s, v240 offset:%d' % (vr(16 + (j * 3 + s_) * 4), (s_ * 5 + j) * 1024), ('r', j))
    for j in range(5):
        b = O0 + 4 * j; t = 16 + 12 * j
        k.wait_lg(('r', j))
        if j == 4: k.setexec(32)
        for r in (0, 2):
            k.e(pk('add', t + r, t + r, t + 4 + r)); k.e(pk('add', b + r, b + r, t + 8 + r))
        for r in (0, 2): k.e(pk('add', b + r, b + r, t + r))
        k.e('v_cvt_pk_bf16_f32 v%d, v%d, v%d' % (t, b, b + 1)); k.e('v_cvt_pk_bf16_f32 v%d, v%d, v%d' % (t + 1, b + 2, b + 3))
        if final: k.vmem('buffer_store_dwordx2 %s, v%d, s[16:19], s52 offen' % (vr(t, 2), 200 + j))
        else:
            k.st('buffer_store_dwordx2 %s, v%d, s[8:11], s57 offen' % (vr(t, 2), 5 + j))
            for r in (0, 2):
                k.e(pk('add', 244, 244, b + r)); k.e(pk('fma', 246, b + r, b + r, 246))
    k.e('s_mov_b64 exec, -1')
    if not final:
        k.e('v_add_f32 v12, v244, v245'); k.e('v_add_f32 v13, v246, v247')
        k.lines.extend(rr([capture(k, lambda: rowsum_g(k, 12, 10)), capture(k, lambda: rowsum_g(k, 13, 11))]))
        k.e('s_mov_b64 exec, 0xffff')
        k.st('buffer_store_dwordx2 v[12:13], v248, s[8:11], s29 offen')
        k.e('s_mov_b64 exec, -1')
    k.e('s_barrier')
    k.stamp(3)
    k.e('s_mov_b64 exec, -1')
    k.e('s_and_b32 s46, s44, 1'); k.e('s_lshl_b32 s46, s46, 3'); k.e('s_add_u32 s46, s46, s45')
    k.sig_addr(inst, 51, 16, 1, 46)
    k.dump(slot, 5)
    k.e('s_mov_b64 exec, -1')
```

```python
import math
from lib import *
from h4 import *
LOG2E = 1.4426950408889634
GC0 = -2.0 * math.sqrt(2.0 / math.pi) * LOG2E
GC1 = GC0 * 0.044715
A1 = 48; A2 = 120
FUSED = int(os.environ.get('FUSED', '1'))
DEFER = FUSED and int(os.environ.get('DEFER', '1'))
NCS = 4; NCI = 1 if (FUSED and int(os.environ.get('SIDE', '1'))) else 4
PRE1 = int(os.environ.get('PRE1', '6')) if FUSED else 0
PRE2 = int(os.environ.get('PRE2', '18')) if FUSED else 0
PRE3 = int(os.environ.get('PRE3', '6'))
SIDE = FUSED and int(os.environ.get('SIDE', '1'))
import side

def phi_ops(k, v, t1, t2, sm):
    k.e('v_mul_f32 v%d, %s, v%d' % (t1, f32(LOG2E), v))
    k.e('v_exp_f32 v%d, v%d' % (t1, t1))
    k.e('v_add_f32 v%d, %s, v%d' % (t2, f32(1.000001), v))
    k.e('v_cmp_lt_f32 %s, 0, v%d' % (sm, v))
    k.e('v_add_f32 v%d, %s, v%d' % (t1, f32(1e-6), t1))
    k.e('v_cndmask_b32 v%d, v%d, v%d, %s' % (v, t1, t2, sm))

def gelu_ops(k, v, t, vC1):
    k.e('v_mul_f32 v%d, v%d, v%d' % (t, v, v))
    k.e('v_fmaak_f32 v%d, v%d, v%d, %s' % (t, t, vC1, f32(GC0)))
    k.e('v_mul_f32 v%d, v%d, v%d' % (t, t, v))
    k.e('v_exp_f32 v%d, v%d' % (t, t))
    k.e('v_add_f32 v%d, 1.0, v%d' % (t, t))
    k.e('v_rcp_f32 v%d, v%d' % (t, t))
    k.e('v_mul_f32 v%d, v%d, v%d' % (v, v, t))

def pk(op, d, *src, sel=None):
    ops = []; lo = []; hi = []
    for s_ in src:
        if isinstance(s_, tuple):
            r = s_[1]; ops.append(vr(r & ~1, 2)); lo.append(r & 1); hi.append(r & 1)
        elif isinstance(s_, str):
            ops.append(s_); lo.append(0); hi.append(1)
        else:
            ops.append(vr(s_, 2)); lo.append(0); hi.append(1)
    m = ''
    if any(lo): m += ' op_sel:[%s]' % ','.join(map(str, lo))
    if not all(hi): m += ' op_sel_hi:[%s]' % ','.join(map(str, hi))
    return 'v_pk_%s_f32 %s, %s%s' % (op, vr(d, 2), ', '.join(ops), m)

def gelu_pk(k, v, t, CC):
    k.e(pk('mul', t, v, v))
    k.e(pk('fma', t, t, ('b', CC), ('b', CC + 1)))
    k.e(pk('mul', t, t, v))
    k.e('v_exp_f32 v%d, v%d' % (t, t)); k.e('v_exp_f32 v%d, v%d' % (t + 1, t + 1))
    k.e(pk('add', t, t, ('b', CC + 2)))
    k.e('v_rcp_f32 v%d, v%d' % (t, t)); k.e('v_rcp_f32 v%d, v%d' % (t + 1, t + 1))
    k.e(pk('mul', v, v, t))

def emit_gen(k, lines):
    for l in lines:
        k.lines.append(l); yield

def poll_loop(k, name, loads, check):
    k.e('s_mov_b32 s53, 0')
    k.wait_vm_all()
    k.label(k.L(name))
    loads()
    k.e('s_add_u32 s53, s53, 1')
    k.wait_vm_all()
    check()
    k.e('s_cbranch_vccz %s' % k.L(name + 'G'))
    k.e('s_cmp_lt_u32 s53, 50000')
    k.e('s_cbranch_scc1 %s' % k.L(name))
    k.label(k.L(name + 'G'))

K1_C = 156
K3_C = 156
K1_PART = 8192; K1_IMG = K1_PART + 49152; K1_STAT = 156 * 1024
CSL = K1_STAT + 1024
LDS_ALL = CSL + 1152

def gen_of(k, fn):
    fn(); yield

def soft_poll(k, name, loads, check, tag):
    k.wait_vm(tag)
    check()
    k.e('s_cbranch_vccz %s' % k.L(name + 'G'))
    sv = list(k.vm)
    k.e('s_mov_b32 s53, 0')
    k.label(k.L(name))
    loads()
    k.e('s_add_u32 s53, s53, 1')
    k.wait_vm_all()
    check()
    k.e('s_cbranch_vccz %s' % k.L(name + 'G'))
    k.e('s_cmp_lt_u32 s53, 100000')
    k.e('s_cbranch_scc1 %s' % k.L(name))
    k.label(k.L(name + 'G'))
    k.vm = sv

def make_h4(k, kind, layer):
    if kind == 1:
        xi = 2 * layer
        return H4(k, XF(xi), WQ, 162, [(6, 's', A1), (3, 'f', A2)], [12, 24, 36, 36, 36, 20], K1_C, burst=int(os.environ.get('B1', '8')), pace=1 if layer == 0 else int(os.environ.get('PC1', '2')))
    xi = 2 * layer + 1
    return H4(k, XF(xi), WI, 324, [(9, 's', A1), (9, 'f', A2)], [12, 24] + [36] * 8, K3_C, burst=int(os.environ.get('B3', '8')), pace=int(os.environ.get('PC3', '3')))

def phase_k1(k, layer, slot=1, h=None):
    xi = 2 * layer
    map_8x4(k)
    k.stamp(0)
    h = h or make_h4(k, 1, layer)
    h.setup()
    k.dep_addr(5 * layer - 1, 44)
    if h.npre == 0: h.prefetch_weights(PRE1 if layer else 3)
    yield
    if layer: h.prefetch_weights(PRE2 if h.npre == 0 else PRE3)
    k.e('s_mul_i32 s31, s45, 576'); k.e('s_add_u32 s31, s31, 0x%x' % CSQ)
    k.e('s_lshl_b32 s46, s22, 8'); k.e('v_lshlrev_b32 v12, 2, v0'); k.e('v_add_u32 v238, s46, v12'); k.e('v_min_u32 v238, 572, v238')
    for q in range(NCS):
        if q: k.e('s_add_u32 s31, s31, 9216')
        k.vmem('buffer_load_dword v%d, v238, s[8:11], s31 offen' % (192 + q), 'cs')
    NM4 = 212; RS4 = 220; NM1 = 228; RS1 = 230; PK = 144
    GV = 237; LT = 248; IM = 240; SO = 244
    k.e('s_lshl_b32 s46, s22, 8')
    k.e('s_mul_i32 s50, s45, %d' % (16 * 3072)); k.e('s_add_u32 s50, s50, 0x%x' % KVP(layer))
    k.e('s_mul_i32 s51, s44, 3072'); k.e('s_add_u32 s51, s51, s50')
    k.e('v_lshlrev_b32 v4, 2, v0'); k.e('v_add_u32 v4, s46, v4')
    k.e('v_lshlrev_b32 v5, 2, v4'); k.e('v_cmp_gt_u32 vcc, 684, v4'); k.e('v_mov_b32 v6, 0x%x' % OOB); k.e('v_cndmask_b32 v%d, v6, v5, vcc' % GV)
    k.e('v_min_u32 v4, 680, v4')
    k.e('s_mov_b32 s41, 3641')
    def elem(c):
        B0 = 48 + c * 16
        u, q, dd, hh, row, d, e, T, lp = [B0 + x for x in range(9)]
        sm = 's[%d:%d]' % (32 + 2 * c, 33 + 2 * c)
        k.e('v_add_u32 v%d, %d, v4' % (u, c))
        k.e('v_mul_u32_u24 v%d, s41, v%d' % (q, u)); k.e('v_lshrrev_b32 v%d, 16, v%d' % (q, q))
        k.e('v_mul_u32_u24 v%d, 18, v%d' % (dd, q)); k.e('v_sub_u32 v%d, v%d, v%d' % (dd, u, dd))
        k.e('v_cmp_le_u32 %s, 19, v%d' % (sm, q)); k.e('v_cndmask_b32 v%d, 0, 1, %s' % (hh, sm))
        k.e('v_mul_u32_u24 v%d, 19, v%d' % (row, hh)); k.e('v_sub_u32 v%d, v%d, v%d' % (row, q, row))
        k.e('v_mad_u32_u24 v%d, v%d, 18, v%d' % (d, hh, dd))
        k.e('v_mad_u32_u24 v%d, v%d, 18, v%d' % (e, hh, row))
        k.e('v_cmp_eq_u32 %s, 18, v%d' % (sm, row))
        k.e('v_lshrrev_b32 v%d, 4, v%d' % (T, d))
        k.e('v_lshrrev_b32 v%d, 4, v%d' % (lp, e))
        k.e('v_mad_u32_u24 v%d, v%d, 3, v%d' % (lp, T, lp))
        k.e('v_add_u32 v%d, 9, v%d' % (T, T))
        k.e('v_cndmask_b32 v%d, v%d, v%d, %s' % (T, lp, T, sm))
        k.e('v_and_b32 v%d, 15, v%d' % (lp, e))
        k.e('v_lshlrev_b32 v%d, 10, v%d' % (T, T)); k.e('v_lshl_add_u32 v%d, v%d, 4, v%d' % (T, lp, T))
        k.e('v_bfe_u32 v%d, v%d, 2, 2' % (q, d)); k.e('v_lshl_add_u32 v%d, v%d, 8, v%d' % (T, q, T))
        k.e('v_and_b32 v%d, 3, v%d' % (dd, d)); k.e('v_lshl_add_u32 v%d, v%d, 2, v%d' % (T, dd, T))
        k.e('v_add_u32 v%d, %d, v%d' % (LT + c, K1_PART, T))
        k.e('v_bfe_u32 v%d, v%d, 4, 1' % (row, d)); k.e('v_lshl_add_u32 v%d, v%d, 2, v%d' % (dd, row, dd)); k.e('v_lshlrev_b32 v%d, 1, v%d' % (dd, dd))
        k.e('v_lshrrev_b32 v%d, 5, v%d' % (row, d))
        k.e('v_lshrrev_b32 v%d, 4, v%d' % (e, e)); k.e('v_lshl_add_u32 v%d, v%d, 1, v%d' % (e, e, row)); k.e('v_lshlrev_b32 v%d, 10, v%d' % (e, e))
        k.e('v_lshl_add_u32 v%d, v%d, 8, v%d' % (e, q, e)); k.e('v_lshl_add_u32 v%d, v%d, 4, v%d' % (e, lp, e))
        k.e('v_lshl_add_u32 v%d, v%d, 1, v%d' % (hh, hh, row)); k.e('v_lshlrev_b32 v%d, 6, v%d' % (hh, hh)); k.e('v_lshl_add_u32 v%d, v%d, 4, v%d' % (hh, q, hh)); k.e('v_add_u32 v%d, 6144, v%d' % (hh, hh))
        k.e('v_cndmask_b32 v%d, v%d, v%d, %s' % (e, e, hh, sm)); k.e('v_add_u32 v%d, v%d, v%d' % (e, e, dd))
        k.e('v_mov_b32 v%d, 7168' % lp); k.e('v_cndmask_b32 v%d, v%d, v%d, vcc' % (e, lp, e))
        k.e('v_add_u32 v%d, %d, v%d' % (IM + c, K1_IMG, e))
    k.lines.extend(rr([capture(k, lambda c=c: elem(c)) for c in range(4)]))
    k.e('s_mul_i32 s46, s45, 36'); k.e('v_lshlrev_b32 v13, 2, v15'); k.e('v_add_u32 v13, s46, v13')
    for tt in range(3):
        if tt: k.e('v_add_u32 v13, 16, v13')
        fm_store_voff(k, SO + tt, 13, 14, 8)
    k.e('v_cmp_eq_u32 vcc, 0, v15'); k.e('v_mov_b32 v8, 0x%x' % OOB); k.e('v_cndmask_b32 v%d, v8, v%d, vcc' % (SO + 2, SO + 2))
    for q in range(4): k.e('v_mov_b32 v%d, 0x3f803f80' % (232 + q))
    k.e('s_mul_i32 s46, s22, 12288'); k.e('s_add_u32 s46, s46, %d' % K1_PART); k.e('v_add_u32 v236, s46, v1')
    k.e('s_lshl_b32 s46, s44, 3'); k.e('s_lshl_b32 s47, s22, 1'); k.e('s_add_u32 s46, s46, s47')
    k.e('s_mul_i32 s46, s46, 18432'); k.e('s_add_u32 s54, s46, 0x%x' % OB(layer)); k.e('s_add_u32 s55, s54, 18432')
    yield
    k.stamp(6)
    def setup():
        for _ in range(10): yield
        k.wait_vm('cs')
        for q in range(1, NCS): k.e('v_add_f32 v192, v192, v%d' % (192 + q))
        k.e('v_add_u32 v238, %d, v238' % CSL)
        k.lds('ds_write_b32 v238, v192'); yield
        for _ in range(60): yield
        stats_finish(k, K1_STAT); yield
        k.e('v_lshlrev_b32 v12, 4, v15'); k.e('v_add_u32 v12, s30, v12')
        k.e('v_lshlrev_b32 v13, 2, v14'); k.e('v_add_u32 v13, s30, v13'); yield
        for i in range(2):
            k.lds('ds_read_b128 %s, v12 offset:%d' % (vr(NM4 + 4 * i), 64 * i)); yield
            k.lds('ds_read_b128 %s, v12 offset:%d' % (vr(RS4 + 4 * i), 128 + 64 * i)); yield
            k.lds('ds_read_b32 v%d, v13 offset:%d' % (NM1 + i, 64 * i)); yield
            k.lds('ds_read_b32 v%d, v13 offset:%d' % (RS1 + i, 128 + 64 * i)); yield
        k.e('v_lshlrev_b32 v12, 4, v15'); k.e('v_add_u32 v12, %d, v12' % CSL); k.e('v_lshlrev_b32 v13, 2, v14'); k.e('v_add_u32 v13, %d, v13' % CSL); yield
        for tt in range(6):
            k.lds('ds_read_b32 v%d, v13 offset:%d' % (192 + tt, (3 + tt) * 64)); yield
        for tt in range(3):
            k.lds('ds_read_b128 %s, v12 offset:%d' % (vr(200 + 4 * tt), tt * 64)); yield
    def loads():
        for p_ in range(16):
            k.e('s_add_u32 s52, s50, %d' % (p_ * 3072))
            k.vmem('buffer_load_dwordx4 %s, v%d, s[8:11], s52 offen sc0 sc1' % (vr(48 + 4 * p_), GV), 'kvp')
    def check():
        k.e('v_max_u32 v8, v48, v49')
        for p_ in range(1, 32): k.e('v_max3_u32 v8, v8, v%d, v%d' % (48 + 2 * p_, 49 + 2 * p_))
        k.e('v_cmp_eq_u32 vcc, -1, v8')
    def mid():
        if WARM & 1: k.warm(WO, 8 * 18 * 4608)
        if WARM & 2 and (layer or not SIDE): k.warm(WI, 4 * 324 * 1024, (1, 4 * 324 * 1024))
        for q in range(4): k.e('v_mov_b32 v%d, 0' % (8 + q))
        k.e('s_lshl_b32 s46, s22, 11'); k.e('s_add_u32 s46, s46, %d' % K1_IMG); k.e('v_add_u32 v12, s46, v1')
        k.lds('ds_write_b128 v12, v[8:11]'); k.lds('ds_write_b128 v12, v[8:11] offset:1024')
        k.e('s_nop 7')
        for tt in range(6):
            def two(i, r):
                b = A1 + (i * 6 + tt) * 4 + r
                k.e(pk('fma', b, NM4 + 4 * i + r, ('b', 192 + tt), b))
                k.e(pk('mul', b, b, RS4 + 4 * i + r))
                if tt < 3:
                    for q in range(2):
                        n = i * 4 + r + q
                        phi_ops(k, b + q, 168 + 2 * n, 169 + 2 * n, 's[%d:%d]' % (32 + (n % 4) * 2, 33 + (n % 4) * 2) if i == 0 else ('s[%d:%d]' % (56, 57) if False else 's[%d:%d]' % (32 + (n % 4) * 2, 33 + (n % 4) * 2)))
            for i in range(2):
                k.lines.extend(rr([capture(k, lambda r=r: two(i, r)) for r in (0, 2)]))
                b = A1 + (i * 6 + tt) * 4; f = PK + tt * 4 + 2 * i
                k.e('v_cvt_pk_bf16_f32 v%d, v%d, v%d' % (f, b, b + 1)); k.e('v_cvt_pk_bf16_f32 v%d, v%d, v%d' % (f + 1, b + 2, b + 3))
        for a in range(3):
            for b in range(4):
                T = (3 * a + b) if b < 3 else 9 + a
                k.e('v_mfma_f32_16x16x32_bf16 %s, %s, %s, 0' % (vr(A1 + 4 * T), vr(PK + 4 * a), vr(PK + 12 + 4 * b) if b < 3 else vr(232)))
        for T in (0, 1, 2, 9, 3, 4, 5, 10, 6, 7, 8, 11): k.lds('ds_write_b128 v236, %s offset:%d' % (vr(A1 + 4 * T), T * 1024))
        k.wait_lg_all()
        k.e('s_barrier')
        for c in range(4):
            for w in range(4): k.lds('ds_read_b32 v%d, v%d offset:%d' % (168 + c * 4 + w, LT + c, w * 12288))
        k.wait_lg_all()
        for c in range(4):
            B0 = 168 + c * 4
            k.e('v_add_f32 v%d, v%d, v%d' % (B0, B0, B0 + 1)); k.e('v_add_f32 v%d, v%d, v%d' % (B0 + 2, B0 + 2, B0 + 3)); k.e('v_add_f32 v%d, v%d, v%d' % (8 + c, B0, B0 + 2))
        k.vmem('buffer_store_dwordx4 v[8:11], v%d, s[8:11], s51 offen sc0 sc1' % GV)
        if SIDE and layer == 0: side.loads(k, 168, 2)
        k.stamp(2)
    stats_load(k, XS(xi))
    if SIDE and layer == 0: h.hook = lambda: side.loads(k, 168, 1)
    h.run(fillers={0: (setup(), 1.0)}, mid=mid)
    k.stamp(3)
    loads()
    import k_k5
    ew = k_k5.early(k, 18, WO)
    PQF = 144
    k.e('s_nop 7')
    for tt in range(3):
        for i in range(2):
            b = A2 + (i * 3 + tt) * 4
            for r in (0, 2):
                k.e(pk('fma', b + r, ('b', NM1 + i), 200 + 4 * tt + r, b + r)); k.e(pk('mul', b + r, b + r, ('b', RS1 + i)))
            k.lines.extend(rr([capture(k, lambda r=r: phi_ops(k, b + r, 16 + 2 * r, 17 + 2 * r, 's[%d:%d]' % (32 + 2 * r, 33 + 2 * r))) for r in range(4)]))
            f = PQF + i * 8 + tt * 2
            k.e('v_cvt_pk_bf16_f32 v%d, v%d, v%d' % (f, b, b + 1)); k.e('v_cvt_pk_bf16_f32 v%d, v%d, v%d' % (f + 1, b + 2, b + 3))
            for _ in range(2): next(ew, None)
    for i in range(2):
        k.e('v_mov_b32 v%d, 0' % (PQF + i * 8 + 6)); k.e('v_mov_b32 v%d, 0' % (PQF + i * 8 + 7))
    soft_poll(k, 'P1', loads, check, 'kvp')
    k.stamp(4)
    for _ in ew: pass
    for st in (32, 16, 8, 4):
        for p_ in range(0, st, 2): k.e(pk('add', 48 + p_, 48 + p_, 48 + p_ + st))
    for c in range(4):
        k.e('v_cvt_pk_bf16_f32 v%d, v%d, v%d' % (48 + c, 48 + c, 48 + c))
        k.lds('ds_write_b16 v%d, v%d' % (IM + c, 48 + c))
    k.e('v_add_u32 v12, %d, v1' % K1_IMG); k.e('v_lshlrev_b32 v13, 4, v15'); k.e('v_add_u32 v13, %d, v13' % (K1_IMG + 6144))
    k.e('s_mov_b32 s32, 0xffff'); k.e('s_mov_b32 s33, 0')
    k.wait_lg_all()
    k.e('s_barrier')
    for f in range(4): k.lds('ds_read_b128 %s, v13 offset:%d' % (vr(40 + 4 * f), f * 64))
    for f in range(6): k.lds('ds_read_b128 %s, v12 offset:%d' % (vr(16 + 4 * f), f * 1024))
    k.wait_lg_all()
    for kq in range(2):
        for i in range(2):
            for hh in range(2):
                d = 60 + (i * 2 + hh) * 4
                k.e('v_mfma_f32_16x16x32_bf16 %s, %s, %s, %s' % (vr(d), vr(40 + (hh * 2 + kq) * 4), vr(PQF + i * 8 + kq * 4), vr(d) if kq else '0'))
    for kq in range(2):
        for i in range(2):
            for b in range(3):
                d = 80 + (i * 3 + b) * 4
                k.e('v_mfma_f32_16x16x32_bf16 %s, %s, %s, %s' % (vr(d), vr(16 + (b * 2 + kq) * 4), vr(PQF + i * 8 + kq * 4), vr(d) if kq else '0'))
    for i in range(2):
        r0 = 60 + i * 8; r1 = r0 + 4
        for rr_ in (r0, r1):
            k.e('v_add_f32 v%d, %s, v%d' % (rr_, f32(1e-6), rr_)); k.e('v_rcp_f32 v%d, v%d' % (rr_, rr_))
        k.e('v_cndmask_b32 v%d, v%d, v%d, s[32:33]' % (r0 + 1, r1, r0))
    for i in range(2):
        r0 = 60 + i * 8; r1 = r0 + 4
        for b in range(3):
            d = 80 + (i * 3 + b) * 4
            for r in range(4):
                sel = r0 if b == 0 else (r1 if b == 2 or r >= 2 else r0 + 1)
                k.e('v_mul_f32 v%d, v%d, v%d' % (d + r, d + r, sel))
            k.e('v_cvt_pk_bf16_f32 v%d, v%d, v%d' % (d, d, d + 1)); k.e('v_cvt_pk_bf16_f32 v%d, v%d, v%d' % (d + 1, d + 2, d + 3))
            k.st('buffer_store_dwordx2 %s, v%d, s[8:11], s%d offen' % (vr(d, 2), SO + b, 54 + i))
    k.sig_addr(5 * layer, 44, 16, 1, 45)
    k.dump(slot, 6)

K3_STAT = K1_STAT
def phase_k3(k, layer, slot=3, h=None):
    xi = 2 * layer + 1
    map_8x4(k)
    k.stamp(0)
    h = h or make_h4(k, 3, layer)
    h.setup()
    sw = SIDE and layer == 0
    k.dep_addr(5 * layer + 1, 44)
    if not sw and h.npre == 0: h.prefetch_weights(PRE1)
    yield
    if sw:
        side.wait(k, 16, 1)
        side.process(k, 16, 2, tick=lambda: h.prefetch_weights(1))
        h.prefetch_weights(11)
    else: h.prefetch_weights(PRE2 if h.npre == 0 else PRE3)
    k.e('s_mul_i32 s31, s45, 1152'); k.e('s_add_u32 s31, s31, 0x%x' % CSI)
    k.e('s_lshl_b32 s46, s22, 9'); k.e('v_lshlrev_b32 v12, 3, v0'); k.e('v_add_u32 v201, s46, v12'); k.e('v_min_u32 v201, 1144, v201')
    for q in range(NCI):
        if q: k.e('s_add_u32 s31, s31, 18432')
        k.vmem('buffer_load_dwordx2 %s, v201, s[8:11], s31 offen sc1' % vr(192 + 2 * q, 2), 'cs')
    NM4 = 202; RS4 = 210; NM1 = 218; RS1 = 220; SQ = 224; CC = 248; ZO = 222; PA = 223
    k.e('v_mov_b32 v%d, %s' % (CC, f32(GC1))); k.e('v_mov_b32 v%d, %s' % (CC + 1, f32(GC0))); k.e('v_mov_b32 v%d, 1.0' % (CC + 2))
    for q in range(16): k.e('v_mov_b32 v%d, 0' % (SQ + q))
    k.e('s_lshl_b32 s50, s44, 2'); k.e('s_add_u32 s50, s50, s22')
    k.e('s_lshl_b32 s51, s50, 12'); k.e('s_add_u32 s51, s51, 0x%x' % US(layer))
    k.e('s_lshl_b32 s52, s45, 8'); k.e('s_add_u32 s52, s52, s51')
    k.e('s_lshl_b32 s30, s22, 8'); k.e('s_add_u32 s30, s30, %d' % K3_STAT)
    k.e('v_lshlrev_b32 v252, 4, v15'); k.e('v_add_u32 v252, s30, v252')
    k.e('v_lshrrev_b32 v4, 1, v15'); k.e('v_lshl_add_u32 v4, v4, 4, v14'); k.e('v_lshlrev_b32 v4, 4, v4'); k.e('v_and_b32 v5, 1, v15'); k.e('v_lshl_add_u32 v%d, v5, 3, v4' % ZO)
    k.e('v_and_b32 v4, 1, v0'); k.e('v_lshlrev_b32 v4, 7, v4'); k.e('v_lshrrev_b32 v6, 1, v0'); k.e('v_lshl_add_u32 v4, v6, 2, v4'); k.e('v_add_u32 v%d, s30, v4' % PA)
    k.e('s_lshl_b32 s46, s45, 6'); k.e('s_add_u32 s46, s46, s50'); k.e('s_mul_i32 s46, s46, 9216'); k.e('s_add_u32 s34, s46, 0x%x' % Z2(layer)); k.e('s_add_u32 s35, s34, 4096'); k.e('s_add_u32 s36, s34, 8192')
    yield
    k.stamp(6)
    k.sig_addr(5 * layer + 2, 45, 1, 16, 44)
    def setup():
        for _ in range(10): yield
        k.wait_vm('cs')
        for q in range(1, NCI):
            k.e('v_add_f32 v192, v192, v%d' % (192 + 2 * q)); k.e('v_add_f32 v193, v193, v%d' % (193 + 2 * q))
        k.e('v_add_u32 v201, %d, v201' % CSL)
        k.lds('ds_write_b64 v201, v[192:193]'); yield
        for _ in range(60): yield
        stats_finish(k, K3_STAT); yield
        k.e('v_lshlrev_b32 v13, 2, v14'); k.e('v_add_u32 v13, s30, v13'); yield
        for i in range(2):
            k.lds('ds_read_b128 %s, v252 offset:%d' % (vr(NM4 + 4 * i), 64 * i)); yield
            k.lds('ds_read_b128 %s, v252 offset:%d' % (vr(RS4 + 4 * i), 128 + 64 * i)); yield
            k.lds('ds_read_b32 v%d, v13 offset:%d' % (NM1 + i, 64 * i)); yield
            k.lds('ds_read_b32 v%d, v13 offset:%d' % (RS1 + i, 128 + 64 * i)); yield
        k.e('v_lshlrev_b32 v13, 2, v14'); k.e('v_add_u32 v13, %d, v13' % CSL); yield
        for t in range(9):
            k.lds('ds_read_b32 v%d, v13 offset:%d' % (192 + t, t * 64)); yield
        if sw: yield from side.store_gen(k, 16)
    def mid():
        if WARM & 4 and (layer or not SIDE): k.warm_ws()
        k.e('s_nop 7')
        for t in range(9):
            def two(i, r):
                b = A1 + (i * 9 + t) * 4 + r
                k.e(pk('fma', b, NM4 + 4 * i + r, ('b', 192 + t), b))
                k.e(pk('mul', b, b, RS4 + 4 * i + r))
                gelu_pk(k, b, 240 + i * 4 + r, CC)
                k.e(pk('add', SQ + i * 4 + r, SQ + i * 4 + r, b)); k.e(pk('fma', SQ + 8 + i * 4 + r, b, b, SQ + 8 + i * 4 + r))
            k.lines.extend(rr([capture(k, lambda i=i, r=r: two(i, r)) for i in range(2) for r in (0, 2)]))
            h.pump(2)
        for sh in (8, 4, 2, 1):
            for q in range(16): k.e('v_add_f32_dpp v%d, v%d, v%d row_ror:%d row_mask:0xf bank_mask:0xf' % (SQ + q, SQ + q, SQ + q, sh))
        k.e('s_mov_b32 exec_lo, 0x00010001'); k.e('s_mov_b32 exec_hi, 0x00010001')
        for i in range(2):
            k.lds('ds_write_b128 v252, %s offset:%d' % (vr(SQ + 4 * i), 64 * i))
            k.lds('ds_write_b128 v252, %s offset:%d' % (vr(SQ + 8 + 4 * i), 128 + 64 * i))
        k.e('s_mov_b64 exec, -1')
        k.lds('ds_read_b32 v6, v%d' % PA, 'pub')
        k.e('v_lshlrev_b32 v5, 2, v0')
        k.wait_lg('pub')
        k.vmem('buffer_store_dword v6, v5, s[8:11], s52 offen sc0 sc1')
        if sw: side.signal(k, 12, 2)
        k.stamp(2)
    def loads():
        for q in range(4): k.vmem('buffer_load_dwordx4 %s, v1, s[8:11], s51 offen offset:%d sc0 sc1' % (vr(SQ + 4 * q), q * 1024), 'us')
    def check():
        k.e('v_max_u32 v240, v%d, v%d' % (SQ, SQ + 1))
        for q in range(1, 8): k.e('v_max3_u32 v240, v240, v%d, v%d' % (SQ + 2 * q, SQ + 2 * q + 1))
        k.e('v_cmp_eq_u32 vcc, -1, v240')
    def z2_fin():
        for _ in range(W1): yield
        loads(); yield
        for _ in range(W2): yield
        soft_poll(k, 'P3', loads, check, 'us')
        k.stamp(3)
        L = []
        for q in range(1, 4):
            for c in range(4): L.append('    v_add_f32 v%d, v%d, v%d' % (SQ + c, SQ + c, SQ + 4 * q + c))
        L += rr([capture(k, lambda c=c: rowsum_g(k, SQ + c, SQ + 4 + c)) for c in range(4)])
        def fin(c):
            S = SQ + 2 * c; Q = S + 1
            k.e('v_mul_f32 v%d, %s, v%d' % (SQ + 8 + c, f32(-1.0 / 2304), S))
            k.e('v_mul_f32 v%d, %s, v%d' % (Q, f32(1.0 / 2304), Q))
            k.e('v_mul_f32 v%d, v%d, v%d' % (S, SQ + 8 + c, SQ + 8 + c)); k.e('v_sub_f32 v%d, v%d, v%d' % (Q, Q, S)); k.e('v_max_f32 v%d, 0, v%d' % (Q, Q))
            k.e('v_add_f32 v%d, %s, v%d' % (Q, f32(1e-5), Q)); k.e('v_rsq_f32 v%d, v%d' % (SQ + 10 + c, Q))
            k.e('v_mul_f32 v%d, v%d, v%d' % (SQ + 8 + c, SQ + 8 + c, SQ + 10 + c))
        L += rr([capture(k, lambda c=c: fin(c)) for c in range(2)])
        L += ['    v_lshlrev_b32 v4, 3, v14', '    v_add_u32 v4, s30, v4']
        yield from emit_gen(k, L)
        k.e('s_mov_b64 exec, 0xffff')
        k.lds('ds_write_b64 v4, %s' % vr(SQ + 8, 2)); k.lds('ds_write_b64 v4, %s offset:128' % vr(SQ + 10, 2))
        k.e('s_mov_b64 exec, -1'); yield
        for i in range(2):
            k.lds('ds_read_b128 %s, v252 offset:%d' % (vr(NM4 + 4 * i), 64 * i), 'st2'); yield
            k.lds('ds_read_b128 %s, v252 offset:%d' % (vr(RS4 + 4 * i), 128 + 64 * i), 'st2'); yield
        for _ in range(6): yield
        k.wait_lg('st2')
        for t in range(9):
            for i in range(2):
                b = A1 + (i * 9 + t) * 4
                for r in range(4):
                    k.e('v_fma_f32 v%d, v%d, v%d, v%d' % (b + r, b + r, RS4 + 4 * i + r, NM4 + 4 * i + r)); yield
                k.e('v_cvt_pk_bf16_f32 v%d, v%d, v%d' % (b, b, b + 1)); yield
                k.e('v_cvt_pk_bf16_f32 v%d, v%d, v%d' % (b + 1, b + 2, b + 3)); yield
                k.st('buffer_store_dwordx2 %s, v%d, s[8:11], s%d offen offset:%d' % (vr(b, 2), ZO, 34 + t // 4, (t % 4) * 1024 + i * 512)); yield
                for _ in range(int(os.environ.get('W3', '0'))): yield
        k.e('v_lshlrev_b32 v13, 4, v15'); k.e('v_add_u32 v13, %d, v13' % (CSL + 576)); yield
        for t in range(9):
            k.lds('ds_read_b128 %s, v13 offset:%d' % (vr(A1 + 4 * t), t * 64)); yield
    W1 = int(os.environ.get('W1', '130')); W2 = int(os.environ.get('W2', '60'))
    CS1 = lambda t: A1 + 4 * t
    stats_load(k, XS(xi))
    h.run(fillers={0: (setup(), 1.0), 1: (z2_fin(), 1.5)}, mid=mid, skip=0)
    k.stamp(4)
    if FUSED: k.signal()
    k.e('s_lshl_b32 s46, s44, 4'); k.e('s_add_u32 s46, s46, s45'); k.e('s_lshl_b32 s46, s46, 3'); k.e('s_lshl_b32 s47, s22, 1'); k.e('s_add_u32 s46, s46, s47')
    k.e('s_mul_i32 s46, s46, 4608'); k.e('s_add_u32 s34, s46, 0x%x' % Z1(layer)); k.e('s_add_u32 s35, s34, 4096'); k.e('s_add_u32 s36, s34, 8192')
    k.e('v_lshlrev_b32 v9, 3, v0')
    k.wait_lg_all()
    k.e('s_nop 7')
    for t in range(9):
        def two(i, r):
            b = A2 + (i * 9 + t) * 4 + r
            k.e(pk('fma', b, ('b', NM1 + i), CS1(t) + r, b))
            k.e(pk('mul', b, b, ('b', RS1 + i)))
            if not DEFER: gelu_pk(k, b, 240 + i * 4 + r, CC)
        k.lines.extend(rr([capture(k, lambda i=i, r=r: two(i, r)) for i in range(2) for r in (0, 2)]))
        for i in range(2):
            b = A2 + (i * 9 + t) * 4
            k.e('v_cvt_pk_bf16_f32 v%d, v%d, v%d' % (b, b, b + 1)); k.e('v_cvt_pk_bf16_f32 v%d, v%d, v%d' % (b + 1, b + 2, b + 3))
            tt = i * 9 + t
            if FUSED:
                k.e('v_accvgpr_write_b32 a%d, v%d' % (216 + 2 * tt, b)); k.e('v_accvgpr_write_b32 a%d, v%d' % (217 + 2 * tt, b + 1))
            else: k.st('buffer_store_dwordx2 %s, v9, s[8:11], s%d offen offset:%d' % (vr(b, 2), 34 + tt // 8, (tt % 8) * 512))
    k.dump(slot, 6)
```

```python
from lib import *
AW = 144; AO = 168; AS = 188
SJ = FLG + 0x80000
STG = 131 * 1024
STG2 = 96 * 1024
def sdiv(k, sd, ss, d, maxv):
    for sh in range(8, 24):
        m = (1 << sh) // d + 1
        if all((x * m) >> sh == x // d for x in range(maxv + 1)):
            k.e('s_mul_i32 s%d, s%d, %d' % (sd, ss, m)); k.e('s_lshr_b32 s%d, s%d, %d' % (sd, sd, sh)); return
    raise ValueError
def ids(k):
    k.e('s_lshl_b32 s90, s2, 2'); k.e('s_add_u32 s90, s90, s22')
    sdiv(k, 91, 90, 18, 1023); k.e('s_mul_i32 s92, s91, 18'); k.e('s_sub_u32 s92, s90, s92')
    k.e('s_cmp_ge_u32 s90, 864'); k.e('s_cselect_b32 s93, 0x40000000, 0')
    k.e('s_sub_u32 s97, 1023, s90')
    sdiv(k, 94, 97, 72, 1023); k.e('s_mul_i32 s95, s94, 72'); k.e('s_sub_u32 s95, s97, s95')
    k.e('s_cmp_ge_u32 s97, 576'); k.e('s_cselect_b32 s96, 0x40000000, 0')
def loads(k, t0, part):
    P, R, V = t0, t0 + 1, t0 + 2
    if part == 2: return loads2(k, P, R, V)
    ids(k)
    k.srd(4, 86, 576 * 4608 * 2)
    k.e('s_mul_i32 s46, s92, %d' % (32 * 9216)); k.e('s_mul_i32 s47, s91, 192'); k.e('s_add_u32 s46, s46, s47'); k.e('s_add_u32 s46, s46, s93')
    for i in range(6):
        k.e('v_add_u32 v%d, %d, v0' % (P, 64 * i)); div_const(k, R, P, 12, 383, 47)
        k.e('v_mul_u32_u24 v%d, 12, v%d' % (V, R)); k.e('v_sub_u32 v%d, v%d, v%d' % (V, P, V)); k.e('v_lshlrev_b32 v%d, 4, v%d' % (V, V))
        k.e('v_mul_u32_u24 v%d, 9216, v%d' % (R, R)); k.e('v_add_u32 v%d, v%d, v%d' % (V, V, R))
        k.vmem('buffer_load_dwordx4 %s, v%d, s[4:7], s46 offen' % (ar(AW + 4 * i), V), 'sj')
def loads2(k, P, R, V):
    k.srd(4, 98, 2304 * 576 * 2)
    k.e('s_mul_i32 s46, s95, %d' % (32 * 1152)); k.e('s_mul_i32 s47, s94, 144'); k.e('s_add_u32 s46, s46, s47'); k.e('s_add_u32 s46, s46, s96')
    for i in range(5):
        k.e('v_add_u32 v%d, %d, v0' % (P, 64 * i)); k.e('v_min_u32 v%d, 287, v%d' % (P, P)); div_const(k, R, P, 9, 319, 47)
        k.e('v_mul_u32_u24 v%d, 9, v%d' % (V, R)); k.e('v_sub_u32 v%d, v%d, v%d' % (V, P, V)); k.e('v_lshlrev_b32 v%d, 4, v%d' % (V, V))
        k.e('v_mul_u32_u24 v%d, 1152, v%d' % (R, R)); k.e('v_add_u32 v%d, v%d, v%d' % (V, V, R))
        k.vmem('buffer_load_dwordx4 %s, v%d, s[4:7], s46 offen' % (ar(AO + 4 * i), V), 'sj')
    k.srd(4, 88, 2048 * 2048 * 2)
    k.e('v_lshrrev_b32 v%d, 5, v0' % V); k.e('v_lshlrev_b32 v%d, 12, v%d' % (V, V)); k.e('v_and_b32 v%d, 31, v0' % R); k.e('v_lshl_add_u32 v%d, v%d, 4, v%d' % (V, R, V))
    k.e('s_lshr_b32 s46, s2, 1'); k.e('s_lshl_b32 s46, s46, 16'); k.e('s_and_b32 s47, s90, 7'); k.e('s_lshl_b32 s47, s47, 9'); k.e('s_add_u32 s46, s46, s47')
    for i in range(8):
        if i: k.e('s_add_u32 s46, s46, 8192')
        k.vmem('buffer_load_dwordx4 %s, v%d, s[4:7], s46 offen' % (ar(AS + 4 * i), V), 'sj')
TICK = [lambda: None]
def process(k, T, part, tick=None):
    WA, RA, ON, V2, CV = T, T + 1, T + 2, T + 3, T + 4
    F = lambda n: T + 8 + (n % 6) * 4
    TICK[0] = tick or (lambda: None)
    k.wait_vm('sj')
    k.e('s_mul_i32 s46, s22, 6144'); k.e('s_add_u32 s46, s46, %d' % STG); k.e('v_add_u32 v%d, s46, v1' % WA)
    def traddr(pitch):
        k.e('v_lshrrev_b32 v%d, 2, v14' % RA); k.e('v_lshl_add_u32 v%d, v15, 3, v%d' % (RA, RA)); k.e('v_mul_u32_u24 v%d, %d, v%d' % (RA, pitch, RA))
        k.e('v_and_b32 v%d, 3, v14' % CV); k.e('v_lshl_add_u32 v%d, v%d, 3, v%d' % (RA, CV, RA)); k.e('v_add_u32 v%d, s46, v%d' % (RA, RA))
    if part == 1: process_wi(k, T, WA, RA, ON, V2, CV, F, traddr)
    else:
        process_ws(k, T)
        process_wout(k, T, WA, RA, ON, V2, CV, F, traddr)
def process_ws(k, T):
    W2, R2 = T + 5, T + 6
    k.e('s_mul_i32 s47, s22, 8448'); k.e('s_add_u32 s47, s47, %d' % STG2)
    k.e('v_lshrrev_b32 v%d, 5, v0' % W2); k.e('v_mul_u32_u24 v%d, 528, v%d' % (W2, W2)); k.e('v_and_b32 v%d, 31, v0' % R2); k.e('v_lshl_add_u32 v%d, v%d, 4, v%d' % (W2, R2, W2)); k.e('v_add_u32 v%d, s47, v%d' % (W2, W2))
    for i in range(8):
        k.lds('ds_write_b128 v%d, %s offset:%d' % (W2, ar(AS + 4 * i), i * 1056)); TICK[0]()
    k.e('v_mul_u32_u24 v%d, 528, v14' % R2); k.e('v_lshl_add_u32 v%d, v15, 4, v%d' % (R2, R2)); k.e('v_add_u32 v%d, s47, v%d' % (R2, R2))
    k.wait_lg_all()
    for i in range(8): k.lds('ds_read_b128 %s, v%d offset:%d' % (ar(AS + 4 * i), R2, i * 64), ('w', i))
    k.e('s_lshl_b32 s4, s90, 13'); k.e('s_add_u32 s4, s4, 0x%x' % WS); k.e('s_add_u32 s5, s4, 4096')
def process_wi(k, T, WA, RA, ON, V2, CV, F, traddr):
    for i in range(6): k.lds('ds_write_b128 v%d, %s offset:%d' % (WA, ar(AW + 4 * i), i * 1024))
    traddr(192)
    k.e('v_mov_b32 v%d, 0x3f803f80' % ON)
    k.e('v_lshlrev_b32 v%d, 2, v0' % V2); k.e('v_cmp_gt_u32 vcc, 16, v0'); k.e('v_mov_b32 v%d, 0x%x' % (CV, OOB)); k.e('v_cndmask_b32 v%d, v%d, v%d, vcc' % (V2, CV, V2))
    k.wait_lg_all()
    for j in range(6):
        for h in range(2): k.lds('ds_read_b64_tr_b16 %s, v%d offset:%d' % (vr(F(j) + 2 * h, 2), RA, h * 768 + j * 32), ('t', j))
    for j in range(6):
        k.e('s_mul_i32 s32, s91, 6'); k.e('s_add_u32 s32, s32, %d' % j)
        k.e('s_cmp_lt_u32 s32, 144'); k.e('s_cselect_b32 s33, 1, 0'); k.e('s_cselect_b32 s34, 0, 144'); k.e('s_sub_u32 s32, s32, s34')
        sdiv(k, 34, 32, 9, 300); k.e('s_mul_i32 s35, s34, 9'); k.e('s_sub_u32 s35, s32, s35')
        k.e('s_lshl_b32 s34, s34, 1'); k.e('s_add_u32 s34, s34, s33')
        k.e('s_mul_i32 s36, s34, 18'); k.e('s_add_u32 s36, s36, s92'); k.e('s_mul_i32 s36, s36, 9'); k.e('s_add_u32 s36, s36, s35'); k.e('s_lshl_b32 s36, s36, 10')
        k.e('s_add_u32 s36, s36, 0x%x' % WI); k.e('s_add_u32 s36, s36, s93')
        k.e('s_mul_i32 s37, s34, 9'); k.e('s_add_u32 s37, s37, s35'); k.e('s_lshl_b32 s37, s37, 6'); k.e('s_add_u32 s37, s37, 0x%x' % CSI); k.e('s_add_u32 s37, s37, s93')
        k.wait_lg(('t', j))
        k.st('buffer_store_dwordx4 %s, v1, s[8:11], s36 offen' % vr(F(j)), 'sjo')
        c = T + 32 + j
        k.e('v_mov_b32 v%d, 0' % c)
        for q in range(4): k.e('v_dot2_f32_bf16 v%d, v%d, v%d, v%d' % (c, F(j) + q, ON, c))
        rowsum_g(k, c, CV)
        k.vmem('buffer_atomic_add_f32 v%d, v%d, s[8:11], s37 offen' % (c, V2), 'sjo')
def process_wout(k, T, WA, RA, ON, V2, CV, F, traddr):
    for i in range(5):
        k.lds('ds_write_b128 v%d, %s offset:%d' % (WA, ar(AO + 4 * i), i * 1024)); TICK[0]()
    traddr(144)
    V2 = 251
    k.e('v_lshl_add_u32 v%d, v15, 3, v14' % V2); k.e('v_lshlrev_b32 v%d, 4, v%d' % (V2, V2)); k.e('v_add_u32 v%d, 4096, v%d' % (V2, V2))
    k.e('v_cmp_gt_u32 vcc, 8, v14'); k.e('v_mov_b32 v%d, 0x%x' % (CV, OOB)); k.e('v_cndmask_b32 v%d, v%d, v%d, vcc' % (V2, CV, V2))
    k.e('s_mul_i32 s6, s94, 72'); k.e('s_add_u32 s6, s6, s95'); k.e('s_mul_i32 s6, s6, 4608'); k.e('s_add_u32 s6, s6, 0x%x' % WOUT); k.e('s_add_u32 s6, s6, s96')
    k.wait_lg_all()
    for j in range(5):
        for h in range(2): k.lds('ds_read_b64_tr_b16 %s, v%d offset:%d' % (ar(AO + 4 * j + 2 * h, 2), RA, h * 576 + j * 32))
    k.wait_lg_all()
def store_gen(k, gap):
    for i in range(8):
        k.st('buffer_store_dwordx4 %s, v1, s[8:11], s%d offen offset:%d' % (ar(AS + 4 * i), 4 + i // 4, (i % 4) * 1024), 'sjo')
        for _ in range(gap): yield
    for j in range(5):
        if j < 4: k.st('buffer_store_dwordx4 %s, v1, s[8:11], s6 offen offset:%d' % (ar(AO + 4 * j), j * 1024), 'sjo')
        else: k.st('buffer_store_dwordx4 %s, v251, s[8:11], s6 offen' % ar(AO + 4 * j), 'sjo')
        for _ in range(gap): yield
def signal(k, T, part):
    k.wait_vm('sjo')
    k.e('s_lshl_b32 s46, s90, 2'); k.e('s_add_u32 s46, s46, 0x%x' % (SJ + 4096 * part))
    k.e('v_mov_b32 v%d, 1' % T); k.e('v_mov_b32 v%d, 0' % (T + 1))
    k.setexec(1)
    k.vmem('buffer_store_dword v%d, v%d, s[8:11], s46 offen sc0 sc1' % (T, T + 1))
    k.e('s_mov_b64 exec, -1')
def wait(k, T, part):
    name = k.newlabel('SW')
    k.e('s_mov_b32 s53, 0'); k.e('s_mov_b32 s46, 0x%x' % (SJ + 4096 * part))
    k.label(name)
    for q in range(4): k.e('buffer_load_dwordx4 %s, v1, s[8:11], s46 offen offset:%d sc0 sc1' % (vr(T + 4 * q), q * 1024))
    k.e('s_add_u32 s53, s53, 1')
    k.wait_vm_all()
    k.e('v_min_u32 v%d, v%d, v%d' % (T, T, T + 1))
    for q in range(1, 8): k.e('v_min3_u32 v%d, v%d, v%d, v%d' % (T, T, T + 2 * q, T + 2 * q + 1))
    k.e('v_cmp_eq_u32 vcc, 0, v%d' % T)
    k.e('s_cbranch_vccz %sG' % name)
    k.e('s_cmp_lt_u32 s53, 100000')
    k.e('s_cbranch_scc1 %s' % name)
    k.label(name + 'G')
```

```python
import sys
from lib import *
import k_p0, phases, k_k4, k_k5
from phases import FUSED, LDS_ALL, SIDE
HDR = open('interleave_layers__linear_attn_block__mixer_gmlp__prompt.s.ref').read().split('\n')
hdr = [l[2:] for l in HDR if l.startswith(';') and '@launch' not in l and 'Override' not in l and 'grid=ceil' not in l]
PTRS = [(6, 12, 4096), (8, 16, 2048 * 576 * 2)]
H = {}
def geth(k, kind, l):
    if not FUSED or not int(os.environ.get('EARLYH', '1')) or l > 1 or (kind == 3 and l == 0 and SIDE): return None
    if (kind, l) not in H: H[(kind, l)] = phases.make_h4(k, kind, l)
    return H[(kind, l)]
def plist():
    out = []
    for l in range(2):
        o = 5 * l
        out.append(('k1_%d' % l, lambda k, l=l, o=o: phases.phase_k1(k, l, o + 1, geth(k, 1, l))))
        out.append(('k2_%d' % l, lambda k, l=l, o=o: k_k5.phase_k5(k, 5 * l + 1, OB(l), 18, WO, 2 * l, 2 * l + 1, o + 2, geth(k, 3, l))))
        out.append(('k3_%d' % l, lambda k, l=l, o=o: phases.phase_k3(k, l, o + 3, geth(k, 3, l))))
        out.append(('k4_%d' % l, lambda k, l=l, o=o: k_k4.phase_k4(k, l, o + 4)))
        out.append(('k5_%d' % l, lambda k, l=l, o=o: k_k5.phase_k5(k, 5 * l + 4, Y(l), 72, WOUT, 2 * l + 1, 2 if l == 0 else None, o + 5, geth(k, 1, l + 1))))
    return out
parts = [k_p0.gen_p0(not SIDE)]
if not FUSED:
    for name, fn in plist():
        k = K(name + '_kernel'); k.pfx = name
        k.start(256, PTRS)
        k.code_prefetch(k.end)
        for _ in fn(k): pass
        k.finish()
        parts.append((k.text(256, agprs=256), (name + '_kernel', (256, 1, 1), (256, 1, 1), LDS_ALL)))
else:
    k = K('mega_kernel')
    k.start(256, PTRS)
    k.e('s_load_dwordx4 s[84:87], s[0:1], 24'); k.e('s_load_dwordx2 s[88:89], s[0:1], 40'); k.e('s_load_dwordx2 s[98:99], s[0:1], 56'); k.e('s_waitcnt lgkmcnt(0)')
    pl = plist()
    k.code_prefetch('PH_' + pl[1][0])
    for n, (name, fn) in enumerate(pl):
        k.pfx = name
        k.lines.append('PH_%s:;nohz' % name)
        g = fn(k)
        next(g)
        if n > 0 and not pl[n - 1][0].startswith('k3'): k.signal()
        if n > 0: k.dep_issue()
        next(g)
        if n + 1 < len(pl):
            k.code_prefetch('PH_' + pl[n + 2][0] if n + 2 < len(pl) else k.end, startlabel='PH_' + pl[n + 1][0])
        if n > 0: k.depwait()
        for _ in g: pass
    k.finish()
    parts.append((k.text(256, agprs=256), ('mega_kernel', (256, 1, 1), (256, 1, 1), LDS_ALL)))
open(sys.argv[1], 'w').write(assemble_file(hdr, [p[1] for p in parts], [p[0] for p in parts]))
```

```python
import sys
from lib import *
import k_p0, phases, k_k4, k_k5
from phases import FUSED, LDS_ALL, SIDE
HDR = open('interleave_layers__linear_attn_block__mixer_gmlp__prompt.s.ref').read().split('\n')
hdr = [l[2:] for l in HDR if l.startswith(';') and '@launch' not in l and 'Override' not in l and 'grid=ceil' not in l]
PTRS = [(6, 12, 4096), (8, 16, 2048 * 576 * 2)]
H = {}
def geth(k, kind, l):
    if not FUSED or not int(os.environ.get('EARLYH', '1')) or l > 1 or (kind == 3 and l == 0 and SIDE): return None
    if (kind, l) not in H: H[(kind, l)] = phases.make_h4(k, kind, l)
    return H[(kind, l)]
def plist():
    out = []
    for l in range(2):
        o = 5 * l
        out.append(('k1_%d' % l, lambda k, l=l, o=o: phases.phase_k1(k, l, o + 1, geth(k, 1, l))))
        out.append(('k2_%d' % l, lambda k, l=l, o=o: k_k5.phase_k5(k, 5 * l + 1, OB(l), 18, WO, 2 * l, 2 * l + 1, o + 2, geth(k, 3, l))))
        out.append(('k3_%d' % l, lambda k, l=l, o=o: phases.phase_k3(k, l, o + 3, geth(k, 3, l))))
        out.append(('k4_%d' % l, lambda k, l=l, o=o: k_k4.phase_k4(k, l, o + 4)))
        out.append(('k5_%d' % l, lambda k, l=l, o=o: k_k5.phase_k5(k, 5 * l + 4, Y(l), 72, WOUT, 2 * l + 1, 2 if l == 0 else None, o + 5, geth(k, 1, l + 1))))
    return out
parts = [k_p0.gen_p0(not SIDE)]
if not FUSED:
    for name, fn in plist():
        k = K(name + '_kernel'); k.pfx = name
        k.start(256, PTRS)
        k.code_prefetch(k.end)
        for _ in fn(k): pass
        k.finish()
        parts.append((k.text(256, agprs=256), (name + '_kernel', (256, 1, 1), (256, 1, 1), LDS_ALL)))
else:
    k = K('mega_kernel')
    k.start(256, PTRS)
    k.e('s_load_dwordx4 s[84:87], s[0:1], 24'); k.e('s_load_dwordx2 s[88:89], s[0:1], 40'); k.e('s_load_dwordx2 s[98:99], s[0:1], 56'); k.e('s_waitcnt lgkmcnt(0)')
    pl = plist()
    DIAG = int(os.environ.get('DIAG', '0'))
    if DIAG:
        k.e('s_memrealtime s[60:61]'); k.e('s_memtime s[62:63]'); k.e('s_waitcnt lgkmcnt(0)')
    k.code_prefetch('PH_' + pl[1][0])
    for n, (name, fn) in enumerate(pl):
        k.pfx = name
        k.lines.append('PH_%s:;nohz' % name)
        g = fn(k)
        next(g)
        if n > 0 and not pl[n - 1][0].startswith('k3'): k.signal()
        if n > 0: k.dep_issue()
        next(g)
        if n + 1 < len(pl):
            k.code_prefetch('PH_' + pl[n + 2][0] if n + 2 < len(pl) else k.end, startlabel='PH_' + pl[n + 1][0])
        if n > 0: k.depwait()
        for _ in g: pass
        if DIAG and n in (2, 3, 4):
            q = 64 + 4 * (n - 2)
            k.e('s_memrealtime s[%d:%d]' % (q, q + 1)); k.e('s_memtime s[%d:%d]' % (q + 2, q + 3)); k.wait_lg_all()
    if DIAG:
        k.wait_vm_all()
        k.e('s_memrealtime s[24:25]'); k.e('s_memtime s[26:27]'); k.e('s_load_dwordx2 s[28:29], s[0:1], 72'); k.e('s_waitcnt lgkmcnt(0)')
        k.e('s_cmp_lg_u32 s2, 5'); k.e('s_cbranch_scc1 %s' % k.end); k.e('s_cmp_lg_u32 s22, 0'); k.e('s_cbranch_scc1 %s' % k.end)
        pass
        k.srd(4, 28, 256)
        k.e('v_mov_b32 v4, 0')
        for i, (a, bb) in enumerate([(24, 60), (26, 62), (64, 60), (66, 62), (68, 60), (70, 62), (72, 60), (74, 62)]):
            k.e('s_sub_u32 s30, s%d, s%d' % (a, bb)); k.e('v_mov_b32 v5, s30')
            k.e('buffer_store_dword v5, v4, s[4:7], 0 offen offset:%d' % (4 * i))
    k.finish()
    parts.append((k.text(256, agprs=256), ('mega_kernel', (256, 1, 1), (256, 1, 1), LDS_ALL)))
open(sys.argv[1], 'w').write(assemble_file(hdr, [p[1] for p in parts], [p[0] for p in parts]))
```

```python
from lib import *
AW = 144; AO = 168; AS = 188
SJ = FLG + 0x80000
SNT = os.environ.get('SNT', '')
STG = 131 * 1024
STG2 = 96 * 1024
def sdiv(k, sd, ss, d, maxv):
    for sh in range(8, 24):
        m = (1 << sh) // d + 1
        if all((x * m) >> sh == x // d for x in range(maxv + 1)):
            k.e('s_mul_i32 s%d, s%d, %d' % (sd, ss, m)); k.e('s_lshr_b32 s%d, s%d, %d' % (sd, sd, sh)); return
    raise ValueError
def ids(k):
    k.e('s_lshl_b32 s90, s2, 2'); k.e('s_add_u32 s90, s90, s22')
    sdiv(k, 91, 90, 18, 1023); k.e('s_mul_i32 s92, s91, 18'); k.e('s_sub_u32 s92, s90, s92')
    k.e('s_cmp_ge_u32 s90, 864'); k.e('s_cselect_b32 s93, 0x40000000, 0')
    k.e('s_sub_u32 s97, 1023, s90')
    sdiv(k, 94, 97, 72, 1023); k.e('s_mul_i32 s95, s94, 72'); k.e('s_sub_u32 s95, s97, s95')
    k.e('s_cmp_ge_u32 s97, 576'); k.e('s_cselect_b32 s96, 0x40000000, 0')
def loads(k, t0, part):
    P, R, V = t0, t0 + 1, t0 + 2
    if part == 2: return loads2(k, P, R, V)
    ids(k)
    k.srd(4, 86, 576 * 4608 * 2)
    k.e('s_mul_i32 s46, s92, %d' % (32 * 9216)); k.e('s_mul_i32 s47, s91, 192'); k.e('s_add_u32 s46, s46, s47'); k.e('s_add_u32 s46, s46, s93')
    for i in range(6):
        k.e('v_add_u32 v%d, %d, v0' % (P, 64 * i)); div_const(k, R, P, 12, 383, 47)
        k.e('v_mul_u32_u24 v%d, 12, v%d' % (V, R)); k.e('v_sub_u32 v%d, v%d, v%d' % (V, P, V)); k.e('v_lshlrev_b32 v%d, 4, v%d' % (V, V))
        k.e('v_mul_u32_u24 v%d, 9216, v%d' % (R, R)); k.e('v_add_u32 v%d, v%d, v%d' % (V, V, R))
        k.vmem('buffer_load_dwordx4 %s, v%d, s[4:7], s46 offen%s' % (ar(AW + 4 * i), V, SNT), 'sj')
def loads2(k, P, R, V):
    k.srd(4, 98, 2304 * 576 * 2)
    k.e('s_mul_i32 s46, s95, %d' % (32 * 1152)); k.e('s_mul_i32 s47, s94, 144'); k.e('s_add_u32 s46, s46, s47'); k.e('s_add_u32 s46, s46, s96')
    for i in range(5):
        k.e('v_add_u32 v%d, %d, v0' % (P, 64 * i)); k.e('v_min_u32 v%d, 287, v%d' % (P, P)); div_const(k, R, P, 9, 319, 47)
        k.e('v_mul_u32_u24 v%d, 9, v%d' % (V, R)); k.e('v_sub_u32 v%d, v%d, v%d' % (V, P, V)); k.e('v_lshlrev_b32 v%d, 4, v%d' % (V, V))
        k.e('v_mul_u32_u24 v%d, 1152, v%d' % (R, R)); k.e('v_add_u32 v%d, v%d, v%d' % (V, V, R))
        k.vmem('buffer_load_dwordx4 %s, v%d, s[4:7], s46 offen%s' % (ar(AO + 4 * i), V, SNT), 'sj')
    k.srd(4, 88, 2048 * 2048 * 2)
    k.e('v_lshrrev_b32 v%d, 5, v0' % V); k.e('v_lshlrev_b32 v%d, 12, v%d' % (V, V)); k.e('v_and_b32 v%d, 31, v0' % R); k.e('v_lshl_add_u32 v%d, v%d, 4, v%d' % (V, R, V))
    k.e('s_lshr_b32 s46, s2, 1'); k.e('s_lshl_b32 s46, s46, 16'); k.e('s_and_b32 s47, s90, 7'); k.e('s_lshl_b32 s47, s47, 9'); k.e('s_add_u32 s46, s46, s47')
    for i in range(8):
        if i: k.e('s_add_u32 s46, s46, 8192')
        k.vmem('buffer_load_dwordx4 %s, v%d, s[4:7], s46 offen%s' % (ar(AS + 4 * i), V, SNT), 'sj')
TICK = [lambda: None]
def process(k, T, part, tick=None):
    WA, RA, ON, V2, CV = T, T + 1, T + 2, T + 3, T + 4
    F = lambda n: T + 8 + (n % 6) * 4
    TICK[0] = tick or (lambda: None)
    k.wait_vm('sj')
    k.e('s_mul_i32 s46, s22, 6144'); k.e('s_add_u32 s46, s46, %d' % STG); k.e('v_add_u32 v%d, s46, v1' % WA)
    def traddr(pitch):
        k.e('v_lshrrev_b32 v%d, 2, v14' % RA); k.e('v_lshl_add_u32 v%d, v15, 3, v%d' % (RA, RA)); k.e('v_mul_u32_u24 v%d, %d, v%d' % (RA, pitch, RA))
        k.e('v_and_b32 v%d, 3, v14' % CV); k.e('v_lshl_add_u32 v%d, v%d, 3, v%d' % (RA, CV, RA)); k.e('v_add_u32 v%d, s46, v%d' % (RA, RA))
    if part == 1: process_wi(k, T, WA, RA, ON, V2, CV, F, traddr)
    else:
        process_ws(k, T)
        process_wout(k, T, WA, RA, ON, V2, CV, F, traddr)
def process_ws(k, T):
    W2, R2 = T + 5, T + 6
    k.e('s_mul_i32 s47, s22, 8448'); k.e('s_add_u32 s47, s47, %d' % STG2)
    k.e('v_lshrrev_b32 v%d, 5, v0' % W2); k.e('v_mul_u32_u24 v%d, 528, v%d' % (W2, W2)); k.e('v_and_b32 v%d, 31, v0' % R2); k.e('v_lshl_add_u32 v%d, v%d, 4, v%d' % (W2, R2, W2)); k.e('v_add_u32 v%d, s47, v%d' % (W2, W2))
    for i in range(8):
        k.lds('ds_write_b128 v%d, %s offset:%d' % (W2, ar(AS + 4 * i), i * 1056)); TICK[0]()
    k.e('v_mul_u32_u24 v%d, 528, v14' % R2); k.e('v_lshl_add_u32 v%d, v15, 4, v%d' % (R2, R2)); k.e('v_add_u32 v%d, s47, v%d' % (R2, R2))
    k.wait_lg_all()
    for i in range(8): k.lds('ds_read_b128 %s, v%d offset:%d' % (ar(AS + 4 * i), R2, i * 64), ('w', i))
    k.e('s_lshl_b32 s4, s90, 13'); k.e('s_add_u32 s4, s4, 0x%x' % WS); k.e('s_add_u32 s5, s4, 4096')
def process_wi(k, T, WA, RA, ON, V2, CV, F, traddr):
    for i in range(6): k.lds('ds_write_b128 v%d, %s offset:%d' % (WA, ar(AW + 4 * i), i * 1024))
    traddr(192)
    k.e('v_mov_b32 v%d, 0x3f803f80' % ON)
    k.e('v_lshlrev_b32 v%d, 2, v0' % V2); k.e('v_cmp_gt_u32 vcc, 16, v0'); k.e('v_mov_b32 v%d, 0x%x' % (CV, OOB)); k.e('v_cndmask_b32 v%d, v%d, v%d, vcc' % (V2, CV, V2))
    k.wait_lg_all()
    for j in range(6):
        for h in range(2): k.lds('ds_read_b64_tr_b16 %s, v%d offset:%d' % (vr(F(j) + 2 * h, 2), RA, h * 768 + j * 32), ('t', j))
    for j in range(6):
        k.e('s_mul_i32 s32, s91, 6'); k.e('s_add_u32 s32, s32, %d' % j)
        k.e('s_cmp_lt_u32 s32, 144'); k.e('s_cselect_b32 s33, 1, 0'); k.e('s_cselect_b32 s34, 0, 144'); k.e('s_sub_u32 s32, s32, s34')
        sdiv(k, 34, 32, 9, 300); k.e('s_mul_i32 s35, s34, 9'); k.e('s_sub_u32 s35, s32, s35')
        k.e('s_lshl_b32 s34, s34, 1'); k.e('s_add_u32 s34, s34, s33')
        k.e('s_mul_i32 s36, s34, 18'); k.e('s_add_u32 s36, s36, s92'); k.e('s_mul_i32 s36, s36, 9'); k.e('s_add_u32 s36, s36, s35'); k.e('s_lshl_b32 s36, s36, 10')
        k.e('s_add_u32 s36, s36, 0x%x' % WI); k.e('s_add_u32 s36, s36, s93')
        k.e('s_mul_i32 s37, s34, 9'); k.e('s_add_u32 s37, s37, s35'); k.e('s_lshl_b32 s37, s37, 6'); k.e('s_add_u32 s37, s37, 0x%x' % CSI); k.e('s_add_u32 s37, s37, s93')
        k.wait_lg(('t', j))
        k.st('buffer_store_dwordx4 %s, v1, s[8:11], s36 offen' % vr(F(j)), 'sjo')
        c = T + 32 + j
        k.e('v_mov_b32 v%d, 0' % c)
        for q in range(4): k.e('v_dot2_f32_bf16 v%d, v%d, v%d, v%d' % (c, F(j) + q, ON, c))
        rowsum_g(k, c, CV)
        k.vmem('buffer_atomic_add_f32 v%d, v%d, s[8:11], s37 offen' % (c, V2), 'sjo')
def process_wout(k, T, WA, RA, ON, V2, CV, F, traddr):
    for i in range(5):
        k.lds('ds_write_b128 v%d, %s offset:%d' % (WA, ar(AO + 4 * i), i * 1024)); TICK[0]()
    traddr(144)
    V2 = 251
    k.e('v_lshl_add_u32 v%d, v15, 3, v14' % V2); k.e('v_lshlrev_b32 v%d, 4, v%d' % (V2, V2)); k.e('v_add_u32 v%d, 4096, v%d' % (V2, V2))
    k.e('v_cmp_gt_u32 vcc, 8, v14'); k.e('v_mov_b32 v%d, 0x%x' % (CV, OOB)); k.e('v_cndmask_b32 v%d, v%d, v%d, vcc' % (V2, CV, V2))
    k.e('s_mul_i32 s6, s94, 72'); k.e('s_add_u32 s6, s6, s95'); k.e('s_mul_i32 s6, s6, 4608'); k.e('s_add_u32 s6, s6, 0x%x' % WOUT); k.e('s_add_u32 s6, s6, s96')
    k.wait_lg_all()
    for j in range(5):
        for h in range(2): k.lds('ds_read_b64_tr_b16 %s, v%d offset:%d' % (ar(AO + 4 * j + 2 * h, 2), RA, h * 576 + j * 32))
    k.wait_lg_all()
def store_gen(k, gap):
    for i in range(8):
        k.st('buffer_store_dwordx4 %s, v1, s[8:11], s%d offen offset:%d' % (ar(AS + 4 * i), 4 + i // 4, (i % 4) * 1024), 'sjo')
        for _ in range(gap): yield
    for j in range(5):
        if j < 4: k.st('buffer_store_dwordx4 %s, v1, s[8:11], s6 offen offset:%d' % (ar(AO + 4 * j), j * 1024), 'sjo')
        else: k.st('buffer_store_dwordx4 %s, v251, s[8:11], s6 offen' % ar(AO + 4 * j), 'sjo')
        for _ in range(gap): yield
def signal(k, T, part):
    k.wait_vm('sjo')
    k.e('s_lshl_b32 s46, s90, 2'); k.e('s_add_u32 s46, s46, 0x%x' % (SJ + 4096 * part))
    k.e('v_mov_b32 v%d, 1' % T); k.e('v_mov_b32 v%d, 0' % (T + 1))
    k.setexec(1)
    k.vmem('buffer_store_dword v%d, v%d, s[8:11], s46 offen sc0 sc1' % (T, T + 1))
    k.e('s_mov_b64 exec, -1')
def wait(k, T, part):
    name = k.newlabel('SW')
    k.e('s_mov_b32 s53, 0'); k.e('s_mov_b32 s46, 0x%x' % (SJ + 4096 * part))
    k.label(name)
    for q in range(4): k.e('buffer_load_dwordx4 %s, v1, s[8:11], s46 offen offset:%d sc0 sc1' % (vr(T + 4 * q), q * 1024))
    k.e('s_add_u32 s53, s53, 1')
    k.wait_vm_all()
    k.e('v_min_u32 v%d, v%d, v%d' % (T, T, T + 1))
    for q in range(1, 8): k.e('v_min3_u32 v%d, v%d, v%d, v%d' % (T, T, T + 2 * q, T + 2 * q + 1))
    k.e('v_cmp_eq_u32 vcc, 0, v%d' % T)
    k.e('s_cbranch_vccz %sG' % name)
    k.e('s_cmp_lt_u32 s53, 100000')
    k.e('s_cbranch_scc1 %s' % name)
    k.label(name + 'G')
```

```python
from lib import *
from phases import FUSED, DEFER, SIDE, gelu_ops, GC1, pk
import side, k_k5

K4_LDS = 2 * 73728
def phase_k4(k, layer, slot=4):
    map_8x4(k)
    NS = 16; T = 3
    for q in range(1, 4): k.e('v_add_u32 v%d, %d, v1' % (1 + q, 4096 * q))
    for i in range(8):
        k.e('s_lshl_b32 s46, s22, 1'); k.e('s_add_u32 s46, s46, %d' % i); k.e('s_and_b32 s46, s46, 7')
        k.e('s_lshl_b32 s47, s44, 3'); k.e('s_add_u32 s46, s46, s47'); k.e('s_lshl_b32 s46, s46, 16')
        k.e('s_lshl_b32 s47, s22, 14'); k.e('s_add_u32 s46, s46, s47'); k.e('s_add_u32 s%d, s46, 0x%x' % (24 + i, WS))
    k.e('s_lshl_b32 s46, s45, 6'); k.e('s_lshl_b32 s47, s22, 4'); k.e('s_add_u32 s46, s46, s47'); k.e('s_mul_i32 s32, s46, 9216'); k.e('s_add_u32 s32, s32, 0x%x' % Z2(layer))
    k.stamp(0)
    ACC0 = 184
    AF = 16
    BF = 64
    TMP = 172
    def acc(i, j):
        if i < 2: return vr(ACC0 + (i * 9 + j) * 4)
        return ar(((i - 2) * 9 + j) * 4)
    B = lambda n, j: vr(BF + (n % 3) * 36 + 4 * j)
    aslot = {}
    def ldA(i, n, slot):
        aslot[(i, n)] = slot
        k.vmem('buffer_load_dwordx4 %s, v%d, s[8:11], s%d offen offset:%d%s' % (vr(AF + 4 * slot), 1 + n // 4, 24 + i, (n % 4) * 1024, os.environ.get('K4A', ' sc1')), ('A', i, n))
    A = lambda i, n: vr(AF + 4 * aslot[(i, n)])
    def ldB(j, n):
        if j % 4 == 0: k.e('s_add_u32 s33, s32, %d' % (n * 9216 + j * 1024))
        k.vmem('buffer_load_dwordx4 %s, v1, s[8:11], s33 offen offset:%d%s' % (B(n, j), (j % 4) * 1024, os.environ.get('K4B', ' sc1')), ('B', j, n))
    def mfma(i, j, n):
        k.wait_vm(('A', i, n)); k.wait_vm(('B', j, n))
        k.e('v_mfma_f32_16x16x32_bf16 %s, %s, %s, %s' % (acc(i, j), B(n, j), A(i, n), acc(i, j) if n else '0'))
    if SIDE and layer == 0: side.wait(k, 64, 2)
    k.dep_addr(5 * layer + 2, 45)
    yield
    for i in range(0, 8): ldA(i, 0, i)
    for i in range(0, 4): ldA(i, 1, 8 + i)
    k.e('v_lshlrev_b32 v12, 1, v14'); k.e('s_lshl_b32 s46, s44, 8'); k.e('s_lshl_b32 s47, s22, 6'); k.e('s_add_u32 s46, s46, s47')
    for i in range(2): k.vmem('buffer_load_ushort v%d, v12, s[12:15], s46 offen offset:%d' % (10 + i, 32 * i), 'bias')
    for b in range(1, 4):
        k.e('s_add_u32 s46, s22, %d' % b); k.e('s_and_b32 s46, s46, 3'); k.e('s_mul_i32 s46, s46, 18432')
        k.e('s_add_u32 s46, s46, %d' % (73728 if b == 2 else 0))
        k.e('v_add_u32 v%d, s46, v1' % (4 + b))
    k.e('s_mul_i32 s46, s22, 18432'); k.e('v_add_u32 v8, s46, v1'); k.e('v_add_u32 v9, 73728, v8')
    yield
    k.stamp(6)
    for j in range(9): ldB(j, 0)
    NM = NS - T
    def z1_gelu():
        k.e('v_mov_b32 v13, %s' % f32(GC1)); yield
        for q0 in range(0, 36, 2):
            def one(c):
                a = 216 + q0 + c; t = TMP + 6 * c
                k.e('v_accvgpr_read_b32 v%d, a%d' % (t + 4, a))
                k.e('v_lshlrev_b32 v%d, 16, v%d' % (t, t + 4)); k.e('v_and_b32 v%d, 0xffff0000, v%d' % (t + 1, t + 4))
                L = rr([capture(k, lambda e=e: gelu_ops(k, t + e, t + 2 + e, 13)) for e in range(2)])
                k.lines.extend(L)
                k.e('v_cvt_pk_bf16_f32 v%d, v%d, v%d' % (t + 4, t, t + 1))
                k.e('v_accvgpr_write_b32 a%d, v%d' % (a, t + 4))
            for l in rr([capture(k, lambda c=c: one(c)) for c in range(2)]):
                k.lines.append(l); yield
    zg = z1_gelu() if DEFER else iter(())
    forder = [(i, n) for b in (1, 2, 3, 0) for i in (2 * b, 2 * b + 1) for n in range(NM, NS)]
    rest = (4, 5, 6, 7, 0, 1)
    seq = [(i, n) for n in range(NM - 1) for i in range(8)] + [(i, NM - 1) for i in (2, 3) + rest] + forder
    nmain = len(seq) - len(forder)
    qn = [12]
    def nextload(slot):
        if qn[0] < len(seq):
            ldA(*seq[qn[0]], slot); qn[0] += 1
    for j in range(9): ldB(j, 1)
    for n in range(NM - 1):
        for i in range(8):
            for j in range(9):
                mfma(i, j, n)
                next(zg, None)
                if i < 5 and j in (2, 6) and i * 2 + j // 4 < 9: ldB(i * 2 + j // 4, n + 2)
            nextload(aslot[(i, n)])
    n = NM - 1
    c = 0
    for i in (2, 3):
        for j in range(9):
            mfma(i, j, n); next(zg, None)
            if c % 2 == 0: ldB(c // 2, n + 2)
            c += 1
        nextload(aslot[(i, n)])
    for j in range(9):
        for i in rest:
            mfma(i, j, n); next(zg, None)
        ldB(j, NS - 1)
    for i in rest: nextload(aslot[(i, n)])
    assert qn[0] == nmain + 12
    for _ in zg: pass
    nextA = 12
    k.stamp(1)
    k.e('s_lshl_b32 s46, s44, 4'); k.e('s_add_u32 s46, s46, s45'); k.e('s_lshl_b32 s46, s46, 3'); k.e('s_lshl_b32 s47, s22, 1'); k.e('s_add_u32 s46, s46, s47')
    k.e('s_mul_i32 s34, s46, 4608'); k.e('s_add_u32 s34, s34, 0x%x' % Z1(layer))
    k.e('v_lshlrev_b32 v13, 3, v0')
    def phase(b, side, pre_tile=None):
        nonlocal nextA
        ms = [(i, n, j) for i in (2 * b, 2 * b + 1) for n in range(NM, NS) for j in range(9)]
        if pre_tile: ms = [(i, n, j) for i in (2 * b, 2 * b + 1) for j in range(9) for n in range(NM, NS)]
        tot = len(ms); si = 0
        done = {}
        for c, (i, n, j) in enumerate(ms):
            if pre_tile and n == NM: pre_tile(i, j)
            mfma(i, j, n)
            done[(i, n)] = done.get((i, n), 0) + 1
            if done[(i, n)] == 9 and nextA < len(forder):
                ldA(*forder[nextA], aslot[(i, n)]); nextA += 1
            while si < len(side) and si * tot <= c * len(side):
                side[si](); si += 1
        while si < len(side): side[si](); si += 1
    def writes(b):
        return [(lambda t=t: k.lds('ds_write_b128 v%d, %s offset:%d' % (4 + b, acc(2 * b + t // 9, t % 9), t * 1024))) for t in range(18)]
    def readadd(vaddr):
        ops = []
        for t in range(18):
            tm = TMP + (t % 3) * 4
            ops.append(lambda t=t, tm=tm: k.lds('ds_read_b128 %s, v%d offset:%d' % (vr(tm), vaddr, t * 1024), ('R', t)))
            if t >= 2:
                def add(t=t - 2):
                    tm = TMP + (t % 3) * 4
                    k.wait_lg(('R', t))
                    for q in range(4): k.e('v_add_f32 v%d, v%d, v%d' % (ACC0 + 4 * t + q, ACC0 + 4 * t + q, tm + q))
                ops.append(add)
        for t in (16, 17):
            def add(t=t):
                tm = TMP + (t % 3) * 4
                k.wait_lg(('R', t))
                for q in range(4): k.e('v_add_f32 v%d, v%d, v%d' % (ACC0 + 4 * t + q, ACC0 + 4 * t + q, tm + q))
            ops.append(add)
        return ops
    def merge(a, b):
        out = []; n = max(len(a), len(b))
        ia = ib = 0
        for c in range(len(a) + len(b)):
            if ib >= len(b) or (ia < len(a) and ia * len(b) <= ib * len(a)): out.append(a[ia]); ia += 1
            else: out.append(b[ib]); ib += 1
        return out
    k.e('v_lshlrev_b32 v10, 16, v10'); k.e('v_lshlrev_b32 v11, 16, v11')
    phase(1, [(lambda r=r: k.e('v_add_f32 v%d, v%d, v%d' % (ACC0 + r, ACC0 + r, 10 + r // 36))) for r in range(72)])
    phase(2, writes(1))
    k.wait_lg_all(); k.e('s_barrier')
    if WARM & 8: k.warm(WOUT, 8 * 72 * 4608, vt=12)
    ew = k_k5.early(k, 72, WOUT)
    ewf = lambda cnt: [(lambda: next(ew, None)) for _ in range(cnt)]
    phase(3, merge(merge(writes(2), readadd(8)), ewf(18)))
    k.wait_lg_all(); k.e('s_barrier')
    z1ld = [(lambda t=t: (k.e('s_add_u32 s35, s34, %d' % ((t // 8) * 4096)), k.vmem('buffer_load_dwordx2 a[%d:%d], v13, s[8:11], s35 offen offset:%d sc1' % (2 * t, 2 * t + 1, (t % 8) * 512), 'z1'))) for t in range(18)]
    assert FUSED
    k.e('s_mul_i32 s46, s45, 144'); k.e('v_lshlrev_b32 v13, 2, v15'); k.e('v_add_u32 v13, s46, v13')
    fm_store_voff(k, 12, 13, 14, 10)
    k.e('s_lshl_b32 s46, s44, 3'); k.e('s_lshl_b32 s47, s22, 1'); k.e('s_add_u32 s46, s46, s47'); k.e('s_mul_i32 s46, s46, %d' % (72 * 1024)); k.e('s_add_u32 s36, s46, 0x%x' % Y(layer))
    k.e('s_add_u32 s37, s36, 4096'); k.e('s_add_u32 s38, s36, %d' % (72 * 1024)); k.e('s_add_u32 s39, s38, 4096')
    own = {aslot[(i, n)] for i in (0, 1) for n in range(NM, NS)}
    free = [AF + 4 * q for q in range(12) if q not in own]
    def rd1(t): k.lds('ds_read_b128 %s, v9 offset:%d' % (vr(TMP + (t % 3) * 4), t * 1024), ('R', t))
    def add1(t):
        k.wait_lg(('R', t)); tm = TMP + (t % 3) * 4
        for q in range(4): k.e('v_add_f32 v%d, v%d, v%d' % (ACC0 + 4 * t + q, ACC0 + 4 * t + q, tm + q))
    def store(t, b):
        i, j = divmod(t, 9)
        k.st('buffer_store_dwordx2 %s, v12, s[8:11], s%d offen offset:%d' % (vr(b, 2), 36 + 2 * i + j // 8, (j % 8) * 512))
    rd1(0); rd1(1)
    w3 = writes(3)
    for j in range(9):
        t = j
        rd1(t + 2); add1(t)
        for n in range(NM, NS):
            mfma(0, j, n)
            if n > NM: w3.pop(0)(); next(ew, None)
    k.wait_lg_all(); k.e('s_barrier')
    k.stamp(2)
    def epi_gen():
        R3 = lambda t: free[t % 2]
        Z = free[2]
        k.lds('ds_read_b128 %s, v8 offset:0' % vr(R3(0)), ('Q', 0)); yield
        for t in range(9):
            b = ACC0 + 4 * t
            if t + 1 < 9:
                k.lds('ds_read_b128 %s, v8 offset:%d' % (vr(R3(t + 1)), (t + 1) * 1024), ('Q', t + 1)); yield
            k.e('v_accvgpr_read_b32 v10, a%d' % (216 + 2 * t)); yield
            k.e('v_accvgpr_read_b32 v11, a%d' % (217 + 2 * t)); yield
            for r in range(4):
                if r % 2 == 0: k.e('v_lshlrev_b32 v%d, 16, v%d' % (Z + r, 10 + r // 2))
                else: k.e('v_and_b32 v%d, 0xffff0000, v%d' % (Z + r, 10 + r // 2))
                yield
            k.wait_lg(('Q', t))
            for r in range(4):
                k.e('v_add_f32 v%d, v%d, v%d' % (b + r, b + r, R3(t) + r)); yield
            for r in range(4):
                k.e('v_mul_f32 v%d, v%d, v%d' % (b + r, b + r, Z + r)); yield
            k.e('v_cvt_pk_bf16_f32 v%d, v%d, v%d' % (b, b, b + 1)); yield
            k.e('v_cvt_pk_bf16_f32 v%d, v%d, v%d' % (b + 1, b + 2, b + 3)); yield
            store(t, b); yield
    eg = epi_gen()
    S3 = lambda t: free[3 + t % 3]
    def rd3(t): k.lds('ds_read_b128 %s, v8 offset:%d' % (vr(S3(t)), t * 1024), ('S', t))
    rd3(9); rd3(10)
    for j in range(9):
        t = 9 + j
        if t + 2 < 18: rd1(t + 2); rd3(t + 2)
        add1(t)
        k.wait_lg(('S', t))
        for q in range(4): k.e('v_add_f32 v%d, v%d, v%d' % (ACC0 + 4 * t + q, ACC0 + 4 * t + q, S3(t) + q))
        for n in range(NM, NS):
            mfma(1, j, n)
            if n == NM: next(ew, None)
            for _ in range(6): next(eg, None)
    for _ in eg: pass
    for _ in ew: pass
    k.e('s_nop 7')
    for t in range(9, 18):
        b = ACC0 + 4 * t; z = 100 + (t % 2) * 6
        k.e('v_accvgpr_read_b32 v%d, a%d' % (z + 4, 216 + 2 * t)); k.e('v_accvgpr_read_b32 v%d, a%d' % (z + 5, 217 + 2 * t))
        for r in range(4):
            if r % 2 == 0: k.e('v_lshlrev_b32 v%d, 16, v%d' % (z + r, z + 4 + r // 2))
            else: k.e('v_and_b32 v%d, 0xffff0000, v%d' % (z + r, z + 4 + r // 2))
        for r in (0, 2): k.e(pk('mul', b + r, b + r, z + r))
        k.e('v_cvt_pk_bf16_f32 v%d, v%d, v%d' % (b, b, b + 1)); k.e('v_cvt_pk_bf16_f32 v%d, v%d, v%d' % (b + 1, b + 2, b + 3))
        store(t, b)
    k.stamp(3)
    k.sig_addr(5 * layer + 3, 44, 16, 1, 45)
    k.dump(slot, 5)
```

```python
import os, struct
from asmlib import K as K0, assemble_file
import hz
from layout import *
PROF = int(os.environ.get('PROF', '0'))
WARM = int(os.environ.get('WARM', '0'))
ATOM = int(os.environ.get('ATOM', '3')); PDELAY = int(os.environ.get('PDELAY', '0'))
DPA = 198; DPD = 199
FLSH = int(os.environ.get('FLSH', '4'))
POLL1 = int(os.environ.get('POLL1', '1'))
PSLEEP = int(os.environ.get('PSLEEP', '0'))

class K(K0):
    pfx = ''
    def L(self, s): return '%s_%s' % (self.pfx, s)
    def st(self, s, tag='out'):
        K0.vmem(self, s + ' sc1', tag)
    def stamp(self, n):
        if not PROF: return
        self.e('%s s[%d:%d]' % ('s_memtime' if PROF == 2 else 's_memrealtime', 60 + 2 * n, 61 + 2 * n))
        self.wait_lg_all()
    def dump(self, slot, nst):
        if not PROF: return
        self.e('s_mov_b64 exec, -1')
        self.wait_vm_all()
        self.stamp(nst - 1)
        self.e('s_lshl_b32 s46, s2, 3'); self.e('s_add_u32 s46, s46, s22'); self.e('s_lshl_b32 s46, s46, 6')
        self.e('s_add_u32 s46, s46, 0x%x' % (PROF_BASE + slot * 0x40000))
        self.e('v_mov_b32 v4, 0')
        for q in range(nst):
            self.e('v_mov_b32 v5, s%d' % (60 + 2 * q))
            self.e('buffer_store_dword v5, v4, s[8:11], s46 offen offset:%d' % (4 * q))
        self.e('v_mov_b32 v5, s72')
        self.e('buffer_store_dword v5, v4, s[8:11], s46 offen offset:48')
        self.e('v_mov_b32 v5, s74')
        self.e('buffer_store_dword v5, v4, s[8:11], s46 offen offset:52')
        self.e('v_mov_b32 v5, s76')
        self.e('buffer_store_dword v5, v4, s[8:11], s46 offen offset:56')
        self.wait_vm_all()
    def text(self, vgprs, agprs=0, sgprs=102, wgy=False):
        self.lines = hz.fix(self.lines)
        return K0.text(self, vgprs, agprs, sgprs, wgy)
    def srd(self, d, lo, size):
        self.e('s_mov_b32 s%d, s%d' % (d, lo))
        self.e('s_and_b32 s%d, s%d, 0xffff' % (d + 1, lo + 1))
        self.e('s_mov_b32 s%d, 0x%x' % (d + 2, size))
        self.e('s_mov_b32 s%d, 0x00020000' % (d + 3))
    def start(self, nwg, ptrs):
        self.end = 'END_' + self.name
        if PROF: self.e('s_memrealtime s[76:77]')
        self.e('s_cmp_ge_u32 s2, %d' % nwg)
        self.e('s_cbranch_scc0 GO_%s' % self.name)
        self.e('s_endpgm')
        self.lines.append('GO_%s:;nohz' % self.name)
        allp = [(10, 8, WS_BYTES)] + list(ptrs)
        for i, (slot, d, size) in enumerate(allp):
            self.e('s_load_dwordx2 s[%d:%d], s[0:1], %d' % (80 + 2 * i, 81 + 2 * i, slot * 8))
        self.e('v_lshrrev_b32 v1, 6, v0')
        self.e('v_readfirstlane_b32 s22, v1')
        self.e('v_and_b32 v0, 63, v0')
        self.e('v_lshlrev_b32 v1, 4, v0'); self.e('v_and_b32 v14, 15, v0'); self.e('v_lshrrev_b32 v15, 4, v0')
        self.e('s_and_b32 s3, s2, 7'); self.e('s_lshr_b32 s23, s2, 3')
        self.e('s_waitcnt lgkmcnt(0)')
        for i, (slot, d, size) in enumerate(allp):
            self.srd(d, 80 + 2 * i, size)
    def code_prefetch(self, endlabel, nw=4, startlabel=None):
        here = self.newlabel('PC')
        self.e('s_getpc_b64 s[58:59]')
        self.lines.append(here + ':;nohz')
        self.e('s_mul_i32 s46, s23, %d' % nw); self.e('s_add_u32 s46, s46, s22'); self.e('s_lshl_b32 s46, s46, 10')
        self.e('v_add_u32 v13, s46, v1')
        if startlabel: self.e('v_add_u32 v13, %s-%s, v13' % (startlabel, here))
        self.e('v_min_u32 v13, %s-%s-16, v13' % (endlabel, here))
        self.e('v_and_b32 v13, -4, v13')
        self.vmem('global_load_dwordx4 a[252:255], v13, s[58:59]')
    def warm(self, base, per_xcd_bytes, sel=None, vt=13):
        if not WARM: return
        lines = per_xcd_bytes // 128
        per = (lines + 127) // 128
        self.e('s_lshl_b32 s46, s23, 2'); self.e('s_add_u32 s46, s46, s22'); self.e('s_mul_i32 s46, s46, %d' % (per * 128))
        self.e('v_lshlrev_b32 v%d, 7, v0' % vt); self.e('v_add_u32 v%d, s46, v%d' % (vt, vt))
        if sel:
            self.e('s_lshr_b32 s47, s3, %d' % sel[0]); self.e('s_mul_i32 s47, s47, %d' % sel[1]); self.e('s_add_u32 s47, s47, 0x%x' % base)
        else: self.e('s_mov_b32 s47, 0x%x' % base)
        for i in range(0, per, 64):
            n = min(64, per - i)
            if i: self.e('s_add_u32 s47, s47, 8192')
            if n < 64: self.setexec(n)
            self.vmem('buffer_load_dword a252, v%d, s[8:11], s47 offen' % vt)
            if n < 64: self.e('s_mov_b64 exec, -1')
    def warm_ws(self, vt=13):
        if not WARM: return
        self.e('v_lshlrev_b32 v%d, 7, v0' % vt)
        self.e('s_and_b32 s47, s3, 1'); self.e('s_lshl_b32 s47, s47, 22'); self.e('s_lshl_b32 s46, s23, 17'); self.e('s_add_u32 s47, s47, s46')
        self.e('s_lshl_b32 s46, s22, 14'); self.e('s_add_u32 s47, s47, s46'); self.e('s_add_u32 s47, s47, 0x%x' % WS)
        self.vmem('buffer_load_dword a252, v%d, s[8:11], s47 offen' % vt)
        self.e('s_add_u32 s47, s47, 65536')
        self.vmem('buffer_load_dword a252, v%d, s[8:11], s47 offen' % vt)
    def sig_addr(self, inst, sbase, mul_base, lane_stride, sslot):
        self.e('s_lshl_b32 s78, s%d, 11' % sbase); self.e('s_lshl_b32 s47, s%d, 4' % sslot); self.e('s_add_u32 s78, s78, s47')
        self.e('s_lshl_b32 s47, s22, 2'); self.e('s_add_u32 s78, s78, s47'); self.e('s_add_u32 s78, s78, 0x%x' % (FLG + inst * 32768))
    def dep_addr(self, inst, sgrp):
        self.e('s_lshl_b32 s79, s%d, 11' % sgrp); self.e('s_add_u32 s79, s79, 0x%x' % (FLG + max(inst, 0) * 32768))
    def signal(self):
        self.e('v_mov_b32 v13, 1'); self.e('v_mov_b32 v12, 0')
        self.wait_vm('out')
        self.setexec(1)
        if ATOM & 2: self.vmem('buffer_atomic_or v13, v12, s[8:11], s78 offen sc1')
        else: self.vmem('buffer_store_dword v13, v12, s[8:11], s78 offen sc0 sc1')
        self.e('s_mov_b64 exec, -1')
    def poll_ins(self):
        if ATOM & 1:
            self.e('v_mov_b32 v%d, 0' % DPD)
            return 'buffer_atomic_or v%d, v%d, s[8:11], s79 offen sc0 sc1' % (DPD, DPA)
        return 'buffer_load_dword v%d, v%d, s[8:11], s79 offen sc0 sc1' % (DPD, DPA)
    def dep_issue(self):
        self.e('v_lshlrev_b32 v%d, 2, v0' % DPA)
        self.e('s_cmp_eq_u32 s22, 0'); self.e('s_cselect_b32 s79, s79, 0x40000000')
        if os.environ.get('EARLY', '1') == '1': self.vmem(self.poll_ins(), 'dep')
        else: self.e('v_mov_b32 v%d, 0' % DPD)
    def depwait(self):
        name = self.newlabel('DW')
        self.wait_vm('dep')
        sv = list(self.vm)
        self.e('v_cmp_eq_u32 vcc, 0, v%d' % DPD)
        self.e('s_cbranch_vccz %sG' % name)
        self.e('s_mov_b32 s53, 0')
        self.e('s_cmp_lg_u32 s22, 0'); self.e('s_cbranch_scc1 %sG' % name)
        if PDELAY:
            self.e('s_waitcnt vmcnt(0)'); self.e('s_sleep %d' % PDELAY)
        self.label(name)
        self.e(self.poll_ins())
        self.e('s_add_u32 s53, s53, 1')
        self.wait_vm_all()
        self.e('v_cmp_eq_u32 vcc, 0, v%d' % DPD)
        self.e('s_cbranch_vccz %sG' % name)
        if PSLEEP: self.e('s_sleep %d' % PSLEEP)
        self.e('s_cmp_lt_u32 s53, 100000')
        self.e('s_cbranch_scc1 %s' % name)
        self.label(name + 'G')
        self.vm = sv
        self.e('s_barrier')
    def setexec(self, lanes):
        m = (1 << lanes) - 1
        self.e('s_mov_b32 exec_lo, 0x%x' % (m & 0xffffffff)); self.e('s_mov_b32 exec_hi, 0x%x' % (m >> 32))
    def finish(self):
        self.label(self.end)

def vr(b, n=4): return 'v[%d:%d]' % (b, b + n - 1)
def ar(b, n=4): return 'a[%d:%d]' % (b, b + n - 1)
def f32(x): return '0x%08x' % struct.unpack('<I', struct.pack('<f', x))[0]

def div_const(k, vq, vx, d, maxv, stmp=41):
    for sh in range(16, 24):
        m = (1 << sh) // d + 1
        if m * maxv < (1 << 32) and m < (1 << 24) and all((x * m) >> sh == x // d for x in range(maxv + 1)):
            k.e('s_mov_b32 s%d, %d' % (stmp, m))
            k.e('v_mul_u32_u24 v%d, s%d, v%d' % (vq, stmp, vx))
            k.e('v_lshrrev_b32 v%d, %d, v%d' % (vq, sh, vq))
            return
    raise ValueError('no magic')

def map_8x4(k):
    k.e('s_and_b32 s44, s3, 1'); k.e('s_lshl_b32 s44, s44, 3'); k.e('s_and_b32 s45, s23, 7'); k.e('s_add_u32 s44, s44, s45')
    k.e('s_lshr_b32 s45, s3, 1'); k.e('s_lshl_b32 s45, s45, 2'); k.e('s_lshr_b32 s46, s23, 3'); k.e('s_add_u32 s45, s45, s46')
def map_4x8(k):
    k.e('s_lshl_b32 s44, s3, 2'); k.e('s_and_b32 s45, s23, 3'); k.e('s_add_u32 s44, s44, s45'); k.e('s_lshr_b32 s45, s23, 2')

def fm_store_voff(k, vdst, vk, vr16, tmp):
    k.e('v_lshrrev_b32 v%d, 3, v%d' % (vdst, vk))
    k.e('v_lshlrev_b32 v%d, 8, v%d' % (vdst, vdst))
    k.e('v_lshl_add_u32 v%d, v%d, 4, v%d' % (vdst, vr16, vdst))
    k.e('v_and_b32 v%d, 4, v%d' % (tmp, vk))
    k.e('v_lshl_add_u32 v%d, v%d, 1, v%d' % (vdst, tmp, vdst))

def rowsum_g(k, vv, tmp):
    k.e('v_mov_b32 v%d, v%d' % (tmp, vv)); k.e('v_permlane32_swap_b32 v%d, v%d' % (vv, tmp)); k.e('v_add_f32 v%d, v%d, v%d' % (vv, vv, tmp))
    k.e('v_mov_b32 v%d, v%d' % (tmp, vv)); k.e('v_permlane16_swap_b32 v%d, v%d' % (vv, tmp)); k.e('v_add_f32 v%d, v%d, v%d' % (vv, vv, tmp))

def capture(k, fn):
    n0 = len(k.lines); fn(); c = k.lines[n0:]; del k.lines[n0:]; return c
def rr(chunks):
    out = []
    for i in range(max(len(c) for c in chunks)):
        for c in chunks:
            if i < len(c): out.append(c[i])
    return out

def alt_sched(chains, window=8, mind=3):
    TR = ('v_exp_f32', 'v_rcp_f32', 'v_rsq_f32')
    pos = [0] * len(chains); last = [-99] * len(chains); out = []
    prev_tr = False
    while True:
        act = [i for i in range(len(chains)) if pos[i] < len(chains[i])][:window]
        act = [i for i in act if i - act[0] < 8]
        if not act: break
        ready = [i for i in act if len(out) - last[i] >= mind] or act
        want = [i for i in ready if chains[i][pos[i]].strip().startswith(TR) != prev_tr]
        i = (want or ready)[0]
        op = chains[i][pos[i]]; out.append(op); last[i] = len(out) - 1; pos[i] += 1
        prev_tr = op.strip().startswith(TR)
    return out
```

```python
import math
from lib import *
from h4 import *
LOG2E = 1.4426950408889634
GC0 = -2.0 * math.sqrt(2.0 / math.pi) * LOG2E
GC1 = GC0 * 0.044715
A1 = 48; A2 = 120
FUSED = int(os.environ.get('FUSED', '1'))
DEFER = FUSED and int(os.environ.get('DEFER', '1'))
NCS = 4; NCI = 1 if (FUSED and int(os.environ.get('SIDE', '1'))) else 4
PRE1 = int(os.environ.get('PRE1', '6')) if FUSED else 0
PRE2 = int(os.environ.get('PRE2', '18')) if FUSED else 0
PRE3 = int(os.environ.get('PRE3', '6'))
SIDE = FUSED and int(os.environ.get('SIDE', '1'))
import side

def phi_ops(k, v, t1, t2, sm):
    k.e('v_mul_f32 v%d, %s, v%d' % (t1, f32(LOG2E), v))
    k.e('v_exp_f32 v%d, v%d' % (t1, t1))
    k.e('v_add_f32 v%d, %s, v%d' % (t2, f32(1.000001), v))
    k.e('v_cmp_lt_f32 %s, 0, v%d' % (sm, v))
    k.e('v_add_f32 v%d, %s, v%d' % (t1, f32(1e-6), t1))
    k.e('v_cndmask_b32 v%d, v%d, v%d, %s' % (v, t1, t2, sm))

def phi_pk(k, v, t, PC):
    k.e(pk('mul', t, v, ('b', PC)))
    k.e(pk('add', v, v, ('b', PC + 1)))
    for q in range(2): k.e('v_min_f32 v%d, 0, v%d' % (t + q, t + q))
    for q in range(2): k.e('v_exp_f32 v%d, v%d' % (t + q, t + q))
    for q in range(2): k.e('v_max_f32 v%d, v%d, v%d' % (v + q, v + q, PC + 1))
    k.e(pk('add', v, v, t))

def gelu_ops(k, v, t, vC1):
    k.e('v_mul_f32 v%d, v%d, v%d' % (t, v, v))
    k.e('v_fmaak_f32 v%d, v%d, v%d, %s' % (t, t, vC1, f32(GC0)))
    k.e('v_mul_f32 v%d, v%d, v%d' % (t, t, v))
    k.e('v_exp_f32 v%d, v%d' % (t, t))
    k.e('v_add_f32 v%d, 1.0, v%d' % (t, t))
    k.e('v_rcp_f32 v%d, v%d' % (t, t))
    k.e('v_mul_f32 v%d, v%d, v%d' % (v, v, t))

def pk(op, d, *src, sel=None):
    ops = []; lo = []; hi = []
    for s_ in src:
        if isinstance(s_, tuple):
            r = s_[1]; ops.append(vr(r & ~1, 2)); lo.append(r & 1); hi.append(r & 1)
        elif isinstance(s_, str):
            ops.append(s_); lo.append(0); hi.append(1)
        else:
            ops.append(vr(s_, 2)); lo.append(0); hi.append(1)
    m = ''
    if any(lo): m += ' op_sel:[%s]' % ','.join(map(str, lo))
    if not all(hi): m += ' op_sel_hi:[%s]' % ','.join(map(str, hi))
    return 'v_pk_%s_f32 %s, %s%s' % (op, vr(d, 2), ', '.join(ops), m)

def gelu_pk(k, v, t, CC):
    k.e(pk('mul', t, v, v))
    k.e(pk('fma', t, t, ('b', CC), ('b', CC + 1)))
    k.e(pk('mul', t, t, v))
    k.e('v_exp_f32 v%d, v%d' % (t, t)); k.e('v_exp_f32 v%d, v%d' % (t + 1, t + 1))
    k.e(pk('add', t, t, ('b', CC + 2)))
    k.e('v_rcp_f32 v%d, v%d' % (t, t)); k.e('v_rcp_f32 v%d, v%d' % (t + 1, t + 1))
    k.e(pk('mul', v, v, t))

def emit_gen(k, lines):
    for l in lines:
        k.lines.append(l); yield

def poll_loop(k, name, loads, check):
    k.e('s_mov_b32 s53, 0')
    k.wait_vm_all()
    k.label(k.L(name))
    loads()
    k.e('s_add_u32 s53, s53, 1')
    k.wait_vm_all()
    check()
    k.e('s_cbranch_vccz %s' % k.L(name + 'G'))
    k.e('s_cmp_lt_u32 s53, 50000')
    k.e('s_cbranch_scc1 %s' % k.L(name))
    k.label(k.L(name + 'G'))

K1_C = 156
K3_C = 156
K1_PART = 8192; K1_IMG = K1_PART + 49152; K1_STAT = 156 * 1024
CSL = K1_STAT + 1024
LDS_ALL = CSL + 1152

def gen_of(k, fn):
    fn(); yield

def soft_poll(k, name, loads, check, tag):
    k.wait_vm(tag)
    check()
    k.e('s_cbranch_vccz %s' % k.L(name + 'G'))
    sv = list(k.vm)
    k.e('s_mov_b32 s53, 0')
    k.label(k.L(name))
    loads()
    k.e('s_add_u32 s53, s53, 1')
    k.wait_vm_all()
    check()
    k.e('s_cbranch_vccz %s' % k.L(name + 'G'))
    k.e('s_cmp_lt_u32 s53, 100000')
    k.e('s_cbranch_scc1 %s' % k.L(name))
    k.label(k.L(name + 'G'))
    k.vm = sv

def make_h4(k, kind, layer):
    if kind == 1:
        xi = 2 * layer
        return H4(k, XF(xi), WQ, 162, [(6, 's', A1), (3, 'f', A2)], [12, 24, 36, 36, 36, 20], K1_C, burst=int(os.environ.get('B1', '8')), pace=1 if layer == 0 else int(os.environ.get('PC1', '2')))
    xi = 2 * layer + 1
    return H4(k, XF(xi), WI, 324, [(9, 's', A1), (9, 'f', A2)], [12, 24] + [36] * 8, K3_C, burst=int(os.environ.get('B3', '8')), pace=int(os.environ.get('PC3', '3')))

def phase_k1(k, layer, slot=1, h=None):
    xi = 2 * layer
    map_8x4(k)
    k.stamp(0)
    h = h or make_h4(k, 1, layer)
    h.setup()
    k.dep_addr(5 * layer - 1, 44)
    if h.npre == 0: h.prefetch_weights(PRE1 if layer else 3)
    yield
    if layer: h.prefetch_weights(PRE2 if h.npre == 0 else PRE3)
    k.e('s_mul_i32 s31, s45, 576'); k.e('s_add_u32 s31, s31, 0x%x' % CSQ)
    k.e('s_lshl_b32 s46, s22, 8'); k.e('v_lshlrev_b32 v12, 2, v0'); k.e('v_add_u32 v238, s46, v12'); k.e('v_min_u32 v238, 572, v238')
    for q in range(NCS):
        if q: k.e('s_add_u32 s31, s31, 9216')
        k.vmem('buffer_load_dword v%d, v238, s[8:11], s31 offen' % (192 + q), 'cs')
    NM4 = 212; RS4 = 220; NM1 = 228; RS1 = 230; PK = 144
    GV = 237; LT = 248; IM = 240; SO = 244
    k.e('s_lshl_b32 s46, s22, 8')
    k.e('s_mul_i32 s50, s45, %d' % (16 * 3072)); k.e('s_add_u32 s50, s50, 0x%x' % KVP(layer))
    k.e('s_mul_i32 s51, s44, 3072'); k.e('s_add_u32 s51, s51, s50')
    k.e('v_lshlrev_b32 v4, 2, v0'); k.e('v_add_u32 v4, s46, v4')
    k.e('v_lshlrev_b32 v5, 2, v4'); k.e('v_cmp_gt_u32 vcc, 684, v4'); k.e('v_mov_b32 v6, 0x%x' % OOB); k.e('v_cndmask_b32 v%d, v6, v5, vcc' % GV)
    k.e('v_min_u32 v4, 680, v4')
    k.e('s_mov_b32 s41, 3641')
    def elem(c):
        B0 = 48 + c * 16
        u, q, dd, hh, row, d, e, T, lp = [B0 + x for x in range(9)]
        sm = 's[%d:%d]' % (32 + 2 * c, 33 + 2 * c)
        k.e('v_add_u32 v%d, %d, v4' % (u, c))
        k.e('v_mul_u32_u24 v%d, s41, v%d' % (q, u)); k.e('v_lshrrev_b32 v%d, 16, v%d' % (q, q))
        k.e('v_mul_u32_u24 v%d, 18, v%d' % (dd, q)); k.e('v_sub_u32 v%d, v%d, v%d' % (dd, u, dd))
        k.e('v_cmp_le_u32 %s, 19, v%d' % (sm, q)); k.e('v_cndmask_b32 v%d, 0, 1, %s' % (hh, sm))
        k.e('v_mul_u32_u24 v%d, 19, v%d' % (row, hh)); k.e('v_sub_u32 v%d, v%d, v%d' % (row, q, row))
        k.e('v_mad_u32_u24 v%d, v%d, 18, v%d' % (d, hh, dd))
        k.e('v_mad_u32_u24 v%d, v%d, 18, v%d' % (e, hh, row))
        k.e('v_cmp_eq_u32 %s, 18, v%d' % (sm, row))
        k.e('v_lshrrev_b32 v%d, 4, v%d' % (T, d))
        k.e('v_lshrrev_b32 v%d, 4, v%d' % (lp, e))
        k.e('v_mad_u32_u24 v%d, v%d, 3, v%d' % (lp, T, lp))
        k.e('v_add_u32 v%d, 9, v%d' % (T, T))
        k.e('v_cndmask_b32 v%d, v%d, v%d, %s' % (T, lp, T, sm))
        k.e('v_and_b32 v%d, 15, v%d' % (lp, e))
        k.e('v_lshlrev_b32 v%d, 10, v%d' % (T, T)); k.e('v_lshl_add_u32 v%d, v%d, 4, v%d' % (T, lp, T))
        k.e('v_bfe_u32 v%d, v%d, 2, 2' % (q, d)); k.e('v_lshl_add_u32 v%d, v%d, 8, v%d' % (T, q, T))
        k.e('v_and_b32 v%d, 3, v%d' % (dd, d)); k.e('v_lshl_add_u32 v%d, v%d, 2, v%d' % (T, dd, T))
        k.e('v_add_u32 v%d, %d, v%d' % (LT + c, K1_PART, T))
        k.e('v_bfe_u32 v%d, v%d, 4, 1' % (row, d)); k.e('v_lshl_add_u32 v%d, v%d, 2, v%d' % (dd, row, dd)); k.e('v_lshlrev_b32 v%d, 1, v%d' % (dd, dd))
        k.e('v_lshrrev_b32 v%d, 5, v%d' % (row, d))
        k.e('v_lshrrev_b32 v%d, 4, v%d' % (e, e)); k.e('v_lshl_add_u32 v%d, v%d, 1, v%d' % (e, e, row)); k.e('v_lshlrev_b32 v%d, 10, v%d' % (e, e))
        k.e('v_lshl_add_u32 v%d, v%d, 8, v%d' % (e, q, e)); k.e('v_lshl_add_u32 v%d, v%d, 4, v%d' % (e, lp, e))
        k.e('v_lshl_add_u32 v%d, v%d, 1, v%d' % (hh, hh, row)); k.e('v_lshlrev_b32 v%d, 6, v%d' % (hh, hh)); k.e('v_lshl_add_u32 v%d, v%d, 4, v%d' % (hh, q, hh)); k.e('v_add_u32 v%d, 6144, v%d' % (hh, hh))
        k.e('v_cndmask_b32 v%d, v%d, v%d, %s' % (e, e, hh, sm)); k.e('v_add_u32 v%d, v%d, v%d' % (e, e, dd))
        k.e('v_mov_b32 v%d, 7168' % lp); k.e('v_cndmask_b32 v%d, v%d, v%d, vcc' % (e, lp, e))
        k.e('v_add_u32 v%d, %d, v%d' % (IM + c, K1_IMG, e))
    k.lines.extend(rr([capture(k, lambda c=c: elem(c)) for c in range(4)]))
    k.e('s_mul_i32 s46, s45, 36'); k.e('v_lshlrev_b32 v13, 2, v15'); k.e('v_add_u32 v13, s46, v13')
    for tt in range(3):
        if tt: k.e('v_add_u32 v13, 16, v13')
        fm_store_voff(k, SO + tt, 13, 14, 8)
    k.e('v_cmp_eq_u32 vcc, 0, v15'); k.e('v_mov_b32 v8, 0x%x' % OOB); k.e('v_cndmask_b32 v%d, v8, v%d, vcc' % (SO + 2, SO + 2))
    for q in range(4): k.e('v_mov_b32 v%d, 0x3f803f80' % (232 + q))
    PC = 184
    k.e('v_mov_b32 v%d, %s' % (PC, f32(LOG2E))); k.e('v_mov_b32 v%d, %s' % (PC + 1, f32(1e-6)))
    k.e('s_mul_i32 s46, s22, 12288'); k.e('s_add_u32 s46, s46, %d' % K1_PART); k.e('v_add_u32 v236, s46, v1')
    k.e('s_lshl_b32 s46, s44, 3'); k.e('s_lshl_b32 s47, s22, 1'); k.e('s_add_u32 s46, s46, s47')
    k.e('s_mul_i32 s46, s46, 18432'); k.e('s_add_u32 s54, s46, 0x%x' % OB(layer)); k.e('s_add_u32 s55, s54, 18432')
    yield
    k.stamp(6)
    def setup():
        for _ in range(10): yield
        k.wait_vm('cs')
        for q in range(1, NCS): k.e('v_add_f32 v192, v192, v%d' % (192 + q))
        k.e('v_add_u32 v238, %d, v238' % CSL)
        k.lds('ds_write_b32 v238, v192'); yield
        for _ in range(60): yield
        stats_finish(k, K1_STAT); yield
        k.e('v_lshlrev_b32 v12, 4, v15'); k.e('v_add_u32 v12, s30, v12')
        k.e('v_lshlrev_b32 v13, 2, v14'); k.e('v_add_u32 v13, s30, v13'); yield
        for i in range(2):
            k.lds('ds_read_b128 %s, v12 offset:%d' % (vr(NM4 + 4 * i), 64 * i)); yield
            k.lds('ds_read_b128 %s, v12 offset:%d' % (vr(RS4 + 4 * i), 128 + 64 * i)); yield
            k.lds('ds_read_b32 v%d, v13 offset:%d' % (NM1 + i, 64 * i)); yield
            k.lds('ds_read_b32 v%d, v13 offset:%d' % (RS1 + i, 128 + 64 * i)); yield
        k.e('v_lshlrev_b32 v12, 4, v15'); k.e('v_add_u32 v12, %d, v12' % CSL); k.e('v_lshlrev_b32 v13, 2, v14'); k.e('v_add_u32 v13, %d, v13' % CSL); yield
        for tt in range(6):
            k.lds('ds_read_b32 v%d, v13 offset:%d' % (192 + tt, (3 + tt) * 64)); yield
        for tt in range(3):
            k.lds('ds_read_b128 %s, v12 offset:%d' % (vr(200 + 4 * tt), tt * 64)); yield
    def loads():
        for p_ in range(16):
            k.e('s_add_u32 s52, s50, %d' % (p_ * 3072))
            k.vmem('buffer_load_dwordx4 %s, v%d, s[8:11], s52 offen sc0 sc1' % (vr(48 + 4 * p_), GV), 'kvp')
    def check():
        k.e('v_max_u32 v8, v48, v49')
        for p_ in range(1, 32): k.e('v_max3_u32 v8, v8, v%d, v%d' % (48 + 2 * p_, 49 + 2 * p_))
        k.e('v_cmp_eq_u32 vcc, -1, v8')
    def mid():
        if WARM & 1: k.warm(WO, 8 * 18 * 4608)
        if WARM & 2 and (layer or not SIDE): k.warm(WI, 4 * 324 * 1024, (1, 4 * 324 * 1024))
        for q in range(4): k.e('v_mov_b32 v%d, 0' % (8 + q))
        k.e('s_lshl_b32 s46, s22, 11'); k.e('s_add_u32 s46, s46, %d' % K1_IMG); k.e('v_add_u32 v12, s46, v1')
        k.lds('ds_write_b128 v12, v[8:11]'); k.lds('ds_write_b128 v12, v[8:11] offset:1024')
        k.e('s_nop 7')
        for tt in range(6):
            def two(i, r):
                b = A1 + (i * 6 + tt) * 4 + r
                k.e(pk('fma', b, NM4 + 4 * i + r, ('b', 192 + tt), b))
                k.e(pk('mul', b, b, RS4 + 4 * i + r))
                if tt < 3: phi_pk(k, b, 168 + i * 4 + r, PC)
                k.e('v_cvt_pk_bf16_f32 v%d, v%d, v%d' % (PK + tt * 4 + 2 * i + r // 2, b, b + 1))
            k.lines.extend(rr([capture(k, lambda i=i, r=r: two(i, r)) for i in range(2) for r in (0, 2)]))
        for a in range(3):
            for b in range(4):
                T = (3 * a + b) if b < 3 else 9 + a
                k.e('v_mfma_f32_16x16x32_bf16 %s, %s, %s, 0' % (vr(A1 + 4 * T), vr(PK + 4 * a), vr(PK + 12 + 4 * b) if b < 3 else vr(232)))
        for T in (0, 1, 2, 9, 3, 4, 5, 10, 6, 7, 8, 11): k.lds('ds_write_b128 v236, %s offset:%d' % (vr(A1 + 4 * T), T * 1024))
        k.wait_lg_all()
        k.e('s_barrier')
        for c in range(4):
            for w in range(4): k.lds('ds_read_b32 v%d, v%d offset:%d' % (168 + c * 4 + w, LT + c, w * 12288))
        k.wait_lg_all()
        for c in range(4):
            B0 = 168 + c * 4
            k.e('v_add_f32 v%d, v%d, v%d' % (B0, B0, B0 + 1)); k.e('v_add_f32 v%d, v%d, v%d' % (B0 + 2, B0 + 2, B0 + 3)); k.e('v_add_f32 v%d, v%d, v%d' % (8 + c, B0, B0 + 2))
        k.vmem('buffer_store_dwordx4 v[8:11], v%d, s[8:11], s51 offen sc0 sc1' % GV)
        if SIDE and layer == 0: side.loads(k, 168, 2)
        k.stamp(2)
    stats_load(k, XS(xi))
    if SIDE and layer == 0: h.hook = lambda: side.loads(k, 168, 1)
    h.run(fillers={0: (setup(), 1.0)}, mid=mid)
    k.stamp(3)
    loads()
    import k_k5
    ew = k_k5.early(k, 18, WO)
    PQF = 144
    k.e('s_nop 7')
    for tt in range(3):
        def two(i, r):
            b = A2 + (i * 3 + tt) * 4 + r
            k.e(pk('fma', b, ('b', NM1 + i), 200 + 4 * tt + r, b)); k.e(pk('mul', b, b, ('b', RS1 + i)))
            phi_pk(k, b, 16 + i * 4 + r, PC)
            k.e('v_cvt_pk_bf16_f32 v%d, v%d, v%d' % (PQF + i * 8 + tt * 2 + r // 2, b, b + 1))
        k.lines.extend(rr([capture(k, lambda i=i, r=r: two(i, r)) for i in range(2) for r in (0, 2)]))
        for _ in range(4): next(ew, None)
    for i in range(2):
        k.e('v_mov_b32 v%d, 0' % (PQF + i * 8 + 6)); k.e('v_mov_b32 v%d, 0' % (PQF + i * 8 + 7))
    soft_poll(k, 'P1', loads, check, 'kvp')
    k.stamp(4)
    for _ in ew: pass
    for st in (32, 16, 8, 4):
        for p_ in range(0, st, 2): k.e(pk('add', 48 + p_, 48 + p_, 48 + p_ + st))
    for c in range(4):
        k.e('v_cvt_pk_bf16_f32 v%d, v%d, v%d' % (48 + c, 48 + c, 48 + c))
        k.lds('ds_write_b16 v%d, v%d' % (IM + c, 48 + c))
    k.e('v_add_u32 v12, %d, v1' % K1_IMG); k.e('v_lshlrev_b32 v13, 4, v15'); k.e('v_add_u32 v13, %d, v13' % (K1_IMG + 6144))
    k.e('s_mov_b32 s32, 0xffff'); k.e('s_mov_b32 s33, 0')
    k.wait_lg_all()
    k.e('s_barrier')
    for f in range(4): k.lds('ds_read_b128 %s, v13 offset:%d' % (vr(40 + 4 * f), f * 64))
    for f in range(6): k.lds('ds_read_b128 %s, v12 offset:%d' % (vr(16 + 4 * f), f * 1024))
    k.wait_lg_all()
    for kq in range(2):
        for i in range(2):
            for hh in range(2):
                d = 60 + (i * 2 + hh) * 4
                k.e('v_mfma_f32_16x16x32_bf16 %s, %s, %s, %s' % (vr(d), vr(40 + (hh * 2 + kq) * 4), vr(PQF + i * 8 + kq * 4), vr(d) if kq else '0'))
    for kq in range(2):
        for i in range(2):
            for b in range(3):
                d = 80 + (i * 3 + b) * 4
                k.e('v_mfma_f32_16x16x32_bf16 %s, %s, %s, %s' % (vr(d), vr(16 + (b * 2 + kq) * 4), vr(PQF + i * 8 + kq * 4), vr(d) if kq else '0'))
    for i in range(2):
        r0 = 60 + i * 8; r1 = r0 + 4
        for rr_ in (r0, r1):
            k.e('v_add_f32 v%d, %s, v%d' % (rr_, f32(1e-6), rr_)); k.e('v_rcp_f32 v%d, v%d' % (rr_, rr_))
        k.e('v_cndmask_b32 v%d, v%d, v%d, s[32:33]' % (r0 + 1, r1, r0))
    for i in range(2):
        r0 = 60 + i * 8; r1 = r0 + 4
        for b in range(3):
            d = 80 + (i * 3 + b) * 4
            for r in range(4):
                sel = r0 if b == 0 else (r1 if b == 2 or r >= 2 else r0 + 1)
                k.e('v_mul_f32 v%d, v%d, v%d' % (d + r, d + r, sel))
            k.e('v_cvt_pk_bf16_f32 v%d, v%d, v%d' % (d, d, d + 1)); k.e('v_cvt_pk_bf16_f32 v%d, v%d, v%d' % (d + 1, d + 2, d + 3))
            k.st('buffer_store_dwordx2 %s, v%d, s[8:11], s%d offen' % (vr(d, 2), SO + b, 54 + i))
    k.sig_addr(5 * layer, 44, 16, 1, 45)
    k.dump(slot, 6)

K3_STAT = K1_STAT
def phase_k3(k, layer, slot=3, h=None):
    xi = 2 * layer + 1
    map_8x4(k)
    k.stamp(0)
    h = h or make_h4(k, 3, layer)
    h.setup()
    sw = SIDE and layer == 0
    k.dep_addr(5 * layer + 1, 44)
    if not sw and h.npre == 0: h.prefetch_weights(PRE1)
    yield
    if sw:
        side.wait(k, 16, 1)
        side.process(k, 16, 2, tick=lambda: h.prefetch_weights(1))
        h.prefetch_weights(11)
    else: h.prefetch_weights(PRE2 if h.npre == 0 else PRE3)
    k.e('s_mul_i32 s31, s45, 1152'); k.e('s_add_u32 s31, s31, 0x%x' % CSI)
    k.e('s_lshl_b32 s46, s22, 9'); k.e('v_lshlrev_b32 v12, 3, v0'); k.e('v_add_u32 v201, s46, v12'); k.e('v_min_u32 v201, 1144, v201')
    for q in range(NCI):
        if q: k.e('s_add_u32 s31, s31, 18432')
        k.vmem('buffer_load_dwordx2 %s, v201, s[8:11], s31 offen sc1' % vr(192 + 2 * q, 2), 'cs')
    NM4 = 202; RS4 = 210; NM1 = 218; RS1 = 220; SQ = 224; CC = 248; ZO = 222; PA = 223
    k.e('v_mov_b32 v%d, %s' % (CC, f32(GC1))); k.e('v_mov_b32 v%d, %s' % (CC + 1, f32(GC0))); k.e('v_mov_b32 v%d, 1.0' % (CC + 2))
    for q in range(16): k.e('v_mov_b32 v%d, 0' % (SQ + q))
    k.e('s_lshl_b32 s50, s44, 2'); k.e('s_add_u32 s50, s50, s22')
    k.e('s_lshl_b32 s51, s50, 12'); k.e('s_add_u32 s51, s51, 0x%x' % US(layer))
    k.e('s_lshl_b32 s52, s45, 8'); k.e('s_add_u32 s52, s52, s51')
    k.e('s_lshl_b32 s30, s22, 8'); k.e('s_add_u32 s30, s30, %d' % K3_STAT)
    k.e('v_lshlrev_b32 v252, 4, v15'); k.e('v_add_u32 v252, s30, v252')
    k.e('v_lshrrev_b32 v4, 1, v15'); k.e('v_lshl_add_u32 v4, v4, 4, v14'); k.e('v_lshlrev_b32 v4, 4, v4'); k.e('v_and_b32 v5, 1, v15'); k.e('v_lshl_add_u32 v%d, v5, 3, v4' % ZO)
    k.e('v_and_b32 v4, 1, v0'); k.e('v_lshlrev_b32 v4, 7, v4'); k.e('v_lshrrev_b32 v6, 1, v0'); k.e('v_lshl_add_u32 v4, v6, 2, v4'); k.e('v_add_u32 v%d, s30, v4' % PA)
    k.e('s_lshl_b32 s46, s45, 6'); k.e('s_add_u32 s46, s46, s50'); k.e('s_mul_i32 s46, s46, 9216'); k.e('s_add_u32 s34, s46, 0x%x' % Z2(layer)); k.e('s_add_u32 s35, s34, 4096'); k.e('s_add_u32 s36, s34, 8192')
    yield
    k.stamp(6)
    k.sig_addr(5 * layer + 2, 45, 1, 16, 44)
    def setup():
        for _ in range(10): yield
        k.wait_vm('cs')
        for q in range(1, NCI):
            k.e('v_add_f32 v192, v192, v%d' % (192 + 2 * q)); k.e('v_add_f32 v193, v193, v%d' % (193 + 2 * q))
        k.e('v_add_u32 v201, %d, v201' % CSL)
        k.lds('ds_write_b64 v201, v[192:193]'); yield
        for _ in range(60): yield
        stats_finish(k, K3_STAT); yield
        k.e('v_lshlrev_b32 v13, 2, v14'); k.e('v_add_u32 v13, s30, v13'); yield
        for i in range(2):
            k.lds('ds_read_b128 %s, v252 offset:%d' % (vr(NM4 + 4 * i), 64 * i)); yield
            k.lds('ds_read_b128 %s, v252 offset:%d' % (vr(RS4 + 4 * i), 128 + 64 * i)); yield
            k.lds('ds_read_b32 v%d, v13 offset:%d' % (NM1 + i, 64 * i)); yield
            k.lds('ds_read_b32 v%d, v13 offset:%d' % (RS1 + i, 128 + 64 * i)); yield
        k.e('v_lshlrev_b32 v13, 2, v14'); k.e('v_add_u32 v13, %d, v13' % CSL); yield
        for t in range(9):
            k.lds('ds_read_b32 v%d, v13 offset:%d' % (192 + t, t * 64)); yield
        if sw: yield from side.store_gen(k, 16)
    def mid():
        if WARM & 4 and (layer or not SIDE): k.warm_ws()
        k.e('s_nop 7')
        def two(t, i, r):
            b = A1 + (i * 9 + t) * 4 + r
            tmp = (240 if t % 2 == 0 else 4) + i * 4 + r
            k.e(pk('fma', b, NM4 + 4 * i + r, ('b', 192 + t), b))
            k.e(pk('mul', b, b, RS4 + 4 * i + r))
            gelu_pk(k, b, tmp, CC)
            k.e(pk('add', SQ + i * 4 + r, SQ + i * 4 + r, b)); k.e(pk('fma', SQ + 8 + i * 4 + r, b, b, SQ + 8 + i * 4 + r))
        chains = [capture(k, lambda t=t, i=i, r=r: two(t, i, r)) for t in range(9) for i in range(2) for r in (0, 2)]
        if os.environ.get('ALT', '1') == '1': L = alt_sched(chains, window=int(os.environ.get('ALTW', '5')))
        else: L = sum([rr(chains[4 * t: 4 * t + 4]) for t in range(9)], [])
        for n, l in enumerate(L):
            k.lines.append(l)
            if n % 26 == 25: h.pump(1)
        for sh in (8, 4, 2, 1):
            for q in range(16): k.e('v_add_f32_dpp v%d, v%d, v%d row_ror:%d row_mask:0xf bank_mask:0xf' % (SQ + q, SQ + q, SQ + q, sh))
        k.e('s_mov_b32 exec_lo, 0x00010001'); k.e('s_mov_b32 exec_hi, 0x00010001')
        for i in range(2):
            k.lds('ds_write_b128 v252, %s offset:%d' % (vr(SQ + 4 * i), 64 * i))
            k.lds('ds_write_b128 v252, %s offset:%d' % (vr(SQ + 8 + 4 * i), 128 + 64 * i))
        k.e('s_mov_b64 exec, -1')
        k.lds('ds_read_b32 v6, v%d' % PA, 'pub')
        k.e('v_lshlrev_b32 v5, 2, v0')
        k.wait_lg('pub')
        k.vmem('buffer_store_dword v6, v5, s[8:11], s52 offen sc0 sc1')
        if sw: side.signal(k, 12, 2)
        k.stamp(2)
    def loads():
        for q in range(4): k.vmem('buffer_load_dwordx4 %s, v1, s[8:11], s51 offen offset:%d sc0 sc1' % (vr(SQ + 4 * q), q * 1024), 'us')
    def check():
        k.e('v_max_u32 v240, v%d, v%d' % (SQ, SQ + 1))
        for q in range(1, 8): k.e('v_max3_u32 v240, v240, v%d, v%d' % (SQ + 2 * q, SQ + 2 * q + 1))
        k.e('v_cmp_eq_u32 vcc, -1, v240')
    def z2_fin():
        for _ in range(W1): yield
        loads(); yield
        for _ in range(W2): yield
        soft_poll(k, 'P3', loads, check, 'us')
        k.stamp(3)
        L = []
        for q in range(1, 4):
            for c in range(4): L.append('    v_add_f32 v%d, v%d, v%d' % (SQ + c, SQ + c, SQ + 4 * q + c))
        L += rr([capture(k, lambda c=c: rowsum_g(k, SQ + c, SQ + 4 + c)) for c in range(4)])
        def fin(c):
            S = SQ + 2 * c; Q = S + 1
            k.e('v_mul_f32 v%d, %s, v%d' % (SQ + 8 + c, f32(-1.0 / 2304), S))
            k.e('v_mul_f32 v%d, %s, v%d' % (Q, f32(1.0 / 2304), Q))
            k.e('v_mul_f32 v%d, v%d, v%d' % (S, SQ + 8 + c, SQ + 8 + c)); k.e('v_sub_f32 v%d, v%d, v%d' % (Q, Q, S)); k.e('v_max_f32 v%d, 0, v%d' % (Q, Q))
            k.e('v_add_f32 v%d, %s, v%d' % (Q, f32(1e-5), Q)); k.e('v_rsq_f32 v%d, v%d' % (SQ + 10 + c, Q))
            k.e('v_mul_f32 v%d, v%d, v%d' % (SQ + 8 + c, SQ + 8 + c, SQ + 10 + c))
        L += rr([capture(k, lambda c=c: fin(c)) for c in range(2)])
        L += ['    v_lshlrev_b32 v4, 3, v14', '    v_add_u32 v4, s30, v4']
        yield from emit_gen(k, L)
        k.e('s_mov_b64 exec, 0xffff')
        k.lds('ds_write_b64 v4, %s' % vr(SQ + 8, 2)); k.lds('ds_write_b64 v4, %s offset:128' % vr(SQ + 10, 2))
        k.e('s_mov_b64 exec, -1'); yield
        for i in range(2):
            k.lds('ds_read_b128 %s, v252 offset:%d' % (vr(NM4 + 4 * i), 64 * i), 'st2'); yield
            k.lds('ds_read_b128 %s, v252 offset:%d' % (vr(RS4 + 4 * i), 128 + 64 * i), 'st2'); yield
        for _ in range(6): yield
        k.wait_lg('st2')
        for t in range(9):
            for i in range(2):
                b = A1 + (i * 9 + t) * 4
                for r in range(4):
                    k.e('v_fma_f32 v%d, v%d, v%d, v%d' % (b + r, b + r, RS4 + 4 * i + r, NM4 + 4 * i + r)); yield
                k.e('v_cvt_pk_bf16_f32 v%d, v%d, v%d' % (b, b, b + 1)); yield
                k.e('v_cvt_pk_bf16_f32 v%d, v%d, v%d' % (b + 1, b + 2, b + 3)); yield
                k.st('buffer_store_dwordx2 %s, v%d, s[8:11], s%d offen offset:%d' % (vr(b, 2), ZO, 34 + t // 4, (t % 4) * 1024 + i * 512)); yield
                for _ in range(int(os.environ.get('W3', '0'))): yield
        k.e('v_lshlrev_b32 v13, 4, v15'); k.e('v_add_u32 v13, %d, v13' % (CSL + 576)); yield
        for t in range(9):
            k.lds('ds_read_b128 %s, v13 offset:%d' % (vr(A1 + 4 * t), t * 64)); yield
    W1 = int(os.environ.get('W1', '130')); W2 = int(os.environ.get('W2', '60'))
    CS1 = lambda t: A1 + 4 * t
    stats_load(k, XS(xi))
    h.run(fillers={0: (setup(), 1.0), 1: (z2_fin(), 1.5)}, mid=mid, skip=0)
    k.stamp(4)
    if FUSED: k.signal()
    k.e('s_lshl_b32 s46, s44, 4'); k.e('s_add_u32 s46, s46, s45'); k.e('s_lshl_b32 s46, s46, 3'); k.e('s_lshl_b32 s47, s22, 1'); k.e('s_add_u32 s46, s46, s47')
    k.e('s_mul_i32 s46, s46, 4608'); k.e('s_add_u32 s34, s46, 0x%x' % Z1(layer)); k.e('s_add_u32 s35, s34, 4096'); k.e('s_add_u32 s36, s34, 8192')
    k.e('v_lshlrev_b32 v9, 3, v0')
    k.wait_lg_all()
    k.e('s_nop 7')
    for t in range(9):
        def two(i, r):
            b = A2 + (i * 9 + t) * 4 + r
            k.e(pk('fma', b, ('b', NM1 + i), CS1(t) + r, b))
            k.e(pk('mul', b, b, ('b', RS1 + i)))
            if not DEFER: gelu_pk(k, b, 240 + i * 4 + r, CC)
        k.lines.extend(rr([capture(k, lambda i=i, r=r: two(i, r)) for i in range(2) for r in (0, 2)]))
        for i in range(2):
            b = A2 + (i * 9 + t) * 4
            k.e('v_cvt_pk_bf16_f32 v%d, v%d, v%d' % (b, b, b + 1)); k.e('v_cvt_pk_bf16_f32 v%d, v%d, v%d' % (b + 1, b + 2, b + 3))
            tt = i * 9 + t
            if FUSED:
                k.e('v_accvgpr_write_b32 a%d, v%d' % (216 + 2 * tt, b)); k.e('v_accvgpr_write_b32 a%d, v%d' % (217 + 2 * tt, b + 1))
            else: k.st('buffer_store_dwordx2 %s, v9, s[8:11], s%d offen offset:%d' % (vr(b, 2), 34 + tt // 8, (tt % 8) * 512))
    k.dump(slot, 6)
```
